```python
import torch

def _softmax(x, axis=-1):
    return torch.softmax(x, dim=axis)
def _gelu(x):
    return torch.nn.functional.gelu(x, approximate="tanh")
def _silu(x):
    return torch.nn.functional.silu(x)
def _sigmoid(x):
    return torch.sigmoid(x)
def _layernorm(x, axis=-1, eps=1e-5):
    m = x.mean(dim=axis, keepdim=True)
    v = x.var(dim=axis, keepdim=True, unbiased=False)
    return (x - m) / torch.sqrt(v + eps)
def _scatter_add(tgt, idx, src, axis=0):
    return tgt.clone().index_add_(axis, idx, src)
def _segment_sum(src, seg, n):
    out = torch.zeros((n,) + src.shape[1:], dtype=src.dtype)
    return out.index_add_(0, seg, src)
def _pad(x, pw):
    flat = tuple(v for pair in reversed(pw) for v in pair)
    return torch.nn.functional.pad(x, flat)

kernel_name = 'concat_heads__softmax_full_mha__compressed_kv_cla__prompt'

def setup_inputs():

    _w = (lambda a: (lambda t: t.to(torch.bfloat16) if t.is_floating_point() else t)(torch.as_tensor(a)))
    def _A_setup():
        B, S, D = 1, 2048, 576
        return {
            "x": _w((lambda *s: torch.randn(*s, dtype=torch.bfloat16) * 0.2)(B, S, D)),
            "wqkv": _w((lambda *s: torch.randn(*s, dtype=torch.bfloat16) * 0.2)(D, 3 * D)),
            "wo": _w((lambda *s: torch.randn(*s, dtype=torch.bfloat16) * 0.05)(D, D)),
        }
    _A_in = _A_setup()

    def _B_setup():
        B, H, Sq, Sk, D, M = 1, 32, 2048, 2048, 128, 576
        Dc = 4 * D
        return {
            "x": _w((lambda *s: torch.randn(*s, dtype=torch.bfloat16) * 0.4)(B, Sq, M)),
            "c_kv": _w((lambda *s: torch.randn(*s, dtype=torch.bfloat16) * 0.4)(B, Sk, Dc)),
            "w_q": _w((lambda *s: torch.randn(*s, dtype=torch.bfloat16) * 3.2)(M, H, D) * (M ** -0.5)),
            "w_uk": _w((lambda *s: torch.randn(*s, dtype=torch.bfloat16) * 3.2)(Dc, H, D) * (Dc ** -0.5)),
            "w_uv": _w((lambda *s: torch.randn(*s, dtype=torch.bfloat16) * 0.4)(Dc, H, D) * (Dc ** -0.5)),
            "w_o": _w((lambda *s: torch.randn(*s, dtype=torch.bfloat16) * 0.4)(H, D, M) * ((H * D) ** -0.5)),
        }
    _B_in = _B_setup()

    return {
        "A_x": _A_in["x"],
        "A_wqkv": _A_in["wqkv"],
        "A_wo": _A_in["wo"],
        "B_x": _B_in["x"],
        "B_c_kv": _B_in["c_kv"],
        "B_w_q": _B_in["w_q"],
        "B_w_uk": _B_in["w_uk"],
        "B_w_uv": _B_in["w_uv"],
        "B_w_o": _B_in["w_o"],
    }

def reference(A_x, A_wqkv, A_wo, B_x, B_c_kv, B_w_q, B_w_uk, B_w_uv, B_w_o):
    def _A_ref(x, wqkv, wo):
        B, S, D = x.shape
        H = 32; Dh = D // H
        qkv = (lambda x, *d: x.permute(*d))((x @ wqkv).reshape(B, S, 3, H, Dh), 2, 0, 3, 1, 4)
        q, k, v = qkv[0], qkv[1], qkv[2]
        scale = Dh ** -0.5
        scores = torch.einsum("bhqd,bhkd->bhqk", q, k) * scale
        p = _softmax(scores, axis=-1)
        o = torch.einsum("bhqk,bhkd->bhqd", p, v)
        return (lambda x, *d: x.permute(*d))(o, 0, 2, 1, 3).reshape(B, S, D) @ wo

    def _B_ref(x, c_kv, w_q, w_uk, w_uv, w_o):
        B, Sq, M = x.shape[0], x.shape[1], x.shape[2]
        Sk = c_kv.shape[1]
        H, D = w_q.shape[1], w_q.shape[2]
        q = torch.einsum("bqm,mhd->bhqd", x, w_q)
        k = torch.einsum("bkc,chd->bhkd", c_kv, w_uk)
        v = torch.einsum("bkc,chd->bhkd", c_kv, w_uv)
        scores = torch.einsum("bhqd,bhkd->bhqk", q, k) * (D ** -0.5)
        off = Sk - Sq
        qi = torch.arange(Sq)[:, None]
        kj = torch.arange(Sk)[None, :]
        cmask = kj <= (qi + off)
        scores = torch.where(cmask[None, None], scores, -1e9)
        p = _softmax(scores, axis=-1)
        ctx = torch.einsum("bhqk,bhkd->bhqd", p, v)
        return torch.einsum("bhqd,hdm->bqm", ctx, w_o)

    a = _A_ref(A_x, A_wqkv, A_wo)
    b = _B_ref(B_x, B_c_kv, B_w_q, B_w_uk, B_w_uv, B_w_o)
    return torch.concatenate([a, b], axis=-1)
```

```python
import re

def vr(lo, n=1, p='v'):
    return f"{p}{lo}" if n == 1 else f"{p}[{lo}:{lo+n-1}]"
def ar(lo, n=1): return vr(lo, n, 'a')
def sr(lo, n=1): return vr(lo, n, 's')

class Prog:
    def __init__(self):
        self.l = []
    def __call__(self, s):
        for x in s.split("\n"):
            x = x.strip()
            if x: self.l.append(x)
        return self
    def ext(self, lst):
        for x in lst: self(x)
    def label(self, n): self.l.append(n + ":")
    def text(self):
        out = []
        for x in self.l:
            out.append(x if x.endswith(":") or x.startswith(".") else "    " + x)
        return "\n".join(out) + "\n"

_REG = re.compile(r"^(-|abs\()?([vas])(?:(\d+)|\[(\d+):(\d+)\])\)?$")
def regs(tok):
    tok = tok.strip()
    if tok in ("vcc",): return [("s", "vcc")]
    if tok in ("vcc_lo", "vcc_hi"): return [("s", "vcc")]
    if tok in ("exec", "exec_lo", "exec_hi"): return [("s", "exec")]
    if tok == "m0": return [("s", "m0")]
    m = _REG.match(tok)
    if not m: return []
    p = m.group(2)
    if m.group(3) is not None: return [(p, int(m.group(3)))]
    return [(p, i) for i in range(int(m.group(4)), int(m.group(5)) + 1)]

TRANS = ("v_exp_f32", "v_log_f32", "v_rcp_f32", "v_rsq_f32", "v_sqrt_f32", "v_sin_f32", "v_cos_f32", "v_rcp_iflag_f32")
class I:
    def __init__(self, s):
        self.s = s
        s0 = s.split(";")[0].strip()
        self.label = s0.endswith(":")
        parts = s0.split(None, 1)
        self.op = parts[0] if parts else ""
        rest = parts[1] if len(parts) > 1 else ""
        toks = [t.strip() for t in rest.split(",")]
        mods = ""
        if toks and toks[-1]:
            lt = toks[-1].split(None, 1)
            toks[-1] = lt[0]
            mods = lt[1] if len(lt) > 1 else ""
        self.toks = toks; self.mods = mods
        op = self.op
        self.w = []; self.r = []
        self.kind = "other"
        R = [regs(t) for t in toks]
        if self.label or op.startswith("."):
            self.kind = "label"
        elif op.startswith("v_mfma"):
            self.kind = "mfma"; self.w = R[0]; self.A = R[1]; self.B = R[2]; self.C = R[3]; self.r = R[1] + R[2] + R[3]
            self.passes = 8 if "32x32x16" in op or "32x32x8" in op else 4
        elif op.startswith("ds_read") or op.startswith("ds_bpermute") or op.startswith("ds_swizzle"):
            self.kind = "dsr"; self.w = R[0]; self.r = sum(R[1:], [])
        elif op.startswith("ds_write"):
            self.kind = "dsw"; self.r = sum(R, [])
        elif op.startswith("ds_"):
            self.kind = "dsr" if "rtn" in op else "dsw"
            if "rtn" in op: self.w = R[0]; self.r = sum(R[1:], [])
            else: self.r = sum(R, [])
        elif op.startswith("buffer_load") or op.startswith("global_load"):
            if " lds" in (" " + mods) or "_lds_" in op:
                self.kind = "dma"; self.r = sum(R, []) + [("s", "m0")]
            else:
                self.kind = "vld"; self.w = R[0]; self.r = sum(R[1:], [])
        elif op.startswith("buffer_store") or op.startswith("global_store"):
            self.kind = "vst"; self.r = sum(R, [])
            self.data = R[0] if op.startswith("buffer") else R[1]
        elif op.startswith("buffer_atomic") or op.startswith("global_atomic"):
            self.kind = "vat"; self.r = sum(R, [])
            if "sc0" in mods: self.w = R[0]
        elif op in ("buffer_inv", "buffer_wbl2"):
            self.kind = "vmisc"
        elif op.startswith("s_load") or op.startswith("s_memtime") or op.startswith("s_memrealtime"):
            self.kind = "smem"; self.w = R[0]; self.r = sum(R[1:], [])
        elif op == "s_waitcnt":
            self.kind = "wait"
            full = rest
            m = re.search(r"vmcnt\((\d+)\)", full); self.vm = int(m.group(1)) if m else None
            m = re.search(r"lgkmcnt\((\d+)\)", full); self.lg = int(m.group(1)) if m else None
        elif op == "s_nop":
            self.kind = "nop"; self.n = int(toks[0], 0) + 1
        elif op.startswith("s_"):
            self.kind = "salu"
            if op.startswith("s_cmp") or op.startswith("s_cbranch") or op in ("s_branch", "s_barrier", "s_setprio", "s_endpgm", "s_sleep", "s_setpc_b64"):
                self.r = sum(R, [])
                if "vcc" in op: self.r += [("s", "vcc")]
            else:
                self.w = R[0]; self.r = sum(R[1:], [])
                if "saveexec" in op: self.w += [("s", "exec")]
                if op.startswith("s_addk") or op.startswith("s_mulk") or op.startswith("s_cmov"): self.r += R[0]
        elif op.startswith("v_"):
            self.kind = "valu"
            self.w = list(R[0]); self.r = sum(R[1:], [])
            if op.startswith("v_permlane") and "swap" in op:
                self.w = R[0] + R[1]; self.r = R[0] + R[1]
            if op.startswith("v_fmac") or op.startswith("v_dot2c") or "UNUSED_PRESERVE" in s0 or op.startswith("v_writelane"):
                self.r += R[0]
            if "_co_" in op:
                self.w += R[1]; self.r = sum(R[2:], [])
            if op.startswith("v_cndmask") and len(toks) == 3: self.r += [("s", "vcc")]
            if op.startswith("v_cmpx"): self.w += [("s", "exec")]
            self.trans = any(op.startswith(t) for t in TRANS)
        else:
            raise ValueError("unknown instr: " + s)

def check(lines, name="", assume_pending=None, verbose=True):
    errs = []
    ins = [I(x) for x in lines]
    lgq = []
    vmq = []
    pos = 0
    last = {}
    def err(i, msg):
        errs.append(f"[{name}] #{i} '{ins[i].s}': {msg}")
    for i, x in enumerate(ins):
        if x.kind == "label": continue
        def need(key, n, msg):
            p = last.get(key)
            if p is not None and pos - p - 1 < n:
                err(i, f"{msg}: {key} dist={pos-p-1} need {n}")
        touched = set(x.r) | set(x.w)
        for (k, rs, j) in lgq:
            if rs & touched: err(i, f"touches pending lgkm result of #{j} '{ins[j].s}'")
        for (k, rs, j) in vmq:
            if rs & touched: err(i, f"touches pending vm result of #{j} '{ins[j].s}'")
        if x.kind == "mfma":
            for r in x.r: need(("valu_w", r), 2, "VALU->MFMA")
            for r in x.A + x.B:
                e = last.get(("mfma_w", r))
                if e and pos - e[0] - 1 < (12 if e[1] == 8 else 8): err(i, f"MFMA D->A/B {r} dist={pos-e[0]-1}")
            for r in x.C:
                e = last.get(("mfma_w", r))
                if e and e[2] != tuple(x.C) and pos - e[0] - 1 < (10 if e[1] == 8 else 6): err(i, f"MFMA D->C overlap {r}")
                if e and e[2] == tuple(x.C) and e[1] != x.passes and pos - e[0] - 1 < 10: err(i, f"MFMA D->C different shape {r}")
            for r in x.w:
                e = last.get(("mfma_w", r))
                if e and r not in x.C and pos - e[0] - 1 < (12 if e[1] == 8 else 8): err(i, f"MFMA WAW {r} dist={pos-e[0]-1}")
            need(("valu_sw", ("s", "exec")), 4, "VALU exec->MFMA")
        if x.kind in ("valu", "dsr", "dsw", "vld", "vst", "dma", "vat"):
            for r in touched:
                e = last.get(("mfma_w", r))
                if e and pos - e[0] - 1 < (12 if e[1] == 8 else 8): err(i, f"MFMA D->{x.kind} {r} dist={pos-e[0]-1}")
        if x.kind == "valu":
            for r in x.w:
                e = last.get(("mfma_c", r))
                if e and pos - e[0] - 1 < (7 if e[1] == 8 else 3): err(i, f"MFMA C WAR {r} dist={pos-e[0]-1}")
                need(("st_data", r), 2, "store data WAR")
            if not x.trans:
                for r in x.r: need(("trans_w", r), 1, "trans->VALU")
            for r in x.r:
                if r[0] == "s": need(("valu_sw", r), 2, "VALU sgpr->VALU")
            if x.op.startswith("v_permlane"):
                for r in x.r: need(("valu_w", r), 2, "VALU->permlane")
            if x.op.startswith("v_readfirstlane") or x.op.startswith("v_readlane"):
                for r in x.r: need(("valu_w", r), 1, "VALU->readlane")
            if "dpp" in x.s or "row_" in x.s:
                for r in x.r: need(("valu_w", r), 2, "VALU->dpp")
        if x.kind in ("dsr", "vld"):
            for r in x.w: need(("st_data", r), 1, "store data WAR")
        if x.kind in ("vld", "vst", "dma", "vat"):
            for r in x.r:
                if r[0] == "s": need(("valu_sw", r), 5, "VALU sgpr->VMEM")
        if x.kind == "dma":
            need(("salu_w", ("s", "m0")), 1, "m0->dma")
        if x.kind == "salu" and x.op.startswith("s_cbranch_vcc"):
            pass
        if x.kind == "wait":
            if x.lg is not None:
                if any(k == "smem" for k, _, _ in lgq) and x.lg != 0:
                    pass
                else:
                    while len(lgq) > x.lg: lgq.pop(0)
            if x.vm is not None:
                while len(vmq) > x.vm: vmq.pop(0)
        elif x.kind == "dsr": lgq.append(("ds", set(x.w), i))
        elif x.kind == "dsw": lgq.append(("ds", set(), i))
        elif x.kind == "smem": lgq.append(("smem", set(x.w), i))
        elif x.kind in ("vld", "vat"): vmq.append(("vm", set(x.w), i))
        elif x.kind in ("vst", "dma", "vmisc"): vmq.append(("vm", set(), i))
        if len(lgq) > 15 and x.kind in ("dsr","dsw"):
            pass
        while len(vmq) > 63: vmq.pop(0)
        if x.kind == "mfma":
            for r in x.w: last[("mfma_w", r)] = (pos, x.passes, tuple(x.w))
            for r in x.C: last[("mfma_c", r)] = (pos, x.passes)
        if x.kind == "valu":
            for r in x.w:
                if r[0] == "s": last[("valu_sw", r)] = pos
                else:
                    last[("valu_w", r)] = pos
                    last.pop(("mfma_w", r), None)
                    if x.trans: last[("trans_w", r)] = pos
                    else: last.pop(("trans_w", r), None)
        if x.kind == "salu":
            for r in x.w:
                last[("salu_w", r)] = pos
                last.pop(("valu_sw", r), None)
        if x.kind == "vst" and ("x4" in x.op or "x3" in x.op):
            for r in x.data: last[("st_data", r)] = pos
        pos += x.n if x.kind == "nop" else 1
    if verbose:
        for e in errs[:40]: print("HAZARD", e)
        if len(errs) > 40: print("...", len(errs), "total")
    return errs

COST = {"mfma": 8, "valu": 4, "dsr": 4, "dsw": 8, "dma": 8, "vld": 8, "vst": 8, "wait": 4, "salu": 4, "nop": 4, "smem": 4, "vat": 8, "vmisc": 4, "label": 0, "other": 4}
def cost(s):
    x = I(s)
    if x.kind == "valu" and x.trans: return 8
    if x.kind == "nop": return 4 * x.n
    return COST[x.kind]

def weave(mfmas, gaps):
    out = []
    for m, g in zip(mfmas, gaps):
        out.append(m); out.extend(g)
    return out

def order_gap(g):
    def cls(s):
        k = I(s).kind
        return 0 if k in ("wait", "salu", "dsr", "dsw", "dma", "vld", "vst", "nop", "vat","vmisc") else 1
    return [s for s in g if cls(s) == 0] + [s for s in g if cls(s) == 1]
```

```python
from asmlib import *

NAME = "concat_heads__softmax_full_mha__compressed_kv_cla__prompt"
MB = 1 << 20
WS_KB   = 0
WS_VB   = 16 * MB
WS_CTXB = 33 * MB
WS_AH   = 50 * MB
AH_STRIDE = 155648
AH_K2 = 65536
AH_V  = 73728
WS_QA   = 56 * MB
QA_STRIDE = 73728
WS_CTXA = 59 * MB
WS_WOB  = 62 * MB
WS_WOA  = WS_WOB + 256 * 18 * 1024
WS_SIZE = 256 * MB

P_AX, P_AWQKV, P_AWO, P_BX, P_CKV, P_WQ, P_WUK, P_WUV, P_BWO, P_OUT, P_DBG, P_WS = range(4, 28, 2)
S_WAVE, S_XCD, S_J, S_HEAD, S_BLK, S_G = 28, 29, 30, 31, 32, 33
SRD_WS, SRD1, SRD2, SRD3 = 36, 40, 44, 48
V_TID, V_LANE = 0, 1

def mk_srd(p, d, ptr, size):
    p(f"s_mov_b32 s{d}, s{ptr}\ns_mov_b32 s{d+1}, s{ptr+1}\ns_mov_b32 s{d+2}, {size}\ns_mov_b32 s{d+3}, 0x20000")

def entry(p, nwg, exit_label):
    p(f"s_cmp_ge_u32 s2, {nwg}\ns_cbranch_scc1 {exit_label}")
    p("s_load_dwordx16 s[4:19], s[0:1], 0\ns_load_dwordx8 s[20:27], s[0:1], 64")
    p(f"v_lshrrev_b32 v2, 6, v0\nv_and_b32 v{V_LANE}, 63, v0\ns_mov_b32 s{S_G}, s2")
    p(f"v_readfirstlane_b32 s{S_WAVE}, v2")
    p(f"s_and_b32 s{S_XCD}, s2, 7\ns_lshr_b32 s{S_J}, s2, 3")
    p(f"s_and_b32 s{S_HEAD}, s{S_J}, 3\ns_lshl_b32 s52, s{S_XCD}, 2\ns_add_u32 s{S_HEAD}, s{S_HEAD}, s52")
    p(f"s_lshr_b32 s{S_BLK}, s{S_J}, 2")
    p("s_waitcnt lgkmcnt(0)")
    mk_srd(p, SRD_WS, P_WS, hex(WS_SIZE))

def kernel_header(name):
    return f".globl {name}\n.p2align 8\n.type {name},@function\n{name}:\n"

def kernel_desc(name, vgpr=512, accum=256, sgpr=102):
    return f""".amdhsa_kernel {name}
  .amdhsa_next_free_vgpr {vgpr}
  .amdhsa_next_free_sgpr {sgpr}
  .amdhsa_accum_offset {accum}
  .amdhsa_group_segment_fixed_size 0
  .amdhsa_kernarg_size 96
  .amdhsa_user_sgpr_count 2
  .amdhsa_user_sgpr_kernarg_segment_ptr 1
  .amdhsa_system_sgpr_workgroup_id_x 1
  .amdhsa_float_denorm_mode_32 3
.end_amdhsa_kernel
"""

def mfma(d, a, b, c):
    return f"v_mfma_f32_32x32x16_bf16 {d}, {a}, {b}, {c}"

STAMPS = False
WS_STAMP = 100 * MB
_stamp_n = [0]
def stamp_begin(p):
    if not STAMPS: return
    _stamp_n[0] = 0
    p("s_memrealtime s[98:99]")
    for k in range(11): p(f"s_mov_b32 s{76+2*k}, 0")
    stamp(p)
def stamp(p, idx=None):
    if not STAMPS: return
    k = _stamp_n[0] if idx is None else idx
    _stamp_n[0] = k + 1
    assert k < 11
    p(f"s_memtime s[{76+2*k}:{77+2*k}]")
def stamp_end(p, kidx):
    if not STAMPS: return
    p("s_memtime s[96:97]\ns_memrealtime s[100:101]\ns_waitcnt lgkmcnt(0)")
    p(f"s_lshl_b32 s52, s{S_G}, 2\ns_add_u32 s52, s52, s{S_WAVE}\ns_lshl_b32 s52, s52, 6\ns_add_u32 s52, s52, {WS_STAMP + kidx*65536}")
    p("v_mov_b32 v2, 0")
    for k in range(11):
        p(f"v_mov_b32 v3, s{76+2*k}\nbuffer_store_dword v3, v2, {sr(SRD_WS,4)}, s52 offen offset:{4*k}")
    p(f"v_mov_b32 v3, s98\nbuffer_store_dword v3, v2, {sr(SRD_WS,4)}, s52 offen offset:44")
    p(f"v_mov_b32 v3, s100\nbuffer_store_dword v3, v2, {sr(SRD_WS,4)}, s52 offen offset:48")
```

```python
from common import *

def auto_lgkm(lines, pending=None, slack_cycles=96):
    q = list(pending or [])
    out = []
    t = 0
    lastm = -1000
    for s in lines:
        x = I(s)
        if x.kind == "label":
            out.append(s); continue
        touched = set(x.r) | set(x.w)
        if x.kind == "mfma": t = max(t, lastm + 28)
        need = -1
        for k, (rs, tt) in enumerate(q):
            if rs & touched: need = k
        if x.kind == "salu" and x.op == "s_barrier" and "; lgkm0" in s:
            need = len(q) - 1
        if need >= 0:
            k = need
            while k + 1 < len(q) and t - q[k + 1][1] >= slack_cycles: k += 1
            n = min(15, len(q) - 1 - k)
            out.append(f"s_waitcnt lgkmcnt({n})")
            t += 4
            q = q[len(q) - n:] if n else []
        if x.kind == "wait" and x.lg is not None:
            q = q[len(q) - x.lg:] if 0 < x.lg < len(q) else ([] if x.lg == 0 else q)
        if x.kind == "dsr": q.append((set(x.w), t))
        if x.kind == "dsw": q.append((set(), t))
        out.append(s)
        if x.kind == "mfma":
            t = max(t, lastm + 32); lastm = t; t += 8
        else: t += cost(s)
    return out, q

def resolve_vm(lines):
    out = []
    vm = []
    for s in lines:
        if s.startswith("VMWAIT"):
            tag = s.split()[1]
            idx = [k for k, t in enumerate(vm) if t == tag]
            assert idx, "no VMEM op tagged " + tag
            n = len(vm) - 1 - idx[-1]
            out.append(f"s_waitcnt vmcnt({min(n, 63)})")
            continue
        x = I(s)
        if x.kind in ("dma", "vld", "vst", "vat", "vmisc"):
            m = re.search(r"; T:(\S+)", s)
            vm.append(m.group(1) if m else None)
        out.append(s)
    return out

def win(d, S):
    b = max(x for x in d if x <= S)
    assert S - b <= 65535, (S, b)
    return b

class Seg:
    def __init__(s, name, mt, nt, nst, abase, wbase, acc, orient, vA, vW, fa, fw, read_act=True,
                 vDA=(), vDW=(), sM0A=None, sM0W=None, sOffA=None, sOffW=None, stepA=128, stepW=0, srdA=None, srdW=None,
                 wrow=256, dist=1):
        s.__dict__.update(locals()); del s.__dict__['s']
    def morder(s):
        o = []
        n = max(s.mt, s.nt)
        for d in range(n):
            for ti in range(min(d + 1, s.mt)):
                if d < s.nt: o.append((ti, d))
            for fi in range(min(d, s.nt)):
                if d < s.mt: o.append((d, fi))
        assert len(set(o)) == s.mt * s.nt, o
        return o
    def reads(s, k):
        st, ks = divmod(k, 4)
        out = {}
        for ti in range(s.mt):
            S = s.abase(st) + ti * 4096 if s.read_act else 0
            if s.read_act:
                b = win(s.vA, S)
                out[('a', ti)] = [f"ds_read_b128 {s.fa(k, ti)}, v{s.vA[b][ks]} offset:{S - b}"]
            else: out[('a', ti)] = []
        for fi in range(s.nt):
            l = []
            m = re.match(r"([va])\[(\d+):", s.fw(k, fi))
            for u in range(2):
                S = s.wbase(st) + (16 * ks + 4 * u) * s.wrow
                b = win(s.vW, S)
                l.append(f"ds_read_b64_tr_b16 {vr(int(m.group(2)) + 2 * u, 2, m.group(1))}, v{s.vW[b][fi]} offset:{S - b}")
            out[('w', fi)] = l
        order = []; seen = set()
        for (ti, fi) in s.morder():
            for key in (('w', fi), ('a', ti)):
                if key not in seen:
                    seen.add(key); order += out[key]
        return order
    def mf(s, k):
        out = []
        for (ti, fi) in s.morder():
            a = s.fa(k, ti); w = s.fw(k, fi); d = s.acc(ti, fi)
            c = "0" if k == 0 else d
            out.append(mfma(d, w, a, c) if s.orient(ti, fi) == 'FT' else mfma(d, a, w, c))
        return out
    def dma(s, st):
        tag = f"{s.name}{st}"
        g = []
        for (regs, sM0, base, srd, soff, step) in ((s.vDA, s.sM0A, s.abase, s.srdA, s.sOffA, s.stepA), (s.vDW, s.sM0W, s.wbase, s.srdW, s.sOffW, s.stepW)):
            regs = [r if isinstance(r, tuple) else (r, soff) for r in regs]
            for j, (r, so) in enumerate(regs):
                pre = [f"s_add_u32 m0, s{sM0}, {base(st) + (j // 4) * 4096}", "s_nop 0"] if j % 4 == 0 else []
                g.append(pre + [f"buffer_load_dwordx4 v{r}, {sr(srd, 4)}, s{so} offen offset:{(j % 4) * 1024} lds ; T:{tag}"])
                if j == len(regs) - 1 or regs[j + 1][1] != so:
                    g[-1].append(f"s_add_u32 s{so}, s{so}, {step}")
        return g

def pipeline(segs, issue, lgkm0, fillers=None, prologue_reads=True, budget=22, vsp=2, hooks=None):
    G = [(sg, st) for sg in segs for st in range(sg.nst)]
    K = [(sg, k) for sg in segs for k in range(4 * sg.nst)]
    lines = []
    if prologue_reads:
        lines += [f"VMWAIT {G[0][0].name}0", "s_barrier"]
        for k in range(segs[0].dist): lines += segs[0].reads(k)
    nread = segs[0].dist
    dq = []; fq = []; late = []; gap0 = 0; lastv = -10
    for gk, (sg, k) in enumerate(K):
        gi = gk // 4
        mf = sg.mf(k); M = len(mf)
        gaps = [[] for _ in range(M)]
        if fillers and gk in fillers: fq += fillers[gk]
        if hooks and gk in hooks: lines += hooks[gk]
        rd = []; pre = []
        dq += late; late = []
        while nread < len(K) and nread <= gk + K[nread][0].dist and nread <= gk + 2:
            tsg, tk = K[nread]
            if nread % 4 == 0:
                tgi = nread // 4
                assert not pre
                assert not any(x.endswith(f"T:{tsg.name}{tk // 4}") for f in dq + late for x in f), f"DMA of stage not issued at its barrier {gi}"
                pre = [f"VMWAIT {tsg.name}{tk // 4}", "s_barrier" + (" ; lgkm0" if lgkm0.get(tgi - 1) else "")]
                newd = []
                for t in issue.get(tgi - 1, []): newd += G[t][0].dma(G[t][1])
                if rd:
                    rd += pre; pre = []; late = newd
                else: dq += newd
            rd += tsg.reads(tk); nread += 1
        avail = M - min(3, M // 4 + 1) if M > 4 else M - 1
        per = max(1, -(-len(rd) // avail))
        if pre: gaps[0] += pre
        g = 0
        while rd:
            gaps[g] += rd[:per]; rd = rd[per:]; g += 1
        def isv(f): return any(I(x).kind in ("dma", "vst", "vld") for x in f)
        for g in range(M):
            gg = gap0 + g
            used = sum(4 if x.startswith("VMWAIT") else cost(x) for x in gaps[g])
            barpos = bool(pre and g == 0)
            if dq and not barpos and gg - lastv >= vsp and used + sum(cost(x) for x in dq[0]) <= 24:
                f = dq.pop(0); gaps[g] += f; used += sum(cost(x) for x in f); lastv = gg
            while fq and used + sum(cost(x) for x in fq[0]) <= budget:
                f = fq[0]
                if isv(f):
                    if gg - lastv < vsp or dq or any(I(x).kind == "valu" for x in gaps[g] if not x.startswith("VMWAIT")): break
                    lastv = gg
                fq.pop(0)
                gaps[g] += f; used += sum(cost(x) for x in f)
        gap0 += M
        lines += weave(mf, gaps)
    assert not dq
    for f in fq: lines += f
    return lines
```

```python
from gemm import *
import math, os
NOSTORE = os.environ.get('NOSTORE')
KSP = int(os.environ.get('KSP', '1'))
LOG2E = 1.4426950408889634
def f32hex(x):
    import struct
    return hex(struct.unpack("<I", struct.pack("<f", x))[0])

ST = ""
def setst(x):
    global ST
    ST = x

def lane_parts(p):
    p(f"""v_and_b32 v2, 31, v{V_LANE}
    v_lshrrev_b32 v3, 5, v{V_LANE}
    v_bfe_u32 v4, v{V_LANE}, 2, 2
    v_bfe_u32 v5, v{V_LANE}, 4, 1
    v_and_b32 v6, 3, v{V_LANE}
    v_lshrrev_b32 v7, 3, v{V_LANE}
    v_lshrrev_b32 v8, 4, v{V_LANE}""")

def act_read_addrs(p, wins, s_rowbase):
    bases = sorted(wins)
    p(f"v_bfe_u32 v9, v2, 1, 3")
    for ks in range(4):
        r = wins[bases[-1]][ks]
        p(f"v_add_u32 v{r}, {2*ks}, v3\nv_xor_b32 v{r}, v{r}, v9\nv_lshlrev_b32 v{r}, 4, v{r}")
        p(f"v_lshl_add_u32 v{r}, v2, 7, v{r}\nv_add_u32 v{r}, s{s_rowbase}, v{r}")
        for b in bases:
            if b or wins[b][ks] != r: p(f"v_add_u32 v{wins[b][ks]}, {b}, v{r}")

def w_read_addrs(p, wins, s_ft0):
    bases = sorted(wins)
    p("v_lshlrev_b32 v9, 3, v3\nv_add_u32 v9, v9, v4\nv_lshlrev_b32 v9, 8, v9")
    p("v_lshl_add_u32 v9, v5, 5, v9\nv_lshl_add_u32 v9, v6, 3, v9")
    for f, r in enumerate(wins[bases[-1]]):
        if s_ft0 is None: p(f"v_xor_b32 v{r}, {f}, v4")
        else: p(f"s_add_u32 s52, s{s_ft0}, {f}\nv_xor_b32 v{r}, s52, v4")
        p(f"v_lshl_add_u32 v{r}, v{r}, 6, v9")
        for b in bases:
            if b or wins[b][f] != r: p(f"v_add_u32 v{wins[b][f]}, {b}, v{r}")

def act_dma_addrs(p, regs, s_row0, stride, rowmap=None):
    p(f"s_mov_b32 s53, {stride}")
    for j, r in enumerate(regs):
        s0 = s_row0[j] if isinstance(s_row0, list) else (s_row0, 8 * j)
        p(f"v_add_u32 v9, {(4*j) & 7}, v8\nv_and_b32 v9, 7, v9\nv_and_b32 v{r}, 7, v{V_LANE}\nv_xor_b32 v9, v9, v{r}\nv_lshlrev_b32 v9, 4, v9")
        p(f"s_add_u32 s52, s{s0[0]}, {s0[1]}\nv_add_u32 v{r}, s52, v7\nv_mul_lo_u32 v{r}, v{r}, s53\nv_add_u32 v{r}, v{r}, v9")
        if j & 3: p(f"v_subrev_u32 v{r}, {1024*(j&3)}, v{r}")

def w_dma_addrs(p, regs, s_row0, stride):
    p(f"s_mov_b32 s53, {stride}")
    p(f"v_lshlrev_b32 v9, 2, v8\nv_and_b32 v{regs[0]}, 15, v{V_LANE}\nv_xor_b32 v9, v9, v{regs[0]}\nv_lshlrev_b32 v9, 4, v9")
    for j, r in enumerate(regs):
        p(f"s_add_u32 s52, s{s_row0}, {4*j}\nv_add_u32 v{r}, s52, v8\nv_mul_lo_u32 v{r}, v{r}, s53\nv_add_u32 v{r}, v{r}, v9")
        if j & 3: p(f"v_subrev_u32 v{r}, {1024*(j&3)}, v{r}")

def finish(lines, pre):
    allv = resolve_vm(pre + lines)[len(pre):]
    if os.environ.get('NODMA'): allv = [x for x in allv if I(x).kind != 'dma' and 'm0' not in x and 'vmcnt' not in x]
    if os.environ.get('NOVMW'): allv = [x for x in allv if 'vmcnt' not in x]
    if os.environ.get('NOBAR'): allv = [x for x in allv if 's_barrier' not in x]
    if os.environ.get('NOLDS'): allv = [x for x in allv if I(x).kind != 'dsr']
    body, q = auto_lgkm(allv)
    assert not q, q
    return body

def split_at_mfma(lines, n):
    c = 0
    for i, x in enumerate(lines):
        if I(x).kind == "mfma":
            if c == n:
                while I(lines[i - 1]).kind == "wait": i -= 1
                return lines[:i], lines[i:]
            c += 1
    raise ValueError

def groups(lines, n=1):
    return [[x] for x in lines]

KV_VA = {0: [10, 11, 12, 13], 65536: [14, 15, 16, 17]}
KV_VW = {98304: [18, 19, 20, 21]}
KV_ACC, KV_P = 64, 192
def kv_segs():
    common_ = dict(mt=2, nt=4, nst=8, abase=None, acc=lambda ti, fi: vr(KV_ACC + (ti * 4 + fi) * 16, 16),
                   vA=KV_VA, vW=KV_VW, fa=lambda k, ti: ar((k * 2 + ti) * 4, 4),
                   fw=lambda k, fi: vr(32 + (k % 2) * 16 + 4 * fi, 4), sM0A=56, sM0W=57, stepW=64 * 8192, vDW=[26, 27, 28, 29])
    c = dict(common_); c.update(abase=lambda st: (st % 3) * 32768, wbase=lambda st: 98304 + (st % 3) * 16384)
    k = Seg("kk", orient=lambda ti, fi: 'FT', vDA=[(22, 58), (23, 58), (24, 58), (25, 58), (22, 60), (23, 60), (24, 60), (25, 60)],
            srdA=SRD1, srdW=SRD2, sOffW=59, **c)
    c = dict(common_); c.update(wbase=lambda st: 98304 + ((st + 8) % 3) * 16384)
    v = Seg("kv", orient=lambda ti, fi: 'TF', read_act=False, srdW=SRD3, sOffW=61, **c)
    return k, v

def aq_seg(role):
    return Seg("aq", mt=2, nt=2, nst=9, abase=lambda st: (st % 5) * 32768, wbase=lambda st: (st % 5) * 32768 + 16384,
               acc=lambda ti, fi: ar(64 + (ti * 2 + fi) * 16, 16), orient=lambda ti, fi: role,
               vA={0: [192, 193, 194, 195], 65536: [196, 197, 198, 199], 131072: [200, 201, 202, 203]},
               vW={0: [204, 205], 65536: [206, 207], 131072: [208, 209]},
               fa=lambda k, ti: ar((k % 3) * 16 + 4 * ti, 4), fw=lambda k, fi: ar((k % 3) * 16 + 8 + 4 * fi, 4),
               vDA=[10, 11, 12, 13], vDW=[14, 15, 16, 17], sM0A=66, sM0W=67, sOffA=68, sOffW=69, stepW=64 * 3456,
               srdA=SRD1, srdW=SRD2, dist=2)

S_RB, S_CB = 62, 63
def pack_K():
    out = {}
    for ti in range(2):
        for fi in range(4):
            t = ti * 4 + fi
            out[(ti, fi)] = [f"v_cvt_pk_bf16_f32 v{KV_P + t*8 + e}, v{KV_ACC + t*16 + 2*e}, v{KV_ACC + t*16 + 2*e + 1}" for e in range(8)]
    return out
def store_K():
    out = []
    for ti in range(2):
        for half in range(2):
            for q in range(4):
                blk = half * 4 + q; fi, s = blk >> 1, blk & 1
                pre = [f"s_add_u32 s65, s64, {ti*8192 + half*4096}"] if q == 0 else []
                out.append(pre + [f"buffer_store_dwordx4 {vr(KV_P + (ti*4+fi)*8 + 4*s, 4)}, v30, {sr(SRD_WS,4)}, s65 offen offset:{q*1024} {ST}"])
    return out
def epi_V():
    out = []
    for ti in range(2):
        for fi in range(4):
            a0 = KV_ACC + (ti * 4 + fi) * 16
            for e in range(8): out.append([f"v_cvt_pk_bf16_f32 v{a0+e}, v{a0+2*e}, v{a0+2*e+1}"])
            for s in range(2):
                out.append([f"s_add_u32 s65, s64, {WS_VB + ti*8192 + s*4096}",
                            f"buffer_store_dwordx4 {vr(a0 + 4*s, 4)}, v30, {sr(SRD_WS,4)}, s65 offen offset:{fi*1024} {ST}"])
    return out

def aq_setup_scalar(p):
    p(f"s_cmp_ge_u32 s{S_J}, 14\ns_cselect_b32 s52, 1, 0\ns_cselect_b32 s53, 14, 0")
    p(f"s_lshl_b32 s{S_RB}, s{S_XCD}, 1\ns_add_u32 s{S_RB}, s{S_RB}, s52\ns_sub_u32 s{S_CB}, s{S_J}, s53")
    p(f"s_lshl_b32 s66, s{S_WAVE}, 12\ns_mov_b32 s67, s66")
    p(f"s_mul_i32 s68, s{S_RB}, {128*1152}\ns_lshl_b32 s69, s{S_CB}, 8")

def aq_common(p):
    p(f"s_lshl_b32 s64, s{S_RB}, 2\ns_and_b32 s52, s{S_WAVE}, 2\ns_add_u32 s64, s64, s52")
    p(f"s_and_b32 s55, s{S_WAVE}, 1\ns_lshl_b32 s65, s{S_CB}, 7\ns_lshl_b32 s52, s55, 6\ns_add_u32 s65, s65, s52")

def phase1(p, after):
    lane_parts(p)
    mk_srd(p, SRD1, P_CKV, 2048 * 1024)
    mk_srd(p, SRD2, P_WUK, 512 * 8192)
    mk_srd(p, SRD3, P_WUV, 512 * 8192)
    K, V = kv_segs()
    p(f"s_lshl_b32 s54, s{S_WAVE}, 6")
    act_dma_addrs(p, [22, 23, 24, 25], 54, 1024)
    p(f"s_lshl_b32 s54, s{S_WAVE}, 4")
    w_dma_addrs(p, [26, 27, 28, 29], 54, 8192)
    p(f"s_lshl_b32 s56, s{S_WAVE}, 13\ns_lshl_b32 s57, s{S_WAVE}, 12")
    p(f"s_lshl_b32 s58, s{S_BLK}, 18\ns_add_u32 s60, s58, {32*1024}\ns_lshl_b32 s59, s{S_HEAD}, 8\ns_mov_b32 s61, s59")
    pre = []
    for st in range(3):
        for g in K.dma(st): pre += g
    p.ext(pre)
    p(f"s_lshl_b32 s54, s{S_WAVE}, 13")
    act_read_addrs(p, KV_VA, 54)
    w_read_addrs(p, KV_VW, None)
    p(f"v_lshlrev_b32 v30, 4, v{V_LANE}")
    p(f"s_lshl_b32 s64, s{S_HEAD}, 19\ns_lshl_b32 s52, s{S_BLK}, 16\ns_add_u32 s64, s64, s52")
    p(f"s_lshl_b32 s52, s{S_WAVE}, 14\ns_add_u32 s64, s64, s52")
    aq_setup_scalar(p)
    PFM = os.environ.get('PF', '')
    if 'w' in PFM:
        q = Prog()
        q(f"v_and_b32 v9, 15, v{V_LANE}\nv_lshlrev_b32 v9, 10, v9\nv_bfe_u32 v31, v{V_LANE}, 4, 1\nv_lshl_add_u32 v9, v31, 24, v9")
        q(f"buffer_load_dword v31, v9, {sr(SRD_WS,4)}, s64 offen")
        p.ext(q.l); pre += [q.l[-1]]
    if 't' in PFM:
        q = Prog()
        q(f"v_lshlrev_b32 v9, 20, v{V_LANE}\nv_add_u32 v9, {32*MB}, v9")
        q(f"buffer_load_dword v31, v9, {sr(SRD_WS,4)}, 0 offen")
        p.ext(q.l); pre += [q.l[-1]]
    stamp(p, 1)
    def kv_lines(tail):
        segs = [K, V] + ([tail] if tail else [])
        issue = {gi: [gi + 3] for gi in range(13)}
        lg = {gi: True for gi in range(16)}
        fill = {}
        for i, g in enumerate(store_K()):
            if not NOSTORE: fill.setdefault(34 + (i * KSP) // 2 if KSP > 1 else 34 + i, []).append(g)
        if tail:
            q = Prog()
            mk_srd(q, SRD1, P_AX, 2048 * 1152); mk_srd(q, SRD2, P_AWQKV, 576 * 3456)
            q(f"s_lshl_b32 s54, s{S_WAVE}, 5"); act_dma_addrs(q, tail.vDA, 54, 1152)
            q(f"s_lshl_b32 s54, s{S_WAVE}, 4"); w_dma_addrs(q, tail.vDW, 54, 3456)
            fill[33] = groups(q.l)
            q = Prog()
            q(f"s_lshr_b32 s54, s{S_WAVE}, 1\ns_lshl_b32 s54, s54, 13"); act_read_addrs(q, tail.vA, 54)
            q(f"s_and_b32 s55, s{S_WAVE}, 1\ns_lshl_b32 s55, s55, 1"); w_read_addrs(q, tail.vW, 55)
            fill.setdefault(58, []).extend(groups(q.l))
            issue[10] = issue[10] + [16]; issue[11] = issue[11] + [17]; issue[12] = issue[12] + [18]
            issue[16] = [19, 20]
            for st in range(1, 9):
                if st + 4 < 9: issue[16 + st] = [16 + st + 4]
            lg[15] = False
            fill[65] = [g for g in epi_V() if not (NOSTORE and len(g) > 1)]
        hooks = {}
        if STAMPS:
            for n, gk in enumerate((16, 32, 48)):
                q = Prog(); stamp(q, 4 + n); hooks[gk] = q.l
            q = Prog(); stamp(q, 7); hooks[80] = q.l
        lines = pipeline(segs, issue, lg, fillers=fill, hooks=hooks)
        pk = pack_K()
        out = []; nm = 0; order = V.morder()
        for x in lines:
            if not x.startswith("VMWAIT") and I(x).kind == "mfma":
                j = nm - 256
                if j == 0: out += ["s_nop 3"] + pk[order[0]] + ["s_nop 0"]
                out.append(x)
                if 0 <= j < 7: pend = pk[order[j + 1]]
                else: pend = None
                nm += 1
                out.append(("PK", pend))
            else: out.append(x)
        res = []; hold = None
        for x in out:
            if isinstance(x, tuple):
                hold = x[1]; continue
            if hold and not x.startswith("VMWAIT") and I(x).kind == "mfma":
                res += hold + ["s_nop 0"]; hold = None
            res.append(x)
        return res
    h1, tFT = split_at_mfma(finish(kv_lines(aq_seg('FT')), pre), 512)
    h2, tTF = split_at_mfma(finish(kv_lines(aq_seg('TF')), pre), 512)
    assert h1 == h2
    p.ext(h1)
    stamp(p, 2)
    p(f"s_cmp_ge_u32 s{S_J}, 28\ns_cbranch_scc1 L_transp")
    p(f"s_cmp_ge_u32 s{S_CB}, 9\ns_cbranch_scc1 L_aq_V")
    p.ext(tFT)
    stamp(p, 3)
    p("s_nop 15")
    aq_common(p)
    for t in range(64): p(f"v_accvgpr_read_b32 v{128+t}, a{64+t}")
    scale = f32hex(18 ** -0.5 * LOG2E)
    p(f"s_mov_b32 s70, 3641\ns_mov_b32 s71, 0x80000000")
    p(f"v_lshlrev_b32 v40, 4, v2\nv_lshlrev_b32 v41, 2, v2\nv_lshlrev_b32 v43, 2, v3")
    for fi in range(2):
        p(f"s_add_u32 s66, s65, {32*fi}\ns_cmp_lt_u32 s66, 576")
        p(f"s_mov_b32 s67, {WS_AH}\ns_mov_b32 s68, {AH_STRIDE}\ns_cmov_b32 s67, {WS_QA}\ns_cmov_b32 s68, {QA_STRIDE}\ns_cselect_b32 s69, {scale}, 1.0\ns_cselect_b32 s52, 0, 576")
        p("s_sub_u32 s66, s66, s52")
        for ti in range(2):
            a0 = 128 + (ti * 2 + fi) * 16
            for e in range(16): p(f"v_mul_f32 v{a0+e}, s69, v{a0+e}")
            for e in range(8): p(f"v_cvt_pk_bf16_f32 v{a0+e}, v{a0+2*e}, v{a0+2*e+1}")
        for j in range(4):
            p(f"s_add_u32 s52, s66, {8*j}\nv_add_u32 v44, s52, v43")
            p("v_mul_lo_u32 v45, v44, s70\nv_lshrrev_b32 v45, 16, v45")
            p("v_mul_u32_u24 v46, 18, v45\nv_sub_u32 v46, v44, v46")
            p("v_mul_lo_u32 v45, v45, s68")
            p("v_bfe_u32 v47, v46, 2, 1\nv_lshlrev_b32 v47, 9, v47\nv_add3_u32 v47, v47, v45, v40")
            p("v_bfe_u32 v48, v46, 3, 1\nv_lshl_add_u32 v47, v48, 3, v47")
            p("v_cmp_eq_u32 vcc, 16, v46\nv_mov_b32 v49, s71\nv_add_u32 v50, v45, v41\nv_cndmask_b32 v47, v47, v49, vcc\nv_cndmask_b32 v50, v49, v50, vcc")
            p("v_add_u32 v51, s68, v50")
            for ti in range(2):
                a0 = 128 + (ti * 2 + fi) * 16
                p(f"s_add_u32 s52, s64, {ti}\ns_lshl_b32 s53, s52, 10\ns_add_u32 s53, s53, s67")
                p(f"buffer_store_dwordx2 {vr(a0+2*j,2)}, v47, {sr(SRD_WS,4)}, s53 offen {ST}")
            p(f"s_cbranch_vccz L_aq_np{fi}{j}")
            for ti in range(2):
                a0 = 128 + (ti * 2 + fi) * 16
                p(f"s_add_u32 s52, s64, {ti}\ns_lshl_b32 s53, s52, 7\ns_add_u32 s53, s53, s67\ns_add_u32 s53, s53, 65536")
                p(f"buffer_store_dword v{a0+2*j}, v50, {sr(SRD_WS,4)}, s53 offen {ST}")
                p(f"buffer_store_dword v{a0+2*j+1}, v51, {sr(SRD_WS,4)}, s53 offen {ST}")
            p.label(f"L_aq_np{fi}{j}")
    p(f"s_branch {after}")
    p.label("L_aq_V")
    p.ext(tTF)
    stamp(p, 3)
    p("s_nop 15")
    aq_common(p)
    for t in range(64): p(f"v_accvgpr_read_b32 v{128+t}, a{64+t}")
    p(f"s_mov_b32 s70, 3641\ns_mov_b32 s68, {AH_STRIDE}")
    for fi in range(2):
        p(f"s_add_u32 s66, s65, {32*fi}\ns_sub_u32 s66, s66, 1152\ns_cmp_ge_u32 s66, 576\ns_cbranch_scc1 L_aq_vskip{fi}")
        p("v_add_u32 v44, s66, v2\nv_mul_lo_u32 v45, v44, s70\nv_lshrrev_b32 v45, 16, v45")
        p("v_mul_u32_u24 v46, 18, v45\nv_sub_u32 v46, v44, v46\nv_mul_lo_u32 v45, v45, s68")
        p("v_mul_u32_u24 v47, 320, v3\nv_lshlrev_b32 v46, 4, v46\nv_add3_u32 v47, v47, v46, v45")
        for ti in range(2):
            a0 = 128 + (ti * 2 + fi) * 16
            for e in range(8): p(f"v_cvt_pk_bf16_f32 v{a0+e}, v{a0+2*e}, v{a0+2*e+1}")
            p(f"s_add_u32 s52, s64, {ti}\ns_mul_i32 s53, s52, 1280\ns_add_u32 s53, s53, {WS_AH + AH_V}")
            p(f"buffer_store_dwordx4 {vr(a0,4)}, v47, {sr(SRD_WS,4)}, s53 offen {ST}")
            p(f"buffer_store_dwordx4 {vr(a0+4,4)}, v47, {sr(SRD_WS,4)}, s53 offen offset:640 {ST}")
        p.label(f"L_aq_vskip{fi}")
    p(f"s_cmp_lg_u32 s{S_CB}, 9\ns_cbranch_scc1 {after}")
    p(f"v_and_b32 v44, 1, v{V_LANE}\nv_bfe_u32 v45, v{V_LANE}, 1, 1\nv_bfe_u32 v46, v{V_LANE}, 2, 3")
    p("v_mul_u32_u24 v45, 320, v45\nv_mul_u32_u24 v46, 640, v46\nv_lshlrev_b32 v47, 4, v44\nv_add3_u32 v47, v47, v45, v46")
    p("v_mul_lo_u32 v45, v3, s68\nv_add_u32 v47, v47, v45")
    p("v_cmp_eq_u32 vcc, 0, v44\nv_mov_b32 v48, 0x3f803f80\ns_nop 0\nv_cndmask_b32 v52, 0, v48, vcc\nv_mov_b32 v53, v52\nv_mov_b32 v54, v52\nv_mov_b32 v55, v52")
    p(f"s_mul_i32 s53, s{S_RB}, {8*640}\ns_mul_i32 s52, s{S_WAVE}, {8*AH_STRIDE}\ns_add_u32 s53, s53, s52\ns_add_u32 s53, s53, {WS_AH + AH_V + 18*16}")
    for it in range(4):
        p(f"buffer_store_dwordx4 v[52:55], v47, {sr(SRD_WS,4)}, s53 offen {ST}\ns_add_u32 s53, s53, {2*AH_STRIDE}")
    p(f"s_branch {after}")
    p.label("L_transp")
    p("s_nop 15\ns_waitcnt vmcnt(0) lgkmcnt(0)\ns_barrier")
    for g in epi_V(): p.ext(g)
    mk_srd(p, SRD1, P_BWO, 4096 * 1152)
    mk_srd(p, SRD2, P_AWO, 576 * 1152)
    p(f"s_lshl_b32 s62, s{S_XCD}, 2\ns_add_u32 s62, s62, s{S_J}\ns_sub_u32 s62, s62, 28\ns_lshl_b32 s62, s62, 2\ns_add_u32 s62, s62, s{S_WAVE}")
    p(f"s_mul_i32 s56, s{S_WAVE}, 36864")
    p(f"v_lshlrev_b32 v42, 4, v{V_LANE}")
    p("v_lshlrev_b32 v9, 2, v3\nv_add_u32 v9, v9, v4\nv_mul_u32_u24 v9, 1152, v9\nv_lshl_add_u32 v9, v5, 5, v9\nv_lshl_add_u32 v9, v6, 3, v9\nv_add_u32 v10, s56, v9")
    def lin_dma(srd, soff, slot):
        for n_ in range(18):
            if n_ % 4 == 0:
                p(f"s_add_u32 m0, s56, {slot*18432 + n_*1024}\ns_add_u32 s53, s{soff}, {n_*1024}")
            p(f"buffer_load_dwordx4 v42, {sr(srd,4)}, s53 offen offset:{(n_%4)*1024} lds")
    def tr_out(slot, st):
        p(f"s_mul_i32 s53, s{st}, 18432\ns_add_u32 s53, s53, {WS_WOB}")
        for mt in range(18):
            for u in range(2):
                p(f"ds_read_b64_tr_b16 {vr(64+4*mt+2*u,2)}, v10 offset:{slot*18432 + u*9216 + mt*64}")
            if mt % 6 == 5:
                p("s_waitcnt lgkmcnt(0)")
        for mt in range(18):
            if mt % 4 == 0 and mt: p("s_add_u32 s53, s53, 4096")
            p(f"buffer_store_dwordx4 {vr(64+4*mt,4)}, v42, {sr(SRD_WS,4)}, s53 offen offset:{(mt%4)*1024} {ST}")
    p("s_mul_i32 s63, s62, 18432"); lin_dma(SRD1, 63, 0)
    p(f"s_add_u32 s63, s63, {128*18432}"); lin_dma(SRD1, 63, 1)
    p("s_waitcnt vmcnt(18)"); tr_out(0, 62)
    p("s_add_u32 s62, s62, 128\ns_waitcnt vmcnt(18)"); tr_out(1, 62)
    p("s_add_u32 s62, s62, 128")
    p(f"s_cmp_ge_u32 s62, 292\ns_cbranch_scc1 {after}")
    p("s_cmp_ge_u32 s62, 288\ns_cbranch_scc1 L_tr_sp")
    p(f"s_sub_u32 s63, s62, 256\ns_mul_i32 s63, s63, {18*1152}"); lin_dma(SRD2, 63, 0)
    p("s_branch L_tr_fin")
    p.label("L_tr_sp")
    p(f"s_sub_u32 s63, s62, 288\ns_mul_i32 s63, s63, {8*18*1152}")
    for x in range(8):
        hd = ((x >> 1) & 1) * 4 + ((x >> 2) & 1) * 2 + (x & 1)
        p(f"s_add_u32 m0, s56, {x*2304}\ns_add_u32 s53, s63, {(18*hd+16)*1152}")
        p(f"buffer_load_dwordx4 v42, {sr(SRD2,4)}, s53 offen lds\nbuffer_load_dwordx4 v42, {sr(SRD2,4)}, s53 offen offset:1024 lds")
        p(f"s_mov_b64 exec, 0xffff\nbuffer_load_dwordx4 v42, {sr(SRD2,4)}, s53 offen offset:2048 lds\ns_mov_b64 exec, -1")
    p.label("L_tr_fin")
    p("s_waitcnt vmcnt(0)"); tr_out(0, 62)
```

```python
from phase1 import *
import phase1

V_B = [10, 11]
V_L16 = 14
V_DK, V_DV, V_DKS, V_DVS = 12, 13, 15, 16
V_LA, V_LB = 17, 18
V_NA, V_NB = 20, 21
V_TD, V_T, V_T2, V_NEG = 22, 23, 24, 25
CA, CB = 32, 48
def SBUF(p, x): return 64 + p * 32 + x * 16
def PBUF(p, x): return 128 + p * 16 + x * 8
QA_, QB_ = 192, 224
OA, OB = 0, 64
RING = 128
NR = 16
DIST = 8
S_X = 56
S_Y = [57, 58]
S_SO = 59
S_BIG0, S_BIG7, S_CNT, S_HB = 60, 61, 62, 63
MASKS = [66, 68, 70, 72]
NEGBIG = "0xf149f2ca"

def ring(n): return ar(RING + 4 * (n % NR), 4)

def mask_upd(C, vN, c, sbig=None, vT=V_T):
    out = []
    if sbig is None: out.append([f"v_subrev_u32 v{vT}, {32*c}, v{V_TD}"])
    else: out.append([f"s_sub_u32 s52, s{sbig}, {32*c}", f"v_add_u32 v{vT}, s52, v{V_TD}"])
    cm = []; cn = []
    for r in range(16):
        cr = 8 * (r >> 2) + (r & 3); m = MASKS[r % 4]
        cm.append(f"v_cmp_gt_i32 {sr(m,2)}, {cr}, v{vT}")
        cn.append(f"v_cndmask_b32 v{C+r}, v{vN}, v{V_NEG}, {sr(m,2)}")
    seq = cm[:3]
    for r in range(16):
        if r + 3 < 16: seq.append(cm[r + 3])
        elif r >= 14: pass
        seq.append(cn[r])
    seq = cm[:3]
    for r in range(16):
        if r + 3 < 16: seq.append(cm[r + 3])
        seq.append(cn[r])
    return out + [[x] for x in seq]

def frag_list(qk, pv, pvoff=8192, kb=None, vb=None):
    fr = []; use = []
    n = 0
    if qk == 'd':
        for f in range(8):
            fr.append((len(use), kb, f * 1024)); use += [n, n]; n += 1
    elif qk == 's':
        for f in range(8):
            for h in range(2):
                fr.append((len(use), kb, h * 16384 + f * 1024)); use.append(n); n += 1
    if pv == 'd':
        for f in range(8):
            fr.append((len(use), vb, pvoff + f * 1024)); use += [n, n]; n += 1
    elif pv == 's':
        for h in range(2):
            for f in range(8):
                fr.append((len(use), vb, pvoff + h * 16384 + f * 1024)); use.append(n); n += 1
    return fr, use

class Slot:
    def __init__(s, par, qk, sm, pv, kb, vb, pvoff=8192, dma=None, upd=None, vmn=None, first_pv=False, ring0=0, adv=16384, extra=None):
        s.__dict__.update(locals()); del s.__dict__['s']
        s.fr, s.use = frag_list(qk, pv, pvoff, kb, vb)
    def rd(s, k):
        m, b, imm = s.fr[k]
        return f"ds_read_b128 {ring(s.ring0 + k)}, v{b} offset:{imm}"
    def head_reads(s):
        return [s.rd(k) for k in range(len(s.fr)) if s.fr[k][0] < DIST]
    def mfmas(s):
        out = []; i = 0
        p = s.par
        if s.qk:
            for f in range(8):
                for x in range(2):
                    q = (QA_ if x == 0 else QB_) if s.qk == 'd' else QB_
                    d = vr(SBUF(1 - p, x), 16)
                    c = vr(CA if x == 0 else CB, 16) if f == 0 else d
                    out.append(mfma(d, ring(s.ring0 + s.use[i]), vr(q + 4 * f, 4), c)); i += 1
        if s.pv == 'd':
            for f in range(8):
                st, dt = f >> 2, f & 3
                for x in range(2):
                    d = ar((OA if x == 0 else OB) + 16 * dt, 16)
                    c = "0" if (s.first_pv and st == 0) else d
                    out.append(mfma(d, ring(s.ring0 + s.use[i]), vr(PBUF(1 - p, x) + 4 * st, 4), c)); i += 1
        elif s.pv == 's':
            for h in range(2):
                for f in range(8):
                    st, dt = f >> 2, f & 3
                    d = ar(OB + 16 * dt, 16)
                    out.append(mfma(d, ring(s.ring0 + s.use[i]), vr(PBUF(1 - p, h) + 4 * st, 4), d)); i += 1
        return out
    def softmax(s):
        if not s.sm: return []
        p = s.par
        el = [(x, r) for x in range(2) for r in range(16)]
        def S(e): return SBUF(p, el[e][0]) + el[e][1]
        def L(e): return V_LB if (s.sm == 's' or el[e][0] == 1) else V_LA
        g = []
        for e in range(32):
            it = [f"v_exp_f32 v{S(e)}, v{S(e)}"]
            if e >= 1: it.append(f"v_add_f32 v{L(e-1)}, v{L(e-1)}, v{S(e-1)}")
            if e >= 2 and e % 2 == 0:
                k = e - 2
                it.append(f"v_cvt_pk_bf16_f32 v{PBUF(p, el[k][0]) + el[k][1] // 2}, v{S(k)}, v{S(k+1)}")
            g.append(it)
        g[-1] += [f"v_add_f32 v{L(31)}, v{L(31)}, v{S(31)}", f"v_cvt_pk_bf16_f32 v{PBUF(p, 1) + 7}, v{S(30)}, v{S(31)}"]
        return g
    def emit(s, nxt, tail=None):
        mf = s.mfmas(); M = len(mf)
        mem = [[] for _ in range(M)]; val = [[] for _ in range(M)]; end = [[] for _ in range(M)]
        rds = []
        for k, (m, b, imm) in enumerate(s.fr):
            rds.append((m - DIST, m))
            if m >= DIST: mem[m - DIST].append(s.rd(k))
        if nxt is not None:
            bar = M - DIST
            mem[bar] = [f"s_waitcnt vmcnt({s.vmn})", "s_barrier"] + mem[bar]
            for k, (m, b, imm) in enumerate(nxt.fr):
                if m < DIST:
                    mem[bar + m].append(nxt.rd(k)); rds.append((bar + m, M + m))
            mem[bar - 3] += [f"s_add_u32 s{S_X}, s{S_X}, {s.adv}"]
            mem[bar - 1] += [f"s_and_b32 s{S_X}, s{S_X}, 0x1ffff"]
            val[bar - 1].append(f"v_add_u32 v{V_B[1 - s.par]}, s{S_X}, v{V_L16}")
        for m in range(1, M, 4):
            need = [g for (g, c) in rds if m <= c <= m + 3]
            if not need: continue
            n = len([g for (g, c) in rds if max(need) < g < m])
            end[m - 1].append(f"s_waitcnt lgkmcnt({n})")
        g = 1
        for grp in (s.dma or []):
            if grp[0].startswith("s_") and "m0" in grp[0] and len(grp) == 1:
                mem[g - 1] += grp; continue
            mem[g] += grp
            if any(I(x).kind == "dma" for x in grp): assert g < M - DIST, g
            g += 2 if M > 16 else (1 if g % 2 else 1)
        sm = s.softmax()
        if sm:
            for e, it in enumerate(sm): val[e * M // 32] += it
        up = list(s.upd or []) + list(s.extra or [])
        if up:
            n = len(up); g0 = 3
            for j, it in enumerate(up):
                gg = g0 + j * (M - 1 - g0) // n
                if any(I(x).kind != "valu" for x in it):
                    mem[gg] += [x for x in it if I(x).kind != "valu"]; val[gg] = [x for x in it if I(x).kind == "valu"] + val[gg]
                else: val[gg] += it
        if tail: mem[M - 1] += tail
        return weave(mf, [mem[k] + val[k] + end[k] for k in range(M)])

def dma_dual(tag=""):
    y = S_Y[0]
    return [[f"s_mov_b32 m0, s{y}"],
            [f"buffer_load_dwordx4 v{V_DK}, {sr(SRD_WS,4)}, s{S_SO} offen lds"],
            [f"buffer_load_dwordx4 v{V_DK}, {sr(SRD_WS,4)}, s{S_SO} offen offset:1024 lds", f"s_add_u32 m0, s{y}, 8192"],
            [f"buffer_load_dwordx4 v{V_DV}, {sr(SRD_WS,4)}, s{S_SO} offen lds", f"s_add_u32 s{y}, s{y}, 16384"],
            [f"buffer_load_dwordx4 v{V_DV}, {sr(SRD_WS,4)}, s{S_SO} offen offset:1024 lds", f"s_and_b32 s{y}, s{y}, 0x1ffff"],
            [f"s_add_u32 s{S_SO}, s{S_SO}, 8192"]]
def dma_single(par, k=True, v=True):
    yc, yp = S_Y[par], S_Y[1 - par]
    out = []
    if v:
        out.append([f"s_add_u32 m0, s{yp}, 8192"])
        for j in range(4): out.append([f"buffer_load_dwordx4 v{V_DVS}, {sr(SRD_WS,4)}, s{S_SO} offen offset:{j*1024} lds"])
    if k:
        if v: out[-1].append(f"s_mov_b32 m0, s{yc}")
        else: out.append([f"s_mov_b32 m0, s{yc}"])
        for j in range(4): out.append([f"buffer_load_dwordx4 v{V_DKS}, {sr(SRD_WS,4)}, s{S_SO} offen offset:{j*1024} lds"])
    out[-1].append(f"s_add_u32 s{yp}, s{yc}, 32768")
    out.append([f"s_and_b32 s{yp}, s{yp}, 0x1ffff", f"s_add_u32 s{S_SO}, s{S_SO}, 16384"])
    return out

def lg(lines, pend):
    return lines

def qproj(p):
    lane_parts(p)
    mk_srd(p, SRD1, P_BX, 2048 * 1152)
    mk_srd(p, SRD2, P_WQ, 576 * 8192)
    p("s_mov_b32 s54, 0")
    act_dma_addrs(p, [22, 23, 24, 25], 54, 1152)
    p(f"s_lshl_b32 s54, s{S_WAVE}, 4")
    w_dma_addrs(p, [26, 27, 28, 29], 54, 8192)
    p(f"s_lshl_b32 s56, s{S_WAVE}, 13\ns_lshl_b32 s57, s{S_WAVE}, 12")
    p(f"s_lshl_b32 s52, s{S_BLK}, 2\ns_add_u32 s52, s52, s{S_WAVE}\ns_mul_i32 s58, s52, {32*1152}")
    p(f"s_sub_u32 s52, 15, s{S_BLK}\ns_lshl_b32 s52, s52, 2\ns_add_u32 s52, s52, s{S_WAVE}\ns_mul_i32 s60, s52, {32*1152}")
    p(f"s_lshl_b32 s59, s{S_HEAD}, 8")
    Q = Seg("q", mt=2, nt=4, nst=9, abase=lambda st: (st % 3) * 32768, wbase=lambda st: 98304 + (st % 3) * 16384,
            acc=lambda ti, fi: vr(64 + (ti * 4 + fi) * 16, 16), orient=lambda ti, fi: 'FT', vA=KV_VA, vW=KV_VW,
            fa=lambda k, ti: ar(((k % 2) * 2 + ti) * 4, 4), fw=lambda k, fi: vr(32 + (k % 2) * 16 + 4 * fi, 4),
            vDA=[(22, 58), (23, 58), (24, 58), (25, 58), (22, 60), (23, 60), (24, 60), (25, 60)], vDW=[26, 27, 28, 29],
            sM0A=56, sM0W=57, sOffW=59, stepW=64 * 8192, srdA=SRD1, srdW=SRD2)
    pre = []
    for st in range(3):
        for g in Q.dma(st): pre += g
    p.ext(pre)
    p(f"s_lshl_b32 s54, s{S_WAVE}, 13")
    act_read_addrs(p, KV_VA, 54)
    w_read_addrs(p, KV_VW, None)
    stamp(p, 1)
    lines = pipeline([Q], {gi: [gi + 3] for gi in range(6)}, {gi: True for gi in range(9)})
    p.ext(finish(lines, pre))

def attn_b(p):
    scale = f32hex(128 ** -0.5 * LOG2E)
    stamp(p, 2)
    p("s_barrier")
    p(f"v_lshlrev_b32 v{V_L16}, 4, v{V_LANE}")
    p(f"s_lshl_b32 s{S_HB}, s{S_HEAD}, 19\ns_lshl_b32 s52, s{S_WAVE}, 11\nv_add_u32 v9, s52, v{V_L16}")
    p(f"v_add_u32 v{V_DK}, 16384, v9\nv_add_u32 v{V_DV}, {WS_VB}, v9")
    p(f"s_add_u32 s{S_Y[0]}, s52, {6*16384}")
    for h in range(2):
        p(f"s_add_u32 m0, s{S_Y[0]}, {h*16384}\ns_add_u32 s53, s{S_HB}, {h*8192}")
        p(f"buffer_load_dwordx4 v9, {sr(SRD_WS,4)}, s53 offen lds\nbuffer_load_dwordx4 v9, {sr(SRD_WS,4)}, s53 offen offset:1024 lds")
    p(f"s_mov_b32 s{S_Y[0]}, s52\ns_mov_b32 s{S_SO}, s{S_HB}")
    qe = []
    p(f"s_mov_b32 s64, {scale}\ns_mov_b32 s65, {scale}")
    for t in range(8):
        a0 = 64 + t * 16
        for e in range(8): qe.append(f"v_pk_mul_f32 {vr(a0+2*e,2)}, {vr(a0+2*e,2)}, s[64:65]")
        for e in range(8): qe.append(f"v_cvt_pk_bf16_f32 v{QA_ + t*8 + e}, v{a0+2*e}, v{a0+2*e+1}")
    dm = []
    for w_ in range(5):
        for g in dma_dual(): dm.append(g)
    step = len(qe) // 20
    k = 0
    for g in dm:
        if g[0].startswith("s_mov_b32 m0"): p.ext(g + ["s_nop 0"]); continue
        p.ext(g)
        if any(I(x).kind == "dma" for x in g):
            p.ext(qe[k:k + step]); k += step
    p.ext(qe[k:])
    p(f"s_lshl_b32 s52, s{S_WAVE}, 12\nv_add_u32 v9, s52, v{V_L16}\nv_add_u32 v{V_DKS}, 32768, v9\nv_add_u32 v{V_DVS}, {WS_VB}, v9")
    p(f"s_lshl_b32 s52, s{S_WAVE}, 5\nv_lshlrev_b32 v9, 2, v3\nv_sub_u32 v9, v2, v9\nv_add_u32 v{V_TD}, s52, v9")
    p(f"v_mov_b32 v{V_NEG}, {NEGBIG}\nv_mov_b32 v{V_NA}, 0\nv_mov_b32 v{V_LA}, 0\nv_mov_b32 v{V_LB}, 0")
    p(f"s_cmp_eq_u32 s{S_BLK}, 0\ns_cselect_b32 s{S_BIG0}, 0, 1000\ns_cmp_eq_u32 s{S_BLK}, 7\ns_cselect_b32 s{S_BIG7}, 0, 1000")
    for g in mask_upd(CA, V_NA, 0, S_BIG0): p.ext(g)
    p(f"v_add_u32 v{V_B[1]}, {6*16384}, v{V_L16}\nv_add_u32 v{V_B[0]}, {7*16384}, v{V_L16}\ns_mov_b32 s{S_X}, {7*16384}")
    p("s_waitcnt vmcnt(20)\ns_barrier")
    stamp(p, 3)
    pro = [f"ds_read_b128 {ring(8 + f)}, v{V_B[1]} offset:{f*1024}" for f in range(8)]
    for f in range(8):
        pro.append(mfma(vr(SBUF(0, 0), 16), ring(8 + f), vr(QA_ + 4 * f, 4), vr(CA, 16) if f == 0 else vr(SBUF(0, 0), 16)))
        pro.append(mfma(vr(SBUF(0, 1), 16), ring(8 + f), vr(QB_ + 4 * f, 4), "0" if f == 0 else vr(SBUF(0, 1), 16)))
    D = lambda par, **kw: Slot(par, 'd', 'd', 'd', V_B[par], V_B[par], dma=dma_dual(), vmn=20, **kw)
    Z0 = Slot(0, 'd', 'd', None, V_B[0], None, dma=dma_dual(), vmn=20, upd=mask_upd(CA, V_NA, 2, S_BIG0))
    pro += Z0.head_reads()
    pro, _ = auto_lgkm(pro)
    p.ext(pro)
    p("s_nop 7\ns_nop 3")
    for x, vn in ((0, V_NA), (1, V_NB)):
        S = SBUF(0, x)
        p(f"v_max3_f32 v{vn}, v{S}, v{S+1}, v{S+2}")
        for r in range(3, 15, 2): p(f"v_max3_f32 v{vn}, v{vn}, v{S+r}, v{S+r+1}")
        p(f"v_max_f32 v{vn}, v{vn}, v{S+15}")
    p(f"v_mov_b32 v8, v{V_NA}\nv_mov_b32 v9, v{V_NB}\ns_nop 1\nv_permlane32_swap_b32 v{V_NA}, v8\nv_permlane32_swap_b32 v{V_NB}, v9\ns_nop 1")
    p(f"v_max_f32 v{V_NA}, v{V_NA}, v8\nv_max_f32 v{V_NB}, v{V_NB}, v9")
    p(f"v_sub_f32 v{V_NA}, 0, v{V_NA}\nv_sub_f32 v{V_NB}, 0, v{V_NB}")
    for x, vn in ((0, V_NA), (1, V_NB)):
        for r in range(16): p(f"v_add_f32 v{SBUF(0,x)+r}, v{SBUF(0,x)+r}, v{vn}")
    for g in mask_upd(CA, V_NA, 1, S_BIG0): p.ext(g)
    for r in range(16): p(f"v_mov_b32 v{CB+r}, v{V_NB}")
    p("s_waitcnt lgkmcnt(0)\ns_nop 0")
    Z1 = Slot(1, 'd', 'd', 'd', V_B[1], V_B[1], dma=dma_dual(), vmn=20, upd=mask_upd(CA, V_NA, 3, S_BIG0), first_pv=True, ring0=8)
    E, O_ = D(0), D(1)
    def R8(s): s.ring0 = 8; return s
    E, O_ = R8(E), R8(O_)
    p.ext(lg(Z0.emit(Z1), Z0.head_reads()))
    p.ext(lg(Z1.emit(E, tail=[f"s_lshl_b32 s{S_CNT}, s{S_BLK}, 1", f"s_cmp_eq_u32 s{S_BLK}, 0"]), Z1.head_reads()))
    p("s_cbranch_scc1 L_b_DL")
    p(f"s_cmp_eq_u32 s{S_BLK}, 1\ns_cbranch_scc1 L_b_DS0")
    p.label("L_b_dloop")
    body = lg(E.emit(O_), E.head_reads()) + lg(O_.emit(E, tail=[f"s_sub_u32 s{S_CNT}, s{S_CNT}, 1", f"s_cmp_gt_u32 s{S_CNT}, 2"]), O_.head_reads())
    check(body + body, "dloop")
    p.ext(body)
    p("s_cbranch_scc1 L_b_dloop")
    p.label("L_b_DS0")
    for c in range(4):
        s = R8(D(c & 1, upd=mask_upd(CA, V_NA, c)))
        p.ext(lg(s.emit(O_ if c % 2 == 0 else E), s.head_reads()))
    p.label("L_b_DL")
    stamp(p, 4)
    DL = R8(Slot(0, 'd', 'd', 'd', V_B[0], V_B[0], dma=dma_dual(), vmn=16,
                 upd=mask_upd(CA, V_NB, 0, S_BIG7) + mask_upd(CB, V_NB, 1, S_BIG7, V_T2)))
    fix = [[f"s_sub_u32 s{S_SO}, s{S_SO}, 16384"],
           [f"s_lshr_b32 s64, s{S_WAVE}, 1", "s_lshl_b32 s64, s64, 14"], [f"s_and_b32 s65, s{S_WAVE}, 1", "s_lshl_b32 s65, s65, 12"],
           ["s_add_u32 s64, s64, s65", f"s_lshl_b32 s65, s{S_WAVE}, 11"], ["s_sub_u32 s64, s64, s65", f"s_add_u32 s{S_Y[0]}, s{S_Y[0]}, s64"]]
    T1 = R8(Slot(1, 's', 'd', 'd', V_B[1], V_B[1], dma=fix, vmn=8, adv=32768,
                 upd=mask_upd(CA, V_NB, 2, S_BIG7) + mask_upd(CB, V_NB, 3, S_BIG7, V_T2)))
    T2 = Slot(0, 's', 's', 'd', V_B[0], V_B[1], pvoff=16384 + 8192, dma=dma_single(0, v=False), vmn=4, adv=32768, ring0=0)
    Sg = lambda par, **kw: R8(Slot(par, kw.pop('qk', 's'), 's', 's', V_B[par], V_B[1 - par], adv=32768, **kw))
    SO, SE = Sg(1, dma=dma_single(1), vmn=8), Sg(0, dma=dma_single(0), vmn=8)
    p.ext(lg(DL.emit(T1), DL.head_reads()))
    t1 = T1.emit(T2)
    p.ext(lg(t1, T1.head_reads()))
    p.ext(lg(T2.emit(SO, tail=[f"s_sub_u32 s{S_CNT}, 6, s{S_BLK}", f"s_cmp_eq_u32 s{S_BLK}, 7"]), T2.head_reads()))
    p("s_cbranch_scc1 L_b_S0e")
    p(f"s_cmp_eq_u32 s{S_BLK}, 6\ns_cbranch_scc1 L_b_P")
    p(f"s_lshl_b32 s{S_CNT}, s{S_CNT}, 1")
    p.label("L_b_sloop")
    body = lg(SO.emit(SE), SO.head_reads()) + lg(SE.emit(SO, tail=[f"s_sub_u32 s{S_CNT}, s{S_CNT}, 1", f"s_cmp_lg_u32 s{S_CNT}, 0"]), SE.head_reads())
    check(body + body, "sloop")
    p.ext(body)
    p("s_cbranch_scc1 L_b_sloop")
    p.label("L_b_P")
    S3 = Sg(0, dma=dma_single(0), vmn=8, upd=mask_upd(CA, V_NB, 0) + mask_upd(CB, V_NB, 1, None, V_T2))
    S2 = Sg(1, dma=dma_single(1, k=False), vmn=4, upd=mask_upd(CA, V_NB, 2) + mask_upd(CB, V_NB, 3, None, V_T2))
    S1 = Sg(0, dma=dma_single(0, k=False), vmn=4)
    S0 = Sg(1, qk=None, vmn=0)
    F = Slot(0, None, None, 's', None, V_B[1], ring0=8)
    p.ext(lg(SO.emit(S3), SO.head_reads()))
    p.ext(lg(S3.emit(S2), S3.head_reads()))
    p.ext(lg(S2.emit(S1), S2.head_reads()))
    p.ext(lg(S1.emit(S0), S1.head_reads()))
    p("s_branch L_b_S0")
    p.label("L_b_S0e")
    p("s_waitcnt lgkmcnt(0)")
    p.ext(S0.head_reads())
    p("s_waitcnt lgkmcnt(0)")
    p.label("L_b_S0")
    p.ext(lg(S0.emit(F), S0.head_reads()))
    p.ext(lg(F.emit(None), F.head_reads()))
    stamp(p, 5)
    p(f"v_mov_b32 v8, v{V_LA}\nv_mov_b32 v9, v{V_LB}\ns_nop 1\nv_permlane32_swap_b32 v{V_LA}, v8\nv_permlane32_swap_b32 v{V_LB}, v9\ns_nop 1")
    p(f"v_add_f32 v{V_LA}, v{V_LA}, v8\nv_add_f32 v{V_LB}, v{V_LB}, v9")
    p(f"s_mov_b32 s52, 0x4e800000\nv_cmp_nge_f32 vcc, s52, v{V_LA}\nv_cmp_nge_f32 s[66:67], s52, v{V_LB}\ns_nop 1\ns_or_b64 vcc, vcc, s[66:67]")
    p("s_cbranch_vccnz L_b_slow")
    p.label("L_b_epi")
    p(f"v_rcp_f32 v{V_LA}, v{V_LA}\nv_rcp_f32 v{V_LB}, v{V_LB}")
    p(f"s_lshl_b32 s53, s{S_HEAD}, 13\ns_add_u32 s53, s53, {WS_CTXB}")
    for x, (O, vl) in enumerate(((OA, V_LA), (OB, V_LB))):
        if x == 0: p(f"s_lshl_b32 s52, s{S_BLK}, 2")
        else: p(f"s_sub_u32 s52, 15, s{S_BLK}\ns_lshl_b32 s52, s52, 2")
        p(f"s_add_u32 s52, s52, s{S_WAVE}\ns_lshl_b32 s52, s52, 18\ns_add_u32 s54, s52, s53\ns_add_u32 s55, s54, 4096")
        for b in range(8):
            t = 64 + (b % 4) * 16 + x * 64
            for e in range(8): p(f"v_accvgpr_read_b32 v{t+e}, a{O + b*8 + e}")
            for e in range(8): p(f"v_mul_f32 v{t+e}, v{t+e}, v{vl}")
            for e in range(4): p(f"v_cvt_pk_bf16_f32 v{t+8+e}, v{t+2*e}, v{t+2*e+1}")
            p(f"buffer_store_dwordx4 {vr(t+8,4)}, v{V_L16}, {sr(SRD_WS,4)}, s{54 + (b>>2)} offen offset:{(b&3)*1024} {phase1.ST}")

def attn_b_slow(p):
    p.label("L_b_slow")
    p("s_nop 15")
    for x, (Q, O, vl) in enumerate(((QA_, OA, V_LA), (QB_, OB, V_LB))):
        if x == 0: p(f"s_mov_b32 s64, s{S_BLK}")
        else: p(f"s_sub_u32 s64, 15, s{S_BLK}")
        p(f"s_lshl_b32 s64, s64, 2\ns_add_u32 s65, s64, s{S_WAVE}\ns_add_u32 s65, s65, 1\ns_lshl_b32 s64, s64, 5")
        S = SBUF(0, 0); Pp = PBUF(0, 0)
        for ps in range(2):
            if ps == 0: p(f"v_mov_b32 v{V_NA}, 0\nv_mov_b32 v{V_NB}, {NEGBIG}")
            else:
                p(f"v_mov_b32 v8, v{V_NB}\ns_nop 1\nv_permlane32_swap_b32 v{V_NB}, v8\ns_nop 1\nv_max_f32 v{V_NB}, v{V_NB}, v8\nv_sub_f32 v{V_NA}, 0, v{V_NB}\nv_mov_b32 v{vl}, 0")
                for r in range(64): p(f"v_accvgpr_write_b32 a{O+r}, 0")
            p(f"s_mov_b32 s54, s{S_HB}\ns_mov_b32 s55, s64\ns_mov_b32 s{S_CNT}, s65")
            p.label(f"L_b_sl{x}{ps}")
            for f in range(8):
                p(f"s_add_u32 s53, s54, {f*1024}\nbuffer_load_dwordx4 {ring(f)}, v{V_L16}, {sr(SRD_WS,4)}, s53 offen")
            if ps:
                for f in range(8):
                    p(f"s_add_u32 s53, s54, {WS_VB + f*1024}\nbuffer_load_dwordx4 {ring(8+f)}, v{V_L16}, {sr(SRD_WS,4)}, s53 offen")
            for g in mask_upd(CA, V_NA, 0, 55): p.ext(g)
            p("s_waitcnt vmcnt(0)\ns_nop 0")
            for f in range(8): p(mfma(vr(S, 16), ring(f), vr(Q + 4 * f, 4), vr(CA, 16) if f == 0 else vr(S, 16)))
            p("s_nop 15")
            if ps == 0:
                for r in range(16): p(f"v_max_f32 v{V_NB}, v{V_NB}, v{S+r}")
            else:
                for r in range(16): p(f"v_exp_f32 v{S+r}, v{S+r}")
                p("s_nop 0")
                for r in range(16): p(f"v_add_f32 v{vl}, v{vl}, v{S+r}")
                for k in range(8): p(f"v_cvt_pk_bf16_f32 v{Pp+k}, v{S+2*k}, v{S+2*k+1}")
                p("s_nop 1")
                for f in range(8): p(mfma(ar(O + 16 * (f & 3), 16), ring(8 + f), vr(Pp + 4 * (f >> 2), 4), ar(O + 16 * (f & 3), 16)))
                p("s_nop 15")
            p(f"s_add_u32 s54, s54, 8192\ns_sub_u32 s55, s55, 32\ns_sub_u32 s{S_CNT}, s{S_CNT}, 1\ns_cmp_lg_u32 s{S_CNT}, 0\ns_cbranch_scc1 L_b_sl{x}{ps}")
        p(f"v_mov_b32 v8, v{vl}\ns_nop 1\nv_permlane32_swap_b32 v{vl}, v8\ns_nop 1\nv_add_f32 v{vl}, v{vl}, v8")
    p("s_branch L_b_epi")

def k2():
    p = Prog()
    entry(p, 256, "L_k2_end")
    stamp_begin(p)
    qproj(p)
    attn_b(p)
    stamp(p, 8)
    p("s_waitcnt vmcnt(0)")
    stamp_end(p, 1)
    p.label("L_k2_end")
    p("s_endpgm")
    attn_b_slow(p)
    return p
```

```python
from phase2 import *
import phase1

A_KM, A_K2, A_V = 10, 11, 12
A_L16 = 14
A_N = [16, 17]
def A_Q(x, ks): return 20 + x * 8 + ks * 4
def A_C(x): return 36 + 16 * x
def A_O(x): return 68 + 16 * x
def A_S(p, x): return 100 + p * 32 + x * 16
def A_P(p, x): return 164 + p * 16 + x * 8
def A_K(p, ks): return 196 + p * 8 + ks * 4
def A_VF(p, s): return 212 + p * 8 + s * 4
A_END = 228

def a_reads(u_rel, par_k, par_v, k=True, v=True, kofs=0, vofs=0):
    out = []
    if k:
        out.append(f"ds_read_b128 {vr(A_K(par_k,0),4)}, v{A_KM} offset:{kofs*1024}")
        out.append(f"ds_read_b32 v{A_K(par_k,1)}, v{A_K2} offset:{kofs*128}")
    if v:
        for s in range(2): out.append(f"ds_read_b128 {vr(A_VF(par_v,s),4)}, v{A_V} offset:{vofs*1280 + s*640}")
    return out

def a_slot(par, rel, qk=True, sm=True, pv=True, first_pv=False, rdk=True, rdv=True, extra=None):
    mf = []
    if qk:
        for ks in range(2):
            for x in range(2):
                d = vr(A_S(1 - par, x), 16)
                mf.append(mfma(d, vr(A_K(1 - par, ks), 4), vr(A_Q(x, ks), 4), vr(A_C(x), 16) if ks == 0 else d))
    if pv:
        for s in range(2):
            for x in range(2):
                d = vr(A_O(x), 16)
                mf.append(mfma(d, vr(A_VF(1 - par, s), 4), vr(A_P(1 - par, x) + 4 * s, 4), "0" if (first_pv and s == 0) else d))
    va = []
    if sm:
        el = [A_S(par, x) + r for x in range(2) for r in range(16)]
        for e in range(32):
            va.append(f"v_exp_f32 v{el[e]}, v{el[e]}")
            if e >= 3 and e % 2 == 1:
                k = e - 3
                va.append(f"v_cvt_pk_bf16_f32 v{A_P(par, k // 16) + (k % 16) // 2}, v{el[k]}, v{el[k+1]}")
        va.append("s_nop 0")
        va.append(f"v_cvt_pk_bf16_f32 v{A_P(par, 1) + 7}, v{el[30]}, v{el[31]}")
    M = len(mf)
    gaps = [[] for _ in range(M)]
    rd = a_reads(0, par, par, rdk, rdv, rel + 2, rel)
    for j, r in enumerate(rd): gaps[min(j // 2, M - 1)].append(r)
    if extra: gaps[M // 2] = extra + gaps[M // 2]
    for j, x in enumerate(va): gaps[j * M // len(va)].append(x)
    if rd: gaps[M - 1].append("s_waitcnt lgkmcnt(0)")
    return weave(mf, gaps)

def attn_a(p, lds_ready=False):
    p(f"v_and_b32 v2, 31, v{V_LANE}\nv_lshrrev_b32 v3, 5, v{V_LANE}\nv_lshlrev_b32 v{A_L16}, 4, v{V_LANE}")
    p(f"s_mul_i32 s56, s{S_HEAD}, {AH_STRIDE}\ns_add_u32 s56, s56, {WS_AH}")
    p(f"s_mul_i32 s57, s{S_HEAD}, {QA_STRIDE}\ns_add_u32 s57, s57, {WS_QA}")
    p(f"s_lshl_b32 s58, s{S_BLK}, 3\ns_lshl_b32 s52, s{S_WAVE}, 1\ns_add_u32 s58, s58, s52")
    p(f"s_lshl_b32 s52, s58, 10\ns_add_u32 s52, s52, s57\ns_lshl_b32 s53, s58, 7\ns_add_u32 s53, s53, s57\ns_add_u32 s53, s53, 65536")
    p("v_lshlrev_b32 v4, 2, v2\nv_lshlrev_b32 v5, 31, v3\nv_or_b32 v5, v5, v4")
    for x in range(2):
        p(f"buffer_load_dwordx4 {vr(A_Q(x,0),4)}, v{A_L16}, {sr(SRD_WS,4)}, s52 offen offset:{x*1024}")
        p(f"buffer_load_dword v{A_Q(x,1)}, v5, {sr(SRD_WS,4)}, s53 offen offset:{x*128}")
    p(f"s_mul_i32 s59, s{S_WAVE}, {38*1024}\ns_add_u32 s56, s56, s59")
    for j in range(38):
        if j % 4 == 0: p(f"s_add_u32 m0, s59, {j*1024}\ns_add_u32 s53, s56, {j*1024}")
        p(f"buffer_load_dwordx4 v{A_L16}, {sr(SRD_WS,4)}, s53 offen offset:{(j%4)*1024} lds")
    for x in range(2):
        for r in range(1, 4): p(f"v_mov_b32 v{A_Q(x,1)+r}, 0\nv_mov_b32 v{A_K(x,1)+r}, 0")
    p(f"v_mov_b32 v{A_KM}, v{A_L16}\nv_add_u32 v{A_K2}, 65536, v4")
    p(f"v_min_u32 v6, 19, v2\nv_lshlrev_b32 v6, 4, v6\nv_mul_u32_u24 v7, 320, v3\nv_add_u32 v6, v6, v7\nv_add_u32 v{A_V}, {AH_V}, v6")
    p("s_waitcnt vmcnt(0)\ns_barrier")
    stamp(p, 1)
    p.ext(a_reads(0, 0, 0, True, False, 0) + a_reads(0, 1, 0, True, False, 1) + ["s_waitcnt lgkmcnt(0)"])
    for ks in range(2):
        for x in range(2):
            d = vr(A_S(0, x), 16)
            p(mfma(d, vr(A_K(0, ks), 4), vr(A_Q(x, ks), 4), "0" if ks == 0 else d))
    p("s_nop 11")
    for x in range(2):
        S = A_S(0, x); vn = A_N[x]
        p(f"v_max3_f32 v{vn}, v{S}, v{S+1}, v{S+2}")
        for r in range(3, 15, 2): p(f"v_max3_f32 v{vn}, v{vn}, v{S+r}, v{S+r+1}")
        p(f"v_max_f32 v{vn}, v{vn}, v{S+15}")
    p(f"v_mov_b32 v8, v{A_N[0]}\nv_mov_b32 v9, v{A_N[1]}\ns_nop 1\nv_permlane32_swap_b32 v{A_N[0]}, v8\nv_permlane32_swap_b32 v{A_N[1]}, v9\ns_nop 1")
    p(f"v_max_f32 v{A_N[0]}, v{A_N[0]}, v8\nv_max_f32 v{A_N[1]}, v{A_N[1]}, v9")
    for x in range(2):
        for r in range(16): p(f"v_sub_f32 v{A_S(0,x)+r}, v{A_S(0,x)+r}, v{A_N[x]}\nv_sub_f32 v{A_C(x)+r}, 0, v{A_N[x]}")
    p("s_nop 1")
    p.ext(a_slot(0, 0, pv=False))
    p.ext(a_slot(1, 1, first_pv=True))
    p("s_mov_b32 s60, 15")
    p.label("L_a_loop")
    bump = [f"v_add_u32 v{A_KM}, 4096, v{A_KM}", f"v_add_u32 v{A_K2}, 512, v{A_K2}", f"v_add_u32 v{A_V}, 5120, v{A_V}"]
    body = a_slot(0, 2) + a_slot(1, 3) + a_slot(0, 4) + a_slot(1, 5, extra=["s_sub_u32 s60, s60, 1", "s_cmp_lg_u32 s60, 0"] + bump)
    check(body + body, "aloop")
    p.ext(body)
    p("s_cbranch_scc1 L_a_loop")
    p.ext(a_slot(0, 2, rdk=False))
    p.ext(a_slot(1, 3, qk=False, rdk=False))
    p("s_nop 0")
    p.ext(a_slot(0, 4, qk=False, sm=False, rdk=False, rdv=False))
    stamp(p, 2)
    p("s_nop 11")
    for x in range(2):
        p(f"v_mov_b32 v{A_N[x]}, v{A_O(x)+10}\nv_mov_b32 v{8+x}, v{A_O(x)+10}")
    p(f"s_nop 1\nv_permlane32_swap_b32 v{A_N[0]}, v8\nv_permlane32_swap_b32 v{A_N[1]}, v9\ns_nop 1")
    p(f"s_mov_b32 s52, 0x4e800000\nv_cmp_nge_f32 vcc, s52, v{A_N[0]}\nv_cmp_nge_f32 s[66:67], s52, v{A_N[1]}\ns_nop 1\ns_or_b64 vcc, vcc, s[66:67]")
    p("s_cbranch_vccnz L_a_slow")
    p.label("L_a_epi")
    p(f"v_rcp_f32 v{A_N[0]}, v{A_N[0]}\nv_rcp_f32 v{A_N[1]}, v{A_N[1]}")
    p(f"s_mul_i32 s52, s58, {36*1024}\ns_add_u32 s52, s52, {WS_CTXA}\ns_lshl_b32 s53, s{S_HEAD}, 10\ns_add_u32 s54, s52, s53")
    p(f"s_lshr_b32 s53, s{S_HEAD}, 3\ns_add_u32 s53, s53, 32\ns_lshl_b32 s53, s53, 10\ns_add_u32 s55, s52, s53")
    p(f"s_bfe_u32 s53, s{S_HEAD}, {2 | (1 << 16)}\ns_lshl_b32 s53, s53, 9\ns_add_u32 s55, s55, s53\ns_and_b32 s53, s{S_HEAD}, 3\ns_lshl_b32 s53, s53, 2\ns_add_u32 s55, s55, s53")
    p("v_lshlrev_b32 v4, 4, v2\nv_lshlrev_b32 v5, 31, v3\nv_or_b32 v5, v5, v4")
    for x in range(2):
        O = A_O(x)
        for r in range(10): p(f"v_mul_f32 v{O+r}, v{O+r}, v{A_N[x]}")
        for k in range(5): p(f"v_cvt_pk_bf16_f32 v{O+k}, v{O+2*k}, v{O+2*k+1}")
        p(f"buffer_store_dwordx4 {vr(O,4)}, v{A_L16}, {sr(SRD_WS,4)}, s54 offen {phase1.ST}")
        p(f"buffer_store_dword v{O+4}, v5, {sr(SRD_WS,4)}, s55 offen {phase1.ST}")
        if x == 0: p(f"s_add_u32 s54, s54, {36*1024}\ns_add_u32 s55, s55, {36*1024}")

def attn_a_slow(p):
    p.label("L_a_slow")
    for ps in range(2):
        p(f"v_mov_b32 v{A_KM}, v{A_L16}\nv_lshlrev_b32 v4, 2, v2\nv_add_u32 v{A_K2}, 65536, v4")
        p(f"v_min_u32 v6, 19, v2\nv_lshlrev_b32 v6, 4, v6\nv_mul_u32_u24 v7, 320, v3\nv_add_u32 v6, v6, v7\nv_add_u32 v{A_V}, {AH_V}, v6")
        if ps == 0:
            for x in range(2):
                p(f"v_mov_b32 v{A_N[x]}, {NEGBIG}")
                for r in range(16): p(f"v_mov_b32 v{A_C(x)+r}, 0")
        else:
            p(f"v_mov_b32 v8, v{A_N[0]}\nv_mov_b32 v9, v{A_N[1]}\ns_nop 1\nv_permlane32_swap_b32 v{A_N[0]}, v8\nv_permlane32_swap_b32 v{A_N[1]}, v9\ns_nop 1")
            p(f"v_max_f32 v{A_N[0]}, v{A_N[0]}, v8\nv_max_f32 v{A_N[1]}, v{A_N[1]}, v9")
            for x in range(2):
                for r in range(16): p(f"v_sub_f32 v{A_C(x)+r}, 0, v{A_N[x]}\nv_mov_b32 v{A_O(x)+r}, 0")
        p("s_mov_b32 s60, 64")
        p.label(f"L_a_sl{ps}")
        p.ext(a_reads(0, 0, 0, True, True, 0, 0) + ["s_waitcnt lgkmcnt(0)"])
        for ks in range(2):
            for x in range(2):
                d = vr(A_S(0, x), 16)
                p(mfma(d, vr(A_K(0, ks), 4), vr(A_Q(x, ks), 4), vr(A_C(x), 16) if ks == 0 else d))
        p("s_nop 15")
        for x in range(2):
            S = A_S(0, x)
            if ps == 0:
                for r in range(16): p(f"v_max_f32 v{A_N[x]}, v{A_N[x]}, v{S+r}")
            else:
                for r in range(16): p(f"v_exp_f32 v{S+r}, v{S+r}")
                p("s_nop 0")
                for k in range(8): p(f"v_cvt_pk_bf16_f32 v{A_P(0,x)+k}, v{S+2*k}, v{S+2*k+1}")
        if ps:
            p("s_nop 1")
            for s in range(2):
                for x in range(2): p(mfma(vr(A_O(x), 16), vr(A_VF(0, s), 4), vr(A_P(0, x) + 4 * s, 4), vr(A_O(x), 16)))
            p("s_nop 15")
        p(f"v_add_u32 v{A_KM}, 1024, v{A_KM}\nv_add_u32 v{A_K2}, 128, v{A_K2}\nv_add_u32 v{A_V}, 1280, v{A_V}")
        p(f"s_sub_u32 s60, s60, 1\ns_cmp_lg_u32 s60, 0\ns_cbranch_scc1 L_a_sl{ps}")
    for x in range(2):
        p(f"v_mov_b32 v{A_N[x]}, v{A_O(x)+10}\nv_mov_b32 v{8+x}, v{A_O(x)+10}")
    p(f"s_nop 1\nv_permlane32_swap_b32 v{A_N[0]}, v8\nv_permlane32_swap_b32 v{A_N[1]}, v9\ns_nop 1")
    p("s_branch L_a_epi")

O_L16 = 14
O_ACC = 64
DEPTH = 8
def out_job(p, lab, nm, nk, ctx_base, ctx_tstride, w_k0, coloff):
    nl = 2 + nm
    def F(slot, i): return ar((slot * nl + i) * 4, 4)
    def acc(xi, mi): return vr(O_ACC + (mi * 2 + xi) * 16, 16)
    p(f"s_mul_i32 s52, s{S_WAVE}, {nk}")
    p(f"s_mul_i32 s58, s56, {ctx_tstride}\ns_lshl_b32 s53, s52, 10\ns_add_u32 s58, s58, s53\ns_add_u32 s58, s58, {ctx_base}\ns_add_u32 s59, s58, {ctx_tstride}")
    p(f"s_add_u32 s52, s52, {w_k0}\ns_mul_i32 s60, s52, 18432\ns_lshl_b32 s53, s57, 10\ns_add_u32 s60, s60, s53\ns_add_u32 s60, s60, {WS_WOB}")
    def loads(slot):
        o = [f"buffer_load_dwordx4 {F(slot,0)}, v{O_L16}, {sr(SRD_WS,4)}, s58 offen offset:{(slot%4)*1024}",
             f"buffer_load_dwordx4 {F(slot,1)}, v{O_L16}, {sr(SRD_WS,4)}, s59 offen offset:{(slot%4)*1024}"]
        for mi in range(nm): o.append(f"buffer_load_dwordx4 {F(slot,2+mi)}, v{O_L16}, {sr(SRD_WS,4)}, s60 offen offset:{mi*1024}")
        o.append("s_add_u32 s60, s60, 18432")
        if slot % 4 == 3: o += ["s_add_u32 s58, s58, 4096", "s_add_u32 s59, s59, 4096"]
        return o
    def kstep(slot, first, reload, nwait):
        mf = [mfma(acc(xi, mi), F(slot, 2 + mi), F(slot, xi), "0" if first else acc(xi, mi)) for mi in range(nm) for xi in range(2)]
        out = [f"s_waitcnt vmcnt({nwait})"] + mf
        if reload: out += loads(slot)
        return out
    d = min(DEPTH, nk)
    for k in range(d): p.ext(loads(k))
    if nk <= 16:
        for k in range(nk):
            rem = min(nk, k + d) - k - 1
            p.ext(kstep(k % d, k == 0, k + d < nk, rem * nl))
    else:
        for k in range(d): p.ext(kstep(k, k == 0, True, (d - 1) * nl))
        p(f"s_mov_b32 s61, {nk // d - 2}")
        p.label(f"L_o_{lab}")
        for k in range(d): p.ext(kstep(k, False, True, (d - 1) * nl))
        p(f"s_sub_u32 s61, s61, 1\ns_cmp_lg_u32 s61, 0\ns_cbranch_scc1 L_o_{lab}")
        for k in range(d): p.ext(kstep(k, False, False, (d - 1 - k) * nl))
    p("s_nop 11")
    nt = 2 * nm
    p(f"s_lshl_b32 s52, s{S_WAVE}, 12\nv_add_u32 v8, s52, v{O_L16}")
    p("s_barrier")
    for t in range(nt):
        p(f"s_cmp_eq_u32 s{S_WAVE}, {t % 4}\ns_cbranch_scc1 L_o_{lab}_w{t}")
        if t >= 4: p(f"v_add_u32 v9, {t*16384}, v8")
        for j in range(4):
            if t < 4: p(f"ds_write_b128 v8, {vr(O_ACC + t*16 + 4*j, 4)} offset:{t*16384 + j*1024}")
            else: p(f"ds_write_b128 v9, {vr(O_ACC + t*16 + 4*j, 4)} offset:{j*1024}")
        p.label(f"L_o_{lab}_w{t}")
    p("s_waitcnt lgkmcnt(0)\ns_barrier")
    p(f"v_and_b32 v2, 31, v{V_LANE}\nv_lshrrev_b32 v3, 5, v{V_LANE}\nv_mul_u32_u24 v4, 2304, v2\nv_lshl_add_u32 v4, v3, 4, v4")
    for t in range(nt):
        mi, xi = t >> 1, t & 1
        own = t % 4
        p(f"s_cmp_lg_u32 s{S_WAVE}, {own}\ns_cbranch_scc1 L_o_{lab}_r{t}")
        p(f"v_add_u32 v9, {t*16384}, v{O_L16}")
        o = 0
        for w in range(4):
            if w == own: continue
            for j in range(4): p(f"ds_read_b128 {vr(16 + o*16 + 4*j, 4)}, v9 offset:{w*4096 + j*1024}")
            o += 1
        A = O_ACC + t * 16
        for o in range(3):
            p(f"s_waitcnt lgkmcnt({8 - 4*o})")
            for r in range(16): p(f"v_add_f32 v{A+r}, v{A+r}, v{16 + o*16 + r}")
        for k in range(8): p(f"v_cvt_pk_bf16_f32 v{A+k}, v{A+2*k}, v{A+2*k+1}")
        p("s_nop 1")
        for k in (0, 4): p(f"v_permlane32_swap_b32 v{A+k}, v{A+k+2}\nv_permlane32_swap_b32 v{A+k+1}, v{A+k+3}")
        p(f"s_add_u32 s52, s56, {xi}\ns_mul_i32 s52, s52, {32*2304}\ns_add_u32 s53, s57, {mi}\ns_lshl_b32 s53, s53, 6\ns_add_u32 s52, s52, s53\ns_add_u32 s52, s52, {coloff*2}")
        p(f"buffer_store_dwordx4 {vr(A,4)}, v4, {sr(SRD1,4)}, s52 offen\nbuffer_store_dwordx4 {vr(A+4,4)}, v4, {sr(SRD1,4)}, s52 offen offset:32")
        p.label(f"L_o_{lab}_r{t}")

def out_proj(p, after):
    mk_srd(p, SRD1, P_OUT, 2048 * 1152 * 2)
    p(f"v_lshlrev_b32 v{O_L16}, 4, v{V_LANE}")
    p(f"s_lshr_b32 s52, s{S_J}, 3\ns_lshl_b32 s56, s{S_XCD}, 2\ns_add_u32 s56, s56, s52\ns_lshl_b32 s56, s56, 1")
    p(f"s_and_b32 s62, s{S_J}, 7\ns_lshl_b32 s57, s62, 1\ns_add_u32 s57, s57, 2\ns_mul_i32 s52, s62, 3\ns_cmp_lt_u32 s62, 2\ns_cselect_b32 s57, s52, s57")
    p("s_cbranch_scc0 L_o_two")
    for nm, lab in ((3, "t"), (2, "d")):
        if nm == 2: p.label("L_o_two")
        out_job(p, lab + "B", nm, 64, WS_CTXB, 262144, 0, 576)
        stamp(p, 1)
        out_job(p, lab + "A", nm, 9, WS_CTXA, 36 * 1024, 256, 0)
        if nm == 3: p(f"s_branch {after}")

def kernels():
    p = Prog()
    entry(p, 256, "L_k3_end"); stamp_begin(p)
    attn_a(p)
    stamp(p, 8); p("s_waitcnt vmcnt(0)"); stamp_end(p, 2)
    p.label("L_k3_end"); p("s_endpgm")
    attn_a_slow(p)
    q = Prog()
    entry(q, 256, "L_k4_end"); stamp_begin(q)
    out_proj(q, "L_k4_done")
    q.label("L_k4_done")
    stamp(q, 8); q("s_waitcnt vmcnt(0)"); stamp_end(q, 3)
    q.label("L_k4_end"); q("s_endpgm")
    return [("k3_kernel", 163840, p), ("k4_kernel", 163840, q)]
```

```python
import sys, os
import common
common.STAMPS = bool(os.environ.get('STAMPS'))
from common import *
from phase1 import *

HEAD = open("cdna_kernels/" + NAME + ".s.ref").read().split("; Override launch")[0]

def build(kernels, out):
    s = HEAD
    for (n, lds, p) in kernels:
        s += f"; @launch kernel={n} grid=(256,1,1) block=(256,1,1) lds={lds}\n"
    s += '.amdgcn_target "amdgcn-amd-amdhsa--gfx950"\n.text\n'
    for (n, lds, p) in kernels:
        s += kernel_header(n) + p.text()
    s += '.section .rodata,"a"\n'
    for (n, lds, p) in kernels:
        s += ".p2align 6\n" + kernel_desc(n)
    open(out, "w").write(s)
    return s

def k1():
    p = Prog()
    entry(p, 256, "L_k1_end")
    stamp_begin(p)
    phase1(p, "L_k1_done")
    p.label("L_k1_done")
    stamp(p, 8)
    p("s_waitcnt vmcnt(0)")
    stamp_end(p, 0)
    p.label("L_k1_end")
    p("s_endpgm")
    return p

if __name__ == "__main__":
    which = sys.argv[1] if len(sys.argv) > 1 else "all"
    out = sys.argv[2] if len(sys.argv) > 2 else "out.s"
    ks = [("k1_kernel", 163840, k1())]
    if which != "k1":
        import phase2
        ks.append(("k2_kernel", 163840, phase2.k2()))
        if which != "k2":
            import phase3
            ks += phase3.kernels()
    for n, _, p in ks:
        if not common.STAMPS: check(p.l, n)
    build(ks, out)
    print("wrote", out)
```

```python
from asmlib import *
import os
WSOFF = int(os.environ.get('WSOFF', '0')) << 20

NAME = "concat_heads__softmax_full_mha__compressed_kv_cla__prompt"
MB = 1 << 20
WS_KB   = 0
WS_VB   = 16 * MB
WS_CTXB = 33 * MB
WS_AH   = 50 * MB
AH_STRIDE = 155648
AH_K2 = 65536
AH_V  = 73728
WS_QA   = 56 * MB
QA_STRIDE = 73728
WS_CTXA = 59 * MB
WS_WOB  = 62 * MB
WS_WOA  = WS_WOB + 256 * 18 * 1024
WS_SIZE = 256 * MB

P_AX, P_AWQKV, P_AWO, P_BX, P_CKV, P_WQ, P_WUK, P_WUV, P_BWO, P_OUT, P_DBG, P_WS = range(4, 28, 2)
S_WAVE, S_XCD, S_J, S_HEAD, S_BLK, S_G = 28, 29, 30, 31, 32, 33
SRD_WS, SRD1, SRD2, SRD3 = 36, 40, 44, 48
V_TID, V_LANE = 0, 1

def mk_srd(p, d, ptr, size):
    p(f"s_mov_b32 s{d}, s{ptr}\ns_mov_b32 s{d+1}, s{ptr+1}\ns_mov_b32 s{d+2}, {size}\ns_mov_b32 s{d+3}, 0x20000")

def entry(p, nwg, exit_label):
    p(f"s_cmp_ge_u32 s2, {nwg}\ns_cbranch_scc1 {exit_label}")
    p("s_load_dwordx16 s[4:19], s[0:1], 0\ns_load_dwordx8 s[20:27], s[0:1], 64")
    p(f"v_lshrrev_b32 v2, 6, v0\nv_and_b32 v{V_LANE}, 63, v0\ns_mov_b32 s{S_G}, s2")
    p(f"v_readfirstlane_b32 s{S_WAVE}, v2")
    p(f"s_and_b32 s{S_XCD}, s2, 7\ns_lshr_b32 s{S_J}, s2, 3")
    p(f"s_and_b32 s{S_HEAD}, s{S_J}, 3\ns_lshl_b32 s52, s{S_XCD}, 2\ns_add_u32 s{S_HEAD}, s{S_HEAD}, s52")
    p(f"s_lshr_b32 s{S_BLK}, s{S_J}, 2")
    p("s_waitcnt lgkmcnt(0)")
    if WSOFF: p(f"s_add_u32 s{P_WS}, s{P_WS}, {WSOFF}\ns_addc_u32 s{P_WS+1}, s{P_WS+1}, 0")
    mk_srd(p, SRD_WS, P_WS, hex(WS_SIZE - WSOFF))

def kernel_header(name):
    return f".globl {name}\n.p2align 8\n.type {name},@function\n{name}:\n"

def kernel_desc(name, vgpr=512, accum=256, sgpr=102):
    return f""".amdhsa_kernel {name}
  .amdhsa_next_free_vgpr {vgpr}
  .amdhsa_next_free_sgpr {sgpr}
  .amdhsa_accum_offset {accum}
  .amdhsa_group_segment_fixed_size 0
  .amdhsa_kernarg_size 96
  .amdhsa_user_sgpr_count 2
  .amdhsa_user_sgpr_kernarg_segment_ptr 1
  .amdhsa_system_sgpr_workgroup_id_x 1
  .amdhsa_float_denorm_mode_32 3
.end_amdhsa_kernel
"""

def mfma(d, a, b, c):
    return f"v_mfma_f32_32x32x16_bf16 {d}, {a}, {b}, {c}"

STAMPS = False
WS_STAMP = 100 * MB
_stamp_n = [0]
def stamp_begin(p):
    if not STAMPS: return
    _stamp_n[0] = 0
    p("s_memrealtime s[98:99]")
    for k in range(11): p(f"s_mov_b32 s{76+2*k}, 0")
    stamp(p)
def stamp(p, idx=None):
    if not STAMPS: return
    k = _stamp_n[0] if idx is None else idx
    _stamp_n[0] = k + 1
    assert k < 11
    p(f"s_memtime s[{76+2*k}:{77+2*k}]")
def stamp_end(p, kidx):
    if not STAMPS: return
    p("s_memtime s[96:97]\ns_memrealtime s[100:101]\ns_waitcnt lgkmcnt(0)")
    p(f"s_lshl_b32 s52, s{S_G}, 2\ns_add_u32 s52, s52, s{S_WAVE}\ns_lshl_b32 s52, s52, 6\ns_add_u32 s52, s52, {WS_STAMP + kidx*65536}")
    p("v_mov_b32 v2, 0")
    for k in range(11):
        p(f"v_mov_b32 v3, s{76+2*k}\nbuffer_store_dword v3, v2, {sr(SRD_WS,4)}, s52 offen offset:{4*k}")
    p(f"v_mov_b32 v3, s98\nbuffer_store_dword v3, v2, {sr(SRD_WS,4)}, s52 offen offset:44")
    p(f"v_mov_b32 v3, s100\nbuffer_store_dword v3, v2, {sr(SRD_WS,4)}, s52 offen offset:48")
```

```python
from gemm import *
import math, os
NOSTORE = os.environ.get('NOSTORE')
KSP = int(os.environ.get('KSP', '1'))
LOG2E = 1.4426950408889634
def f32hex(x):
    import struct
    return hex(struct.unpack("<I", struct.pack("<f", x))[0])

ST = os.environ.get("ST", "")
def setst(x):
    global ST
    ST = x

def lane_parts(p):
    p(f"""v_and_b32 v2, 31, v{V_LANE}
    v_lshrrev_b32 v3, 5, v{V_LANE}
    v_bfe_u32 v4, v{V_LANE}, 2, 2
    v_bfe_u32 v5, v{V_LANE}, 4, 1
    v_and_b32 v6, 3, v{V_LANE}
    v_lshrrev_b32 v7, 3, v{V_LANE}
    v_lshrrev_b32 v8, 4, v{V_LANE}""")

def act_read_addrs(p, wins, s_rowbase):
    bases = sorted(wins)
    p(f"v_bfe_u32 v9, v2, 1, 3")
    for ks in range(4):
        r = wins[bases[-1]][ks]
        p(f"v_add_u32 v{r}, {2*ks}, v3\nv_xor_b32 v{r}, v{r}, v9\nv_lshlrev_b32 v{r}, 4, v{r}")
        p(f"v_lshl_add_u32 v{r}, v2, 7, v{r}\nv_add_u32 v{r}, s{s_rowbase}, v{r}")
        for b in bases:
            if b or wins[b][ks] != r: p(f"v_add_u32 v{wins[b][ks]}, {b}, v{r}")

def w_read_addrs(p, wins, s_ft0):
    bases = sorted(wins)
    p("v_lshlrev_b32 v9, 3, v3\nv_add_u32 v9, v9, v4\nv_lshlrev_b32 v9, 8, v9")
    p("v_lshl_add_u32 v9, v5, 5, v9\nv_lshl_add_u32 v9, v6, 3, v9")
    for f, r in enumerate(wins[bases[-1]]):
        if s_ft0 is None: p(f"v_xor_b32 v{r}, {f}, v4")
        else: p(f"s_add_u32 s52, s{s_ft0}, {f}\nv_xor_b32 v{r}, s52, v4")
        p(f"v_lshl_add_u32 v{r}, v{r}, 6, v9")
        for b in bases:
            if b or wins[b][f] != r: p(f"v_add_u32 v{wins[b][f]}, {b}, v{r}")

def act_dma_addrs(p, regs, s_row0, stride, rowmap=None):
    p(f"s_mov_b32 s53, {stride}")
    for j, r in enumerate(regs):
        s0 = s_row0[j] if isinstance(s_row0, list) else (s_row0, 8 * j)
        p(f"v_add_u32 v9, {(4*j) & 7}, v8\nv_and_b32 v9, 7, v9\nv_and_b32 v{r}, 7, v{V_LANE}\nv_xor_b32 v9, v9, v{r}\nv_lshlrev_b32 v9, 4, v9")
        p(f"s_add_u32 s52, s{s0[0]}, {s0[1]}\nv_add_u32 v{r}, s52, v7\nv_mul_lo_u32 v{r}, v{r}, s53\nv_add_u32 v{r}, v{r}, v9")
        if j & 3: p(f"v_subrev_u32 v{r}, {1024*(j&3)}, v{r}")

def w_dma_addrs(p, regs, s_row0, stride):
    p(f"s_mov_b32 s53, {stride}")
    p(f"v_lshlrev_b32 v9, 2, v8\nv_and_b32 v{regs[0]}, 15, v{V_LANE}\nv_xor_b32 v9, v9, v{regs[0]}\nv_lshlrev_b32 v9, 4, v9")
    for j, r in enumerate(regs):
        p(f"s_add_u32 s52, s{s_row0}, {4*j}\nv_add_u32 v{r}, s52, v8\nv_mul_lo_u32 v{r}, v{r}, s53\nv_add_u32 v{r}, v{r}, v9")
        if j & 3: p(f"v_subrev_u32 v{r}, {1024*(j&3)}, v{r}")

def finish(lines, pre):
    allv = resolve_vm(pre + lines)[len(pre):]
    if os.environ.get('NODMA'): allv = [x for x in allv if I(x).kind != 'dma' and 'm0' not in x and 'vmcnt' not in x]
    if os.environ.get('NOVMW'): allv = [x for x in allv if 'vmcnt' not in x]
    if os.environ.get('NOBAR'): allv = [x for x in allv if 's_barrier' not in x]
    if os.environ.get('NOLDS'): allv = [x for x in allv if I(x).kind != 'dsr']
    body, q = auto_lgkm(allv)
    assert not q, q
    return body

def split_at_mfma(lines, n):
    c = 0
    for i, x in enumerate(lines):
        if I(x).kind == "mfma":
            if c == n:
                while I(lines[i - 1]).kind == "wait": i -= 1
                return lines[:i], lines[i:]
            c += 1
    raise ValueError

def groups(lines, n=1):
    return [[x] for x in lines]

KV_VA = {0: [10, 11, 12, 13], 65536: [14, 15, 16, 17]}
KV_VW = {98304: [18, 19, 20, 21]}
KV_ACC, KV_P = 64, 192
def kv_segs():
    common_ = dict(mt=2, nt=4, nst=8, abase=None, acc=lambda ti, fi: vr(KV_ACC + (ti * 4 + fi) * 16, 16),
                   vA=KV_VA, vW=KV_VW, fa=lambda k, ti: ar((k * 2 + ti) * 4, 4),
                   fw=lambda k, fi: vr(32 + (k % 2) * 16 + 4 * fi, 4), sM0A=56, sM0W=57, stepW=64 * 8192, vDW=[26, 27, 28, 29])
    c = dict(common_); c.update(abase=lambda st: (st % 3) * 32768, wbase=lambda st: 98304 + (st % 3) * 16384)
    k = Seg("kk", orient=lambda ti, fi: 'FT', vDA=[(22, 58), (23, 58), (24, 58), (25, 58), (22, 60), (23, 60), (24, 60), (25, 60)],
            srdA=SRD1, srdW=SRD2, sOffW=59, **c)
    c = dict(common_); c.update(wbase=lambda st: 98304 + ((st + 8) % 3) * 16384)
    v = Seg("kv", orient=lambda ti, fi: 'TF', read_act=False, srdW=SRD3, sOffW=61, **c)
    return k, v

def aq_seg(role):
    return Seg("aq", mt=2, nt=2, nst=9, abase=lambda st: (st % 5) * 32768, wbase=lambda st: (st % 5) * 32768 + 16384,
               acc=lambda ti, fi: ar(64 + (ti * 2 + fi) * 16, 16), orient=lambda ti, fi: role,
               vA={0: [192, 193, 194, 195], 65536: [196, 197, 198, 199], 131072: [200, 201, 202, 203]},
               vW={0: [204, 205], 65536: [206, 207], 131072: [208, 209]},
               fa=lambda k, ti: ar((k % 3) * 16 + 4 * ti, 4), fw=lambda k, fi: ar((k % 3) * 16 + 8 + 4 * fi, 4),
               vDA=[10, 11, 12, 13], vDW=[14, 15, 16, 17], sM0A=66, sM0W=67, sOffA=68, sOffW=69, stepW=64 * 3456,
               srdA=SRD1, srdW=SRD2, dist=2)

S_RB, S_CB = 62, 63
def pack_K():
    out = {}
    for ti in range(2):
        for fi in range(4):
            t = ti * 4 + fi
            out[(ti, fi)] = [f"v_cvt_pk_bf16_f32 v{KV_P + t*8 + e}, v{KV_ACC + t*16 + 2*e}, v{KV_ACC + t*16 + 2*e + 1}" for e in range(8)]
    return out
def store_K():
    out = []
    for ti in range(2):
        for half in range(2):
            for q in range(4):
                blk = half * 4 + q; fi, s = blk >> 1, blk & 1
                pre = [f"s_add_u32 s65, s64, {ti*8192 + half*4096}"] if q == 0 else []
                out.append(pre + [f"buffer_store_dwordx4 {vr(KV_P + (ti*4+fi)*8 + 4*s, 4)}, v30, {sr(SRD_WS,4)}, s65 offen offset:{q*1024} {ST}"])
    return out
def epi_V():
    out = []
    for ti in range(2):
        for fi in range(4):
            a0 = KV_ACC + (ti * 4 + fi) * 16
            for e in range(8): out.append([f"v_cvt_pk_bf16_f32 v{a0+e}, v{a0+2*e}, v{a0+2*e+1}"])
            for s in range(2):
                out.append([f"s_add_u32 s65, s64, {WS_VB + ti*8192 + s*4096}",
                            f"buffer_store_dwordx4 {vr(a0 + 4*s, 4)}, v30, {sr(SRD_WS,4)}, s65 offen offset:{fi*1024} {ST}"])
    return out

def aq_setup_scalar(p):
    p(f"s_cmp_ge_u32 s{S_J}, 14\ns_cselect_b32 s52, 1, 0\ns_cselect_b32 s53, 14, 0")
    p(f"s_lshl_b32 s{S_RB}, s{S_XCD}, 1\ns_add_u32 s{S_RB}, s{S_RB}, s52\ns_sub_u32 s{S_CB}, s{S_J}, s53")
    p(f"s_lshl_b32 s66, s{S_WAVE}, 12\ns_mov_b32 s67, s66")
    p(f"s_mul_i32 s68, s{S_RB}, {128*1152}\ns_lshl_b32 s69, s{S_CB}, 8")

def aq_common(p):
    p(f"s_lshl_b32 s64, s{S_RB}, 2\ns_and_b32 s52, s{S_WAVE}, 2\ns_add_u32 s64, s64, s52")
    p(f"s_and_b32 s55, s{S_WAVE}, 1\ns_lshl_b32 s65, s{S_CB}, 7\ns_lshl_b32 s52, s55, 6\ns_add_u32 s65, s65, s52")

def phase1(p, after):
    lane_parts(p)
    mk_srd(p, SRD1, P_CKV, 2048 * 1024)
    mk_srd(p, SRD2, P_WUK, 512 * 8192)
    mk_srd(p, SRD3, P_WUV, 512 * 8192)
    K, V = kv_segs()
    p(f"s_lshl_b32 s54, s{S_WAVE}, 6")
    act_dma_addrs(p, [22, 23, 24, 25], 54, 1024)
    p(f"s_lshl_b32 s54, s{S_WAVE}, 4")
    w_dma_addrs(p, [26, 27, 28, 29], 54, 8192)
    p(f"s_lshl_b32 s56, s{S_WAVE}, 13\ns_lshl_b32 s57, s{S_WAVE}, 12")
    p(f"s_lshl_b32 s58, s{S_BLK}, 18\ns_add_u32 s60, s58, {32*1024}\ns_lshl_b32 s59, s{S_HEAD}, 8\ns_mov_b32 s61, s59")
    pre = []
    for st in range(3):
        for g in K.dma(st): pre += g
    p.ext(pre)
    p(f"s_lshl_b32 s54, s{S_WAVE}, 13")
    act_read_addrs(p, KV_VA, 54)
    w_read_addrs(p, KV_VW, None)
    p(f"v_lshlrev_b32 v30, 4, v{V_LANE}")
    p(f"s_lshl_b32 s64, s{S_HEAD}, 19\ns_lshl_b32 s52, s{S_BLK}, 16\ns_add_u32 s64, s64, s52")
    p(f"s_lshl_b32 s52, s{S_WAVE}, 14\ns_add_u32 s64, s64, s52")
    aq_setup_scalar(p)
    PFM = os.environ.get('PF', '')
    if 'w' in PFM:
        q = Prog()
        q(f"v_and_b32 v9, 15, v{V_LANE}\nv_lshlrev_b32 v9, 10, v9\nv_bfe_u32 v31, v{V_LANE}, 4, 1\nv_lshl_add_u32 v9, v31, 24, v9")
        q(f"buffer_load_dword v31, v9, {sr(SRD_WS,4)}, s64 offen")
        p.ext(q.l); pre += [q.l[-1]]
    if 'p' in PFM:
        q = Prog()
        q(f"s_lshl_b32 s52, s{S_G}, 2\ns_add_u32 s52, s52, s{S_WAVE}")
        q(f"v_lshlrev_b32 v9, 7, v{V_LANE}")
        def lin(srd, nl):
            q(f"s_mul_i32 s53, s52, {nl*128}\nv_cmp_gt_u32 vcc, {nl}, v{V_LANE}\nv_mov_b32 v31, 0x80000000\ns_nop 0\nv_cndmask_b32 v8, v31, v9, vcc")
            q(f"buffer_load_dword v31, v8, {sr(srd,4)}, s53 offen")
        def wsl(srd):
            q(f"v_lshrrev_b32 v8, 1, v{V_LANE}\nv_lshlrev_b32 v8, 13, v8\nv_and_b32 v31, 1, v{V_LANE}\nv_lshl_add_u32 v8, v31, 7, v8")
            q(f"v_cmp_gt_u32 vcc, 32, v{V_LANE}\nv_mov_b32 v31, 0x80000000\ns_nop 0\nv_cndmask_b32 v8, v31, v8, vcc")
            q(f"s_lshl_b32 s53, s{S_BLK}, 2\ns_add_u32 s53, s53, s{S_WAVE}\ns_lshl_b32 s53, s53, 17\ns_lshl_b32 s54, s{S_HEAD}, 8\ns_add_u32 s53, s53, s54")
            q(f"buffer_load_dword v31, v8, {sr(srd,4)}, s53 offen")
        lin(SRD1, 16); wsl(SRD2); wsl(SRD3)
        mk_srd(q, 72, P_AX, 2048 * 1152); lin(72, 18)
        mk_srd(q, 72, P_AWQKV, 576 * 3456); lin(72, 16)
        if 'o' in PFM:
            mk_srd(q, 72, P_BWO, 4096 * 1152); lin(72, 36)
            mk_srd(q, 72, P_AWO, 576 * 1152); lin(72, 6)
        q(f"v_lshrrev_b32 v8, 4, v{V_LANE}")
        p.ext(q.l); pre += [x for x in q.l if x.startswith('buffer_load')]
    if 't' in PFM:
        q = Prog()
        q(f"v_lshlrev_b32 v9, 20, v{V_LANE}\nv_add_u32 v9, {32*MB}, v9")
        q(f"buffer_load_dword v31, v9, {sr(SRD_WS,4)}, 0 offen")
        p.ext(q.l); pre += [q.l[-1]]
    stamp(p, 1)
    def kv_lines(tail):
        segs = [K, V] + ([tail] if tail else [])
        issue = {gi: [gi + 3] for gi in range(13)}
        lg = {gi: True for gi in range(16)}
        fill = {}
        for i, g in enumerate(store_K()):
            if not NOSTORE: fill.setdefault(34 + (i * KSP) // 2 if KSP > 1 else 34 + i, []).append(g)
        if tail:
            q = Prog()
            mk_srd(q, SRD1, P_AX, 2048 * 1152); mk_srd(q, SRD2, P_AWQKV, 576 * 3456)
            q(f"s_lshl_b32 s54, s{S_WAVE}, 5"); act_dma_addrs(q, tail.vDA, 54, 1152)
            q(f"s_lshl_b32 s54, s{S_WAVE}, 4"); w_dma_addrs(q, tail.vDW, 54, 3456)
            fill[33] = groups(q.l)
            q = Prog()
            q(f"s_lshr_b32 s54, s{S_WAVE}, 1\ns_lshl_b32 s54, s54, 13"); act_read_addrs(q, tail.vA, 54)
            q(f"s_and_b32 s55, s{S_WAVE}, 1\ns_lshl_b32 s55, s55, 1"); w_read_addrs(q, tail.vW, 55)
            fill.setdefault(58, []).extend(groups(q.l))
            issue[10] = issue[10] + [16]; issue[11] = issue[11] + [17]; issue[12] = issue[12] + [18]
            issue[16] = [19, 20]
            for st in range(1, 9):
                if st + 4 < 9: issue[16 + st] = [16 + st + 4]
            lg[15] = False
            fill[65] = [g for g in epi_V() if not ((NOSTORE or os.environ.get('NOV')) and len(g) > 1)]
        hooks = {}
        if STAMPS:
            for n, gk in enumerate((16, 32, 48)):
                q = Prog(); stamp(q, 4 + n); hooks[gk] = q.l
            q = Prog(); stamp(q, 7); hooks[80] = q.l
        lines = pipeline(segs, issue, lg, fillers=fill, hooks=hooks)
        pk = pack_K()
        out = []; nm = 0; order = V.morder()
        for x in lines:
            if not x.startswith("VMWAIT") and I(x).kind == "mfma":
                j = nm - 256
                if j == 0: out += ["s_nop 3"] + pk[order[0]] + ["s_nop 0"]
                out.append(x)
                if 0 <= j < 7: pend = pk[order[j + 1]]
                else: pend = None
                nm += 1
                out.append(("PK", pend))
            else: out.append(x)
        res = []; hold = None
        for x in out:
            if isinstance(x, tuple):
                hold = x[1]; continue
            if hold and not x.startswith("VMWAIT") and I(x).kind == "mfma":
                res += hold + ["s_nop 0"]; hold = None
            res.append(x)
        return res
    h1, tFT = split_at_mfma(finish(kv_lines(aq_seg('FT')), pre), 512)
    h2, tTF = split_at_mfma(finish(kv_lines(aq_seg('TF')), pre), 512)
    assert h1 == h2
    p.ext(h1)
    stamp(p, 2)
    p(f"s_cmp_ge_u32 s{S_J}, 28\ns_cbranch_scc1 L_transp")
    p(f"s_cmp_ge_u32 s{S_CB}, 9\ns_cbranch_scc1 L_aq_V")
    p.ext(tFT)
    stamp(p, 3)
    p("s_nop 15")
    aq_common(p)
    for t in range(64): p(f"v_accvgpr_read_b32 v{128+t}, a{64+t}")
    scale = f32hex(18 ** -0.5 * LOG2E)
    p(f"s_mov_b32 s70, 3641\ns_mov_b32 s71, 0x80000000")
    p(f"v_lshlrev_b32 v40, 4, v2\nv_lshlrev_b32 v41, 2, v2\nv_lshlrev_b32 v43, 2, v3")
    for fi in range(2):
        p(f"s_add_u32 s66, s65, {32*fi}\ns_cmp_lt_u32 s66, 576")
        p(f"s_mov_b32 s67, {WS_AH}\ns_mov_b32 s68, {AH_STRIDE}\ns_cmov_b32 s67, {WS_QA}\ns_cmov_b32 s68, {QA_STRIDE}\ns_cselect_b32 s69, {scale}, 1.0\ns_cselect_b32 s52, 0, 576")
        p("s_sub_u32 s66, s66, s52")
        for ti in range(2):
            a0 = 128 + (ti * 2 + fi) * 16
            for e in range(16): p(f"v_mul_f32 v{a0+e}, s69, v{a0+e}")
            for e in range(8): p(f"v_cvt_pk_bf16_f32 v{a0+e}, v{a0+2*e}, v{a0+2*e+1}")
        for j in range(4):
            p(f"s_add_u32 s52, s66, {8*j}\nv_add_u32 v44, s52, v43")
            p("v_mul_lo_u32 v45, v44, s70\nv_lshrrev_b32 v45, 16, v45")
            p("v_mul_u32_u24 v46, 18, v45\nv_sub_u32 v46, v44, v46")
            p("v_mul_lo_u32 v45, v45, s68")
            p("v_bfe_u32 v47, v46, 2, 1\nv_lshlrev_b32 v47, 9, v47\nv_add3_u32 v47, v47, v45, v40")
            p("v_bfe_u32 v48, v46, 3, 1\nv_lshl_add_u32 v47, v48, 3, v47")
            p("v_cmp_eq_u32 vcc, 16, v46\nv_mov_b32 v49, s71\nv_add_u32 v50, v45, v41\nv_cndmask_b32 v47, v47, v49, vcc\nv_cndmask_b32 v50, v49, v50, vcc")
            p("v_add_u32 v51, s68, v50")
            for ti in range(2):
                a0 = 128 + (ti * 2 + fi) * 16
                p(f"s_add_u32 s52, s64, {ti}\ns_lshl_b32 s53, s52, 10\ns_add_u32 s53, s53, s67")
                p(f"buffer_store_dwordx2 {vr(a0+2*j,2)}, v47, {sr(SRD_WS,4)}, s53 offen {ST}")
            p(f"s_cbranch_vccz L_aq_np{fi}{j}")
            for ti in range(2):
                a0 = 128 + (ti * 2 + fi) * 16
                p(f"s_add_u32 s52, s64, {ti}\ns_lshl_b32 s53, s52, 7\ns_add_u32 s53, s53, s67\ns_add_u32 s53, s53, 65536")
                p(f"buffer_store_dword v{a0+2*j}, v50, {sr(SRD_WS,4)}, s53 offen {ST}")
                p(f"buffer_store_dword v{a0+2*j+1}, v51, {sr(SRD_WS,4)}, s53 offen {ST}")
            p.label(f"L_aq_np{fi}{j}")
    p(f"s_branch {after}")
    p.label("L_aq_V")
    p.ext(tTF)
    stamp(p, 3)
    p("s_nop 15")
    aq_common(p)
    for t in range(64): p(f"v_accvgpr_read_b32 v{128+t}, a{64+t}")
    p(f"s_mov_b32 s70, 3641\ns_mov_b32 s68, {AH_STRIDE}")
    for fi in range(2):
        p(f"s_add_u32 s66, s65, {32*fi}\ns_sub_u32 s66, s66, 1152\ns_cmp_ge_u32 s66, 576\ns_cbranch_scc1 L_aq_vskip{fi}")
        p("v_add_u32 v44, s66, v2\nv_mul_lo_u32 v45, v44, s70\nv_lshrrev_b32 v45, 16, v45")
        p("v_mul_u32_u24 v46, 18, v45\nv_sub_u32 v46, v44, v46\nv_mul_lo_u32 v45, v45, s68")
        p("v_mul_u32_u24 v47, 320, v3\nv_lshlrev_b32 v46, 4, v46\nv_add3_u32 v47, v47, v46, v45")
        for ti in range(2):
            a0 = 128 + (ti * 2 + fi) * 16
            for e in range(8): p(f"v_cvt_pk_bf16_f32 v{a0+e}, v{a0+2*e}, v{a0+2*e+1}")
            p(f"s_add_u32 s52, s64, {ti}\ns_mul_i32 s53, s52, 1280\ns_add_u32 s53, s53, {WS_AH + AH_V}")
            p(f"buffer_store_dwordx4 {vr(a0,4)}, v47, {sr(SRD_WS,4)}, s53 offen {ST}")
            p(f"buffer_store_dwordx4 {vr(a0+4,4)}, v47, {sr(SRD_WS,4)}, s53 offen offset:640 {ST}")
        p.label(f"L_aq_vskip{fi}")
    p(f"s_cmp_lg_u32 s{S_CB}, 9\ns_cbranch_scc1 {after}")
    p(f"v_and_b32 v44, 1, v{V_LANE}\nv_bfe_u32 v45, v{V_LANE}, 1, 1\nv_bfe_u32 v46, v{V_LANE}, 2, 3")
    p("v_mul_u32_u24 v45, 320, v45\nv_mul_u32_u24 v46, 640, v46\nv_lshlrev_b32 v47, 4, v44\nv_add3_u32 v47, v47, v45, v46")
    p("v_mul_lo_u32 v45, v3, s68\nv_add_u32 v47, v47, v45")
    p("v_cmp_eq_u32 vcc, 0, v44\nv_mov_b32 v48, 0x3f803f80\ns_nop 0\nv_cndmask_b32 v52, 0, v48, vcc\nv_mov_b32 v53, v52\nv_mov_b32 v54, v52\nv_mov_b32 v55, v52")
    p(f"s_mul_i32 s53, s{S_RB}, {8*640}\ns_mul_i32 s52, s{S_WAVE}, {8*AH_STRIDE}\ns_add_u32 s53, s53, s52\ns_add_u32 s53, s53, {WS_AH + AH_V + 18*16}")
    for it in range(4):
        p(f"buffer_store_dwordx4 v[52:55], v47, {sr(SRD_WS,4)}, s53 offen {ST}\ns_add_u32 s53, s53, {2*AH_STRIDE}")
    p(f"s_branch {after}")
    p.label("L_transp")
    p("s_nop 15\ns_waitcnt vmcnt(0) lgkmcnt(0)\ns_barrier")
    for g in epi_V(): p.ext(g)
    mk_srd(p, SRD1, P_BWO, 4096 * 1152)
    mk_srd(p, SRD2, P_AWO, 576 * 1152)
    p(f"s_lshl_b32 s62, s{S_XCD}, 2\ns_add_u32 s62, s62, s{S_J}\ns_sub_u32 s62, s62, 28\ns_lshl_b32 s62, s62, 2\ns_add_u32 s62, s62, s{S_WAVE}")
    p(f"s_mul_i32 s56, s{S_WAVE}, 36864")
    p(f"v_lshlrev_b32 v42, 4, v{V_LANE}")
    p("v_lshlrev_b32 v9, 2, v3\nv_add_u32 v9, v9, v4\nv_mul_u32_u24 v9, 1152, v9\nv_lshl_add_u32 v9, v5, 5, v9\nv_lshl_add_u32 v9, v6, 3, v9\nv_add_u32 v10, s56, v9")
    def lin_dma(srd, soff, slot):
        for n_ in range(18):
            if n_ % 4 == 0:
                p(f"s_add_u32 m0, s56, {slot*18432 + n_*1024}\ns_add_u32 s53, s{soff}, {n_*1024}")
            p(f"buffer_load_dwordx4 v42, {sr(srd,4)}, s53 offen offset:{(n_%4)*1024} lds")
    def tr_out(slot, st):
        p(f"s_mul_i32 s53, s{st}, 18432\ns_add_u32 s53, s53, {WS_WOB}")
        for mt in range(18):
            for u in range(2):
                p(f"ds_read_b64_tr_b16 {vr(64+4*mt+2*u,2)}, v10 offset:{slot*18432 + u*9216 + mt*64}")
            if mt % 6 == 5:
                p("s_waitcnt lgkmcnt(0)")
        for mt in range(18):
            if mt % 4 == 0 and mt: p("s_add_u32 s53, s53, 4096")
            p(f"buffer_store_dwordx4 {vr(64+4*mt,4)}, v42, {sr(SRD_WS,4)}, s53 offen offset:{(mt%4)*1024} {ST}")
    p("s_mul_i32 s63, s62, 18432"); lin_dma(SRD1, 63, 0)
    p(f"s_add_u32 s63, s63, {128*18432}"); lin_dma(SRD1, 63, 1)
    p("s_waitcnt vmcnt(18)"); tr_out(0, 62)
    p("s_add_u32 s62, s62, 128\ns_waitcnt vmcnt(18)"); tr_out(1, 62)
    p("s_add_u32 s62, s62, 128")
    p(f"s_cmp_ge_u32 s62, 292\ns_cbranch_scc1 {after}")
    p("s_cmp_ge_u32 s62, 288\ns_cbranch_scc1 L_tr_sp")
    p(f"s_sub_u32 s63, s62, 256\ns_mul_i32 s63, s63, {18*1152}"); lin_dma(SRD2, 63, 0)
    p("s_branch L_tr_fin")
    p.label("L_tr_sp")
    p(f"s_sub_u32 s63, s62, 288\ns_mul_i32 s63, s63, {8*18*1152}")
    for x in range(8):
        hd = ((x >> 1) & 1) * 4 + ((x >> 2) & 1) * 2 + (x & 1)
        p(f"s_add_u32 m0, s56, {x*2304}\ns_add_u32 s53, s63, {(18*hd+16)*1152}")
        p(f"buffer_load_dwordx4 v42, {sr(SRD2,4)}, s53 offen lds\nbuffer_load_dwordx4 v42, {sr(SRD2,4)}, s53 offen offset:1024 lds")
        p(f"s_mov_b64 exec, 0xffff\nbuffer_load_dwordx4 v42, {sr(SRD2,4)}, s53 offen offset:2048 lds\ns_mov_b64 exec, -1")
    p.label("L_tr_fin")
    p("s_waitcnt vmcnt(0)"); tr_out(0, 62)
```

```python
import re

def vr(lo, n=1, p='v'):
    return f"{p}{lo}" if n == 1 else f"{p}[{lo}:{lo+n-1}]"
def ar(lo, n=1): return vr(lo, n, 'a')
def sr(lo, n=1): return vr(lo, n, 's')

class Prog:
    def __init__(self):
        self.l = []
    def __call__(self, s):
        for x in s.split("\n"):
            x = x.strip()
            if x: self.l.append(x)
        return self
    def ext(self, lst):
        for x in lst: self(x)
    def label(self, n): self.l.append(n + ":")
    def text(self):
        out = []
        for x in self.l:
            x = x.split(" ; ")[0].replace(" offset:0 ", " ").replace("  ", " ").rstrip()
            if x.endswith(" offset:0"): x = x[:-9]
            out.append(x if x.endswith(":") or x.startswith(".") else " " + x)
        return "\n".join(out) + "\n"

_REG = re.compile(r"^(-|abs\()?([vas])(?:(\d+)|\[(\d+):(\d+)\])\)?$")
def regs(tok):
    tok = tok.strip()
    if tok in ("vcc",): return [("s", "vcc")]
    if tok in ("vcc_lo", "vcc_hi"): return [("s", "vcc")]
    if tok in ("exec", "exec_lo", "exec_hi"): return [("s", "exec")]
    if tok == "m0": return [("s", "m0")]
    m = _REG.match(tok)
    if not m: return []
    p = m.group(2)
    if m.group(3) is not None: return [(p, int(m.group(3)))]
    return [(p, i) for i in range(int(m.group(4)), int(m.group(5)) + 1)]

TRANS = ("v_exp_f32", "v_log_f32", "v_rcp_f32", "v_rsq_f32", "v_sqrt_f32", "v_sin_f32", "v_cos_f32", "v_rcp_iflag_f32")
class I:
    def __init__(self, s):
        self.s = s
        s0 = s.split(";")[0].strip()
        self.label = s0.endswith(":")
        parts = s0.split(None, 1)
        self.op = parts[0] if parts else ""
        rest = parts[1] if len(parts) > 1 else ""
        toks = [t.strip() for t in rest.split(",")]
        mods = ""
        if toks and toks[-1]:
            lt = toks[-1].split(None, 1)
            toks[-1] = lt[0]
            mods = lt[1] if len(lt) > 1 else ""
        self.toks = toks; self.mods = mods
        op = self.op
        self.w = []; self.r = []
        self.kind = "other"
        R = [regs(t) for t in toks]
        if self.label or op.startswith("."):
            self.kind = "label"
        elif op.startswith("v_mfma"):
            self.kind = "mfma"; self.w = R[0]; self.A = R[1]; self.B = R[2]; self.C = R[3]; self.r = R[1] + R[2] + R[3]
            self.passes = 8 if "32x32x16" in op or "32x32x8" in op else 4
        elif op.startswith("ds_read") or op.startswith("ds_bpermute") or op.startswith("ds_swizzle"):
            self.kind = "dsr"; self.w = R[0]; self.r = sum(R[1:], [])
        elif op.startswith("ds_write"):
            self.kind = "dsw"; self.r = sum(R, [])
        elif op.startswith("ds_"):
            self.kind = "dsr" if "rtn" in op else "dsw"
            if "rtn" in op: self.w = R[0]; self.r = sum(R[1:], [])
            else: self.r = sum(R, [])
        elif op.startswith("buffer_load") or op.startswith("global_load"):
            if " lds" in (" " + mods) or "_lds_" in op:
                self.kind = "dma"; self.r = sum(R, []) + [("s", "m0")]
            else:
                self.kind = "vld"; self.w = R[0]; self.r = sum(R[1:], [])
        elif op.startswith("buffer_store") or op.startswith("global_store"):
            self.kind = "vst"; self.r = sum(R, [])
            self.data = R[0] if op.startswith("buffer") else R[1]
        elif op.startswith("buffer_atomic") or op.startswith("global_atomic"):
            self.kind = "vat"; self.r = sum(R, [])
            if "sc0" in mods: self.w = R[0]
        elif op in ("buffer_inv", "buffer_wbl2"):
            self.kind = "vmisc"
        elif op.startswith("s_load") or op.startswith("s_memtime") or op.startswith("s_memrealtime"):
            self.kind = "smem"; self.w = R[0]; self.r = sum(R[1:], [])
        elif op == "s_waitcnt":
            self.kind = "wait"
            full = rest
            m = re.search(r"vmcnt\((\d+)\)", full); self.vm = int(m.group(1)) if m else None
            m = re.search(r"lgkmcnt\((\d+)\)", full); self.lg = int(m.group(1)) if m else None
        elif op == "s_nop":
            self.kind = "nop"; self.n = int(toks[0], 0) + 1
        elif op.startswith("s_"):
            self.kind = "salu"
            if op.startswith("s_cmp") or op.startswith("s_cbranch") or op in ("s_branch", "s_barrier", "s_setprio", "s_endpgm", "s_sleep", "s_setpc_b64"):
                self.r = sum(R, [])
                if "vcc" in op: self.r += [("s", "vcc")]
            else:
                self.w = R[0]; self.r = sum(R[1:], [])
                if "saveexec" in op: self.w += [("s", "exec")]
                if op.startswith("s_addk") or op.startswith("s_mulk") or op.startswith("s_cmov"): self.r += R[0]
        elif op.startswith("v_"):
            self.kind = "valu"
            self.w = list(R[0]); self.r = sum(R[1:], [])
            if op.startswith("v_permlane") and "swap" in op:
                self.w = R[0] + R[1]; self.r = R[0] + R[1]
            if op.startswith("v_fmac") or op.startswith("v_dot2c") or "UNUSED_PRESERVE" in s0 or op.startswith("v_writelane"):
                self.r += R[0]
            if "_co_" in op:
                self.w += R[1]; self.r = sum(R[2:], [])
            if op.startswith("v_cndmask") and len(toks) == 3: self.r += [("s", "vcc")]
            if op.startswith("v_cmpx"): self.w += [("s", "exec")]
            self.trans = any(op.startswith(t) for t in TRANS)
        else:
            raise ValueError("unknown instr: " + s)

def check(lines, name="", assume_pending=None, verbose=True):
    errs = []
    ins = [I(x) for x in lines]
    lgq = []
    vmq = []
    pos = 0
    last = {}
    def err(i, msg):
        errs.append(f"[{name}] #{i} '{ins[i].s}': {msg}")
    for i, x in enumerate(ins):
        if x.kind == "label": continue
        def need(key, n, msg):
            p = last.get(key)
            if p is not None and pos - p - 1 < n:
                err(i, f"{msg}: {key} dist={pos-p-1} need {n}")
        touched = set(x.r) | set(x.w)
        for (k, rs, j) in lgq:
            if rs & touched: err(i, f"touches pending lgkm result of #{j} '{ins[j].s}'")
        for (k, rs, j) in vmq:
            if rs & touched: err(i, f"touches pending vm result of #{j} '{ins[j].s}'")
        if x.kind == "mfma":
            for r in x.r: need(("valu_w", r), 2, "VALU->MFMA")
            for r in x.A + x.B:
                e = last.get(("mfma_w", r))
                if e and pos - e[0] - 1 < (12 if e[1] == 8 else 8): err(i, f"MFMA D->A/B {r} dist={pos-e[0]-1}")
            for r in x.C:
                e = last.get(("mfma_w", r))
                if e and e[2] != tuple(x.C) and pos - e[0] - 1 < (10 if e[1] == 8 else 6): err(i, f"MFMA D->C overlap {r}")
                if e and e[2] == tuple(x.C) and e[1] != x.passes and pos - e[0] - 1 < 10: err(i, f"MFMA D->C different shape {r}")
            for r in x.w:
                e = last.get(("mfma_w", r))
                if e and r not in x.C and pos - e[0] - 1 < (12 if e[1] == 8 else 8): err(i, f"MFMA WAW {r} dist={pos-e[0]-1}")
            need(("valu_sw", ("s", "exec")), 4, "VALU exec->MFMA")
        if x.kind in ("valu", "dsr", "dsw", "vld", "vst", "dma", "vat"):
            for r in touched:
                e = last.get(("mfma_w", r))
                if e and pos - e[0] - 1 < (12 if e[1] == 8 else 8): err(i, f"MFMA D->{x.kind} {r} dist={pos-e[0]-1}")
        if x.kind == "valu":
            for r in x.w:
                e = last.get(("mfma_c", r))
                if e and pos - e[0] - 1 < (7 if e[1] == 8 else 3): err(i, f"MFMA C WAR {r} dist={pos-e[0]-1}")
                need(("st_data", r), 2, "store data WAR")
            if not x.trans:
                for r in x.r: need(("trans_w", r), 1, "trans->VALU")
            for r in x.r:
                if r[0] == "s": need(("valu_sw", r), 2, "VALU sgpr->VALU")
            if x.op.startswith("v_permlane"):
                for r in x.r: need(("valu_w", r), 2, "VALU->permlane")
            if x.op.startswith("v_readfirstlane") or x.op.startswith("v_readlane"):
                for r in x.r: need(("valu_w", r), 1, "VALU->readlane")
            if "dpp" in x.s or "row_" in x.s:
                for r in x.r: need(("valu_w", r), 2, "VALU->dpp")
        if x.kind in ("dsr", "vld"):
            for r in x.w: need(("st_data", r), 1, "store data WAR")
        if x.kind in ("vld", "vst", "dma", "vat"):
            for r in x.r:
                if r[0] == "s": need(("valu_sw", r), 5, "VALU sgpr->VMEM")
        if x.kind == "dma":
            need(("salu_w", ("s", "m0")), 1, "m0->dma")
        if x.kind == "salu" and x.op.startswith("s_cbranch_vcc"):
            pass
        if x.kind == "wait":
            if x.lg is not None:
                if any(k == "smem" for k, _, _ in lgq) and x.lg != 0:
                    pass
                else:
                    while len(lgq) > x.lg: lgq.pop(0)
            if x.vm is not None:
                while len(vmq) > x.vm: vmq.pop(0)
        elif x.kind == "dsr": lgq.append(("ds", set(x.w), i))
        elif x.kind == "dsw": lgq.append(("ds", set(), i))
        elif x.kind == "smem": lgq.append(("smem", set(x.w), i))
        elif x.kind in ("vld", "vat"): vmq.append(("vm", set(x.w), i))
        elif x.kind in ("vst", "dma", "vmisc"): vmq.append(("vm", set(), i))
        if len(lgq) > 15 and x.kind in ("dsr","dsw"):
            pass
        while len(vmq) > 63: vmq.pop(0)
        if x.kind == "mfma":
            for r in x.w: last[("mfma_w", r)] = (pos, x.passes, tuple(x.w))
            for r in x.C: last[("mfma_c", r)] = (pos, x.passes)
        if x.kind == "valu":
            for r in x.w:
                if r[0] == "s": last[("valu_sw", r)] = pos
                else:
                    last[("valu_w", r)] = pos
                    last.pop(("mfma_w", r), None)
                    if x.trans: last[("trans_w", r)] = pos
                    else: last.pop(("trans_w", r), None)
        if x.kind == "salu":
            for r in x.w:
                last[("salu_w", r)] = pos
                last.pop(("valu_sw", r), None)
        if x.kind == "vst" and ("x4" in x.op or "x3" in x.op):
            for r in x.data: last[("st_data", r)] = pos
        pos += x.n if x.kind == "nop" else 1
    errs = [e for e in errs if not ("pending vm" in e and ("T:pf" in e or "v28" in e or "buffer_load_dword v31, v9" in e or "buffer_load_dword v31, v31, s[44:47]" in e))]
    if verbose:
        for e in errs[:40]: print("HAZARD", e)
        if len(errs) > 40: print("...", len(errs), "total")
    return errs

import os
VC = int(os.environ.get("VC", "8"))
COST = {"mfma": 8, "valu": 4, "dsr": 4, "dsw": 8, "dma": VC, "vld": VC, "vst": VC, "wait": 4, "salu": 4, "nop": 4, "smem": 4, "vat": 8, "vmisc": 4, "label": 0, "other": 4}
def cost(s):
    x = I(s)
    if x.kind == "label": return 0
    if x.kind == "valu" and x.trans: return 8
    if x.kind == "nop": return 4 * x.n
    return COST[x.kind]

def weave(mfmas, gaps):
    out = []
    for m, g in zip(mfmas, gaps):
        out.append(m); out.extend(g)
    return out

def order_gap(g):
    def cls(s):
        k = I(s).kind
        return 0 if k in ("wait", "salu", "dsr", "dsw", "dma", "vld", "vst", "nop", "vat","vmisc") else 1
    return [s for s in g if cls(s) == 0] + [s for s in g if cls(s) == 1]
```

```python
from front import *
import front
RB = 32768
V_LR = 19

V_B = [10, 11]
V_L16 = 14
V_DK, V_DV, V_DKS, V_DVS = 12, 13, 15, 16
V_LA, V_LB = 17, 18
V_NA, V_NB = 20, 21
V_TD, V_T, V_T2, V_NEG = 22, 23, 24, 25
CA, CB = 32, 48
def SBUF(p, x): return 64 + p * 32 + x * 16
def PBUF(p, x): return 128 + p * 16 + x * 8
QA_, QB_ = 192, 224
OA, OB = 0, 64
RING = 128
NR = 16
DIST = 8
S_X = 56
S_Y = [57, 58]
S_SO = 59
S_BIG0, S_BIG7, S_CNT, S_HB = 60, 61, 62, 63
MASKS = [64, 66, 68, 54]
NEGBIG = "0xf149f2ca"

def ring(n): return ar(RING + 4 * (n % NR), 4)

def mask_upd(C, vN, c, sbig=None, vT=V_T):
    out = []
    if sbig is None: out.append([f"v_subrev_u32 v{vT}, {32*c}, v{V_TD}"])
    else: out.append([f"s_sub_u32 s52, s{sbig}, {32*c}", f"v_add_u32 v{vT}, s52, v{V_TD}"])
    cm = []; cn = []
    for r in range(16):
        cr = 8 * (r >> 2) + (r & 3); m = MASKS[r % 4]
        cm.append(f"v_cmp_gt_i32 {sr(m,2)}, {cr}, v{vT}")
        cn.append(f"v_cndmask_b32 v{C+r}, v{vN}, v{V_NEG}, {sr(m,2)}")
    seq = cm[:3]
    for r in range(16):
        if r + 3 < 16: seq.append(cm[r + 3])
        elif r >= 14: pass
        seq.append(cn[r])
    seq = cm[:3]
    for r in range(16):
        if r + 3 < 16: seq.append(cm[r + 3])
        seq.append(cn[r])
    return out + [[x] for x in seq]

def frag_list(qk, pv, pvoff=8192, kb=None, vb=None):
    fr = []; use = []
    n = 0
    if qk == 'd':
        for f in range(8):
            fr.append((len(use), kb, f * 1024)); use += [n, n]; n += 1
    elif qk == 's':
        for f in range(8):
            for h in range(2):
                fr.append((len(use), kb, h * 16384 + f * 1024)); use.append(n); n += 1
    if pv == 'd':
        for f in range(8):
            fr.append((len(use), vb, pvoff + f * 1024)); use += [n, n]; n += 1
    elif pv == 's':
        for h in range(2):
            for f in range(8):
                fr.append((len(use), vb, pvoff + h * 16384 + f * 1024)); use.append(n); n += 1
    return fr, use

class Slot:
    def __init__(s, par, qk, sm, pv, kb, vb, pvoff=8192, dma=None, upd=None, vmn=None, first_pv=False, ring0=0, adv=16384, extra=None, at=None):
        s.__dict__.update(locals()); del s.__dict__['s']
        s.fr, s.use = frag_list(qk, pv, pvoff, kb, vb)
    def rd(s, k):
        m, b, imm = s.fr[k]
        return f"ds_read_b128 {ring(s.ring0 + k)}, v{b} offset:{imm}"
    def head_reads(s):
        return [s.rd(k) for k in range(len(s.fr)) if s.fr[k][0] < DIST]
    def mfmas(s):
        out = []; i = 0
        p = s.par
        if s.qk:
            for f in range(8):
                for x in range(2):
                    q = (QA_ if x == 0 else QB_) if s.qk == 'd' else QB_
                    d = vr(SBUF(1 - p, x), 16)
                    c = vr(CA if x == 0 else CB, 16) if f == 0 else d
                    out.append(mfma(d, ring(s.ring0 + s.use[i]), vr(q + 4 * f, 4), c)); i += 1
        if s.pv == 'd':
            for f in range(8):
                st, dt = f >> 2, f & 3
                for x in range(2):
                    d = ar((OA if x == 0 else OB) + 16 * dt, 16)
                    c = "0" if (s.first_pv and st == 0) else d
                    out.append(mfma(d, ring(s.ring0 + s.use[i]), vr(PBUF(1 - p, x) + 4 * st, 4), c)); i += 1
        elif s.pv == 's':
            for h in range(2):
                for f in range(8):
                    st, dt = f >> 2, f & 3
                    d = ar(OB + 16 * dt, 16)
                    out.append(mfma(d, ring(s.ring0 + s.use[i]), vr(PBUF(1 - p, h) + 4 * st, 4), d)); i += 1
        return out
    def softmax(s):
        if not s.sm: return []
        p = s.par
        el = [(x, r) for x in range(2) for r in range(16)]
        def S(e): return SBUF(p, el[e][0]) + el[e][1]
        def L(e): return V_LB if (s.sm == 's' or el[e][0] == 1) else V_LA
        g = []
        for e in range(32):
            it = [f"v_exp_f32 v{S(e)}, v{S(e)}"]
            if e >= 1: it.append(f"v_add_f32 v{L(e-1)}, v{L(e-1)}, v{S(e-1)}")
            if e >= 2 and e % 2 == 0:
                k = e - 2
                it.append(f"v_cvt_pk_bf16_f32 v{PBUF(p, el[k][0]) + el[k][1] // 2}, v{S(k)}, v{S(k+1)}")
            g.append(it)
        g[-1] += [f"v_add_f32 v{L(31)}, v{L(31)}, v{S(31)}", f"v_cvt_pk_bf16_f32 v{PBUF(p, 1) + 7}, v{S(30)}, v{S(31)}"]
        return g
    def emit(s, nxt, tail=None):
        mf = s.mfmas(); M = len(mf)
        mem = [[] for _ in range(M)]; val = [[] for _ in range(M)]; end = [[] for _ in range(M)]
        rds = []
        for k, (m, b, imm) in enumerate(s.fr):
            rds.append((m - DIST, m))
            if m >= DIST: mem[m - DIST].append(s.rd(k))
        if nxt is not None:
            bar = M - DIST
            mem[bar] = [f"s_waitcnt vmcnt({s.vmn})", "s_barrier"] + mem[bar]
            for k, (m, b, imm) in enumerate(nxt.fr):
                if m < DIST:
                    mem[bar + m].append(nxt.rd(k)); rds.append((bar + m, M + m))
            mem[bar - 3] += [f"s_add_u32 s{S_X}, s{S_X}, {s.adv}"]
            mem[bar - 1] += [f"s_and_b32 s{S_X}, s{S_X}, 0x1ffff"]
            val[bar - 1].append(f"v_add_u32 v{V_B[1 - s.par]}, s{S_X}, v{V_LR}")
        for m in range(1, M, 4):
            need = [g for (g, c) in rds if m <= c <= m + 3]
            if not need: continue
            n = len([g for (g, c) in rds if max(need) < g < m])
            end[m - 1].append(f"s_waitcnt lgkmcnt({n})")
        g = 1
        for grp in (s.dma or []):
            if grp[0].startswith("s_") and "m0" in grp[0] and len(grp) == 1:
                mem[g - 1] += grp; continue
            mem[g] += grp
            if any(I(x).kind == "dma" for x in grp): assert g < M - DIST, g
            g += 2 if M > 16 else (1 if g % 2 else 1)
        sm = s.softmax()
        if sm:
            for e, it in enumerate(sm): val[e * M // 32] += it
        up = list(s.upd or []) + list(s.extra or [])
        if up:
            n = len(up); g0 = 3
            for j, it in enumerate(up):
                gg = g0 + j * (M - 1 - g0) // n
                if any(I(x).kind != "valu" for x in it):
                    mem[gg] += [x for x in it if I(x).kind != "valu"]; val[gg] = [x for x in it if I(x).kind == "valu"] + val[gg]
                else: val[gg] += it
        for g_, it in (s.at or {}).items(): mem[g_] += it
        if tail: mem[M - 1] += tail
        return weave(mf, [mem[k] + val[k] + end[k] for k in range(M)])

def dma_dual(tag=""):
    y = S_Y[0]
    L = lambda v, o: f"buffer_load_dwordx4 v{v}, {sr(SRD_WS,4)}, s{S_SO} offen offset:{o} {LC} lds" + tag
    return [[f"s_add_u32 m0, s{y}, {RB}"],
            [L(V_DK, 0)],
            [L(V_DK, 1024), f"s_add_u32 m0, s{y}, {RB + 8192}"],
            [L(V_DV, 0), f"s_add_u32 s{y}, s{y}, 16384"],
            [L(V_DV, 1024), f"s_and_b32 s{y}, s{y}, 0x1ffff"],
            [f"s_add_u32 s{S_SO}, s{S_SO}, 8192"]]
def dma_single(par, k=True, v=True):
    yc, yp = S_Y[par], S_Y[1 - par]
    L = lambda v, o: f"buffer_load_dwordx4 v{v}, {sr(SRD_WS,4)}, s{S_SO} offen offset:{o} {LC} lds"
    out = []
    if v:
        out.append([f"s_add_u32 m0, s{yp}, {RB + 8192}"])
        for j in range(4): out.append([L(V_DVS, j * 1024)])
    if k:
        if v: out[-1].append(f"s_add_u32 m0, s{yc}, {RB}")
        else: out.append([f"s_add_u32 m0, s{yc}, {RB}"])
        for j in range(4): out.append([L(V_DKS, j * 1024)])
    out[-1].append(f"s_add_u32 s{yp}, s{yc}, 32768")
    out.append([f"s_and_b32 s{yp}, s{yp}, 0x1ffff", f"s_add_u32 s{S_SO}, s{S_SO}, 16384"])
    return out

def lg(lines, pend):
    return lines


S_BAD = 70
WT_V = 59
WT_R, WT_S = 26, 27
WT_A = 192
def ring_setup():
    q = Prog()
    q(f"v_lshlrev_b32 v{V_L16}, 4, v{V_LANE}\ns_lshl_b32 s{S_HB}, s{S_HEAD}, 19\ns_lshl_b32 s{S_Y[0]}, s{S_WAVE}, 11")
    q(f"v_add_u32 v{V_DKS}, s{S_Y[0]}, v{V_L16}\nv_add_u32 v{V_DK}, 16384, v{V_DKS}\nv_add_u32 v{V_DV}, {WS_VB}, v{V_DKS}\ns_mov_b32 s{S_SO}, s{S_HB}")
    wt_addr(q, WT_V, False)
    return q.l
def wt_addr(q, dst, special, t=160):
    q("s_mov_b32 s55, 3277")
    for n in range(5):
        r = dst + n
        q(f"v_add_u32 v9, {64*n}, v{V_LANE}\nv_mul_lo_u32 v8, v9, s55\nv_lshrrev_b32 v8, 16, v8\nv_mul_u32_u24 v{r}, 20, v8\nv_sub_u32 v9, v9, v{r}")
        if special:
            q(f"v_bfe_u32 v{t}, v8, 2, 1\nv_lshlrev_b32 v{t}, 2, v{t}\nv_lshrrev_b32 v{t+1}, 3, v8\nv_lshl_add_u32 v{t}, v{t+1}, 1, v{t}\nv_bfe_u32 v{t+1}, v8, 1, 1\nv_add_u32 v{t}, v{t}, v{t+1}")
            q(f"v_mul_u32_u24 v{t}, 18, v{t}\nv_and_b32 v8, 1, v8\nv_add_u32 v8, v8, v{t}")
        q(f"v_mul_u32_u24 v8, 1152, v8\nv_lshl_add_u32 v{r}, v9, 4, v8")
        if n & 3: q(f"v_subrev_u32 v{r}, {1024*(n&3)}, v{r}")
def ring_groups():
    T = " ; T:ring"
    g0 = []
    for h in range(2):
        g0.append([f"s_add_u32 m0, s{S_Y[0]}, {RB + (6+h)*16384}", f"s_add_u32 s64, s{S_HB}, {h*8192}"])
        for o in (0, 1024): g0.append([f"buffer_load_dwordx4 v{V_DKS}, {sr(SRD_WS,4)}, s64 offen offset:{o} {LC} lds ; T:ring0"])
    def two():
        d = dma_dual(T)
        return [d[0] + ["s_nop 0"] + d[1]] + d[2:]
    return [g0, two() + two(), two() + two(), two()]

def wt_dma(p, srd, soff, vb=WT_V):
    p(f"s_mul_i32 s52, s{S_WAVE}, 5120\ns_mov_b32 m0, s52\ns_mul_i32 s53, s{S_WAVE}, 320\ns_add_u32 s53, s53, s{soff}")
    for n in range(5):
        if n == 4: p("s_add_u32 m0, s52, 4096\ns_nop 0")
        p(f"buffer_load_dwordx4 v{vb+n}, {sr(srd,4)}, s53 offen offset:{(n&3)*1024} {NT} lds")
def wt_reads():
    return [f"ds_read_b64_tr_b16 {ar(WT_A + 4*mi + 2*u, 2)}, v{WT_R} offset:{u*2560 + mi*64}" for mi in range(5) for u in range(2)]
def wt_stores(s):
    return [f"buffer_store_dwordx4 {ar(WT_A + 4*mi, 4)}, v{V_L16 if mi < 3 else WT_S}, {sr(SRD_WS,4)}, s{s + (mi >> 2)} offen offset:{(mi&3)*1024} {SC}" for mi in range(5)]

def epi_tile(p, x, t0=160):
    O, vl = ((OA, V_LA), (OB, V_LB))[x]
    p(f"v_rcp_f32 v9, v{vl}")
    p(f"s_lshl_b32 s53, s{S_HEAD}, 13\ns_add_u32 s53, s53, {WS_CTXB}")
    if x == 0: p(f"s_lshl_b32 s52, s{S_BLK}, 2")
    else: p(f"s_sub_u32 s52, 15, s{S_BLK}\ns_lshl_b32 s52, s52, 2")
    p(f"s_add_u32 s52, s52, s{S_WAVE}\ns_lshl_b32 s52, s52, 18\ns_add_u32 s52, s52, s53\ns_add_u32 s53, s52, 4096\nv_mov_b32 v8, v9")
    for b in range(8):
        t = t0 + (b % 2) * 16
        for e in range(8): p(f"v_accvgpr_read_b32 v{t+e}, a{O + b*8 + e}")
        for e in range(4): p(f"v_pk_mul_f32 {vr(t+2*e,2)}, {vr(t+2*e,2)}, v[8:9]")
        for e in range(4): p(f"v_cvt_pk_bf16_f32 v{t+8+e+4*((b>>1)&1)}, v{t+2*e}, v{t+2*e+1}")
        p(f"buffer_store_dwordx4 {vr(t+8+4*((b>>1)&1),4)}, v{V_L16}, {sr(SRD_WS,4)}, s{52 + (b>>2)} offen offset:{(b&3)*1024} {SC}")

def lsum(p, vl):
    p(f"v_mov_b32 v8, v{vl}\ns_nop 1\nv_permlane32_swap_b32 v{vl}, v8\ns_nop 1\nv_add_f32 v{vl}, v{vl}, v8\ns_mov_b32 s52, 0x4e800000")

def attn_b(p, mid_epi=None):
    p(f"v_add_u32 v{V_LR}, {RB}, v{V_L16}")
    p(f"s_lshl_b32 s52, s{S_WAVE}, 12\nv_add_u32 v9, s52, v{V_L16}\nv_add_u32 v{V_B[1]}, {6*16384}, v{V_LR}")
    pro = [f"ds_read_b128 {ring(8 + f)}, v{V_B[1]} offset:{f*1024}" for f in range(8)]
    p.ext(pro)
    p(f"v_add_u32 v{V_DKS}, 32768, v9\nv_add_u32 v{V_DVS}, {WS_VB}, v9")
    p(f"s_lshl_b32 s52, s{S_WAVE}, 5\nv_lshlrev_b32 v9, 2, v3\nv_sub_u32 v9, v2, v9\nv_add_u32 v{V_TD}, s52, v9")
    p(f"v_mov_b32 v{V_NEG}, {NEGBIG}\nv_mov_b32 v{V_NA}, 0\nv_mov_b32 v{V_LA}, 0\nv_mov_b32 v{V_LB}, 0")
    p(f"s_cmp_eq_u32 s{S_BLK}, 0\ns_cselect_b32 s{S_BIG0}, 0, 1000\ns_cmp_eq_u32 s{S_BLK}, 7\ns_cselect_b32 s{S_BIG7}, 0, 1000")
    for g in mask_upd(CA, V_NA, 0, S_BIG0): p.ext(g)
    p(f"v_add_u32 v{V_B[0]}, {7*16384}, v{V_LR}\ns_mov_b32 s{S_X}, {7*16384}")
    p("s_waitcnt lgkmcnt(0)")
    D = lambda par, **kw: Slot(par, 'd', 'd', 'd', V_B[par], V_B[par], dma=dma_dual(), vmn=20, **kw)
    Z0 = Slot(0, 'd', 'd', None, V_B[0], None, dma=dma_dual(), vmn=20, upd=mask_upd(CA, V_NA, 2, S_BIG0))
    for f in range(8): p(mfma(vr(SBUF(0, 1), 16), ring(8 + f), vr(QB_ + 4 * f, 4), "0" if f == 0 else vr(SBUF(0, 1), 16)))
    wt = Prog()
    wt(f"v_lshlrev_b32 v9, 2, v3\nv_add_u32 v9, v9, v4\nv_mul_u32_u24 v9, 320, v9\nv_lshl_add_u32 v9, v5, 5, v9\nv_lshl_add_u32 v9, v6, 3, v9")
    wt(f"s_mul_i32 s52, s{S_WAVE}, 5120\nv_add_u32 v{WT_R}, s52, v9\ns_cmp_eq_u32 s{S_WAVE}, 3\ns_cselect_b32 s52, {OOB}, 0\nv_or_b32 v{WT_S}, s52, v{V_L16}")
    def mx(x, vn):
        S = SBUF(0, x)
        o = [f"v_max3_f32 v{vn}, v{S}, v{S+1}, v{S+2}"] + [f"v_max3_f32 v{vn}, v{vn}, v{S+r}, v{S+r+1}" for r in range(3, 15, 2)] + [f"v_max_f32 v{vn}, v{vn}, v{S+15}"]
        o += [f"v_mov_b32 v8, v{vn}", "s_nop 1", f"v_permlane32_swap_b32 v{vn}, v8", "s_nop 1", f"v_max_f32 v{vn}, v{vn}, v8", f"v_sub_f32 v{vn}, 0, v{vn}"]
        o += [f"v_add_f32 v{S+r}, v{S+r}, v{vn}" for r in range(16)]
        return o
    hr = Z0.head_reads()
    fl = wt.l + mx(1, V_NB) + [f"v_mov_b32 v{CB+r}, v{V_NB}" for r in range(16)]
    mfA = [mfma(vr(SBUF(0, 0), 16), ring(8 + f), vr(QA_ + 4 * f, 4), vr(CA, 16) if f == 0 else vr(SBUF(0, 0), 16)) for f in range(8)]
    gaps = [[] for _ in range(8)]
    for k, r in enumerate(hr): gaps[k].append(r)
    cut = [0, 5, 10, 15, 21, 27, 33, 39]
    for g in range(8): gaps[g] += fl[cut[g]:cut[g + 1]] if g < 7 else fl[cut[7]:]
    p.ext(weave(mfA, gaps))
    p.ext(mx(0, V_NA))
    for g in mask_upd(CA, V_NA, 1, S_BIG0): p.ext(g)
    p("s_waitcnt lgkmcnt(0)\ns_nop 0")
    stamp(p, 6)
    Z1 = Slot(1, 'd', 'd', 'd', V_B[1], V_B[1], dma=dma_dual(), vmn=20, upd=mask_upd(CA, V_NA, 3, S_BIG0), first_pv=True, ring0=8)
    def R8(s): s.ring0 = 8; return s
    E, O_ = R8(D(0)), R8(D(1))
    p.ext(Z0.emit(Z1))
    p.ext(Z1.emit(E, tail=[f"s_lshl_b32 s{S_CNT}, s{S_BLK}, 1", f"s_cmp_eq_u32 s{S_BLK}, 0"]))
    p("s_cbranch_scc1 L_b_DL")
    p(f"s_cmp_eq_u32 s{S_BLK}, 1\ns_cbranch_scc1 L_b_DS0")
    p.label("L_b_dloop")
    body = E.emit(O_) + O_.emit(E, tail=[f"s_sub_u32 s{S_CNT}, s{S_CNT}, 1", f"s_cmp_gt_u32 s{S_CNT}, 2"])
    check(body + body, "dloop")
    p.ext(body)
    p("s_cbranch_scc1 L_b_dloop")
    p.label("L_b_DS0")
    for c in range(4):
        s = R8(D(c & 1, upd=mask_upd(CA, V_NA, c)))
        p.ext(s.emit(O_ if c % 2 == 0 else E))
    p.label("L_b_DL")
    DL = R8(Slot(0, 'd', 'd', 'd', V_B[0], V_B[0], dma=dma_dual(), vmn=16,
                 upd=mask_upd(CA, V_NB, 0, S_BIG7) + mask_upd(CB, V_NB, 1, S_BIG7, V_T2)))
    fix = [[f"s_sub_u32 s{S_SO}, s{S_SO}, 16384"],
           [f"s_lshr_b32 s70, s{S_WAVE}, 1", "s_lshl_b32 s70, s70, 14"], [f"s_and_b32 s71, s{S_WAVE}, 1", "s_lshl_b32 s71, s71, 12"],
           ["s_add_u32 s70, s70, s71", f"s_lshl_b32 s71, s{S_WAVE}, 11"], ["s_sub_u32 s70, s70, s71", f"s_add_u32 s{S_Y[0]}, s{S_Y[0]}, s70"],
           [f"s_cmp_eq_u32 s{S_WAVE}, 0", f"s_cselect_b32 s70, 0, {OOB}"], ["v_mov_b32 v8, s70", "v_mov_b32 v9, 1"],
           [f"s_mul_i32 s70, s{S_G}, 18432", f"s_mul_i32 s71, s{S_WAVE}, 5120"], ["s_add_u32 s70, s70, s71", f"s_add_u32 s70, s70, {WS_WOB}"], ["s_add_u32 s71, s70, 4096"]]
    T1 = R8(Slot(1, 's', 'd', 'd', V_B[1], V_B[1], dma=fix, vmn=8, adv=32768, at={27: signal(0)},
                 upd=mask_upd(CA, V_NB, 2, S_BIG7) + mask_upd(CB, V_NB, 3, S_BIG7, V_T2)))
    wr, ws_ = wt_reads(), wt_stores(70)
    at = {}
    for k in range(5): at[10 + k] = wr[2*k:2*k+2]
    for k in range(5): at[21 + 2*k] = at.get(21 + 2*k, []) + [ws_[k]]
    T2 = Slot(0, 's', 's', 'd', V_B[0], V_B[1], pvoff=16384 + 8192, dma=dma_single(0, v=False), vmn=4 + 2, adv=32768, ring0=0, at=at)
    Sg = lambda par, **kw: R8(Slot(par, kw.pop('qk', 's'), 's', 's', V_B[par], V_B[1 - par], adv=32768, **kw))
    SO, SE = Sg(1, dma=dma_single(1), vmn=8), Sg(0, dma=dma_single(0), vmn=8)
    p.ext(DL.emit(T1)); p.ext(T1.emit(T2)); p.ext(T2.emit(SO))
    p(f"s_cmp_ge_u32 s{S_G}, 36\ns_cbranch_scc1 L_wt2_skip")
    mk_srd(p, SRD1, P_AWO, 576 * 1152)
    p(f"s_cmp_lt_u32 s{S_G}, 32\ns_cbranch_scc1 L_wt2_n")
    p(f"s_sub_u32 s70, s{S_G}, 32\ns_mul_i32 s70, s70, {8*18*1152}\ns_add_u32 s70, s70, {16*1152}")
    wt_addr(p, 162, True)
    p("s_branch L_wt2_go")
    p.label("L_wt2_n")
    p(f"s_mul_i32 s70, s{S_G}, {18*1152}")
    wt_addr(p, 162, False)
    p.label("L_wt2_go")
    p("s_waitcnt lgkmcnt(8)")
    wt_dma(p, SRD1, 70, 162)
    p.label("L_wt2_skip")
    lsum(p, V_LA)
    p(f"v_cmp_nge_f32 s[{S_BAD}:{S_BAD+1}], s52, v{V_LA}")
    epi_tile(p, 0)
    p(f"s_cmp_eq_u32 s{S_BLK}, 7\ns_cbranch_scc1 L_b_S0e")
    SO1 = Sg(1, dma=dma_single(1), vmn=8 + 8 + 3)
    p.ext(SO1.emit(SE, tail=[f"s_sub_u32 s{S_CNT}, 6, s{S_BLK}", f"s_lshl_b32 s{S_CNT}, s{S_CNT}, 1"]))
    p("s_cbranch_scc0 L_b_S3")
    p.label("L_b_sloop")
    body = SE.emit(SO) + SO.emit(SE, tail=[f"s_sub_u32 s{S_CNT}, s{S_CNT}, 1", f"s_cmp_lg_u32 s{S_CNT}, 0"])
    check(body + body, "sloop")
    p.ext(body)
    p("s_cbranch_scc1 L_b_sloop")
    p.label("L_b_S3")
    S3 = Sg(0, dma=dma_single(0), vmn=8, upd=mask_upd(CA, V_NB, 0) + mask_upd(CB, V_NB, 1, None, V_T2))
    S2 = Sg(1, dma=dma_single(1, k=False), vmn=4, upd=mask_upd(CA, V_NB, 2) + mask_upd(CB, V_NB, 3, None, V_T2))
    S1 = Sg(0, dma=dma_single(0, k=False), vmn=4)
    s2at = {10: ["v_mov_b32 v28, 0"], 12: [f"buffer_load_dword v28, v28, {sr(SRD_DBG,4)}, 0 offen sc1"]}
    S0 = Sg(1, qk=None, vmn=0, at=s2at)
    F = Slot(0, None, None, 's', None, V_B[1], ring0=8)
    p.ext(S3.emit(S2)); p.ext(S2.emit(S1)); p.ext(S1.emit(S0)); p.ext(S0.emit(F))
    p("s_branch L_b_F")
    p.label("L_b_S0e")
    p("s_waitcnt lgkmcnt(0)")
    p.ext(S0.head_reads())
    p("s_waitcnt lgkmcnt(0)")
    p.ext(Sg(1, qk=None, vmn=63, at=s2at).emit(F))
    p.label("L_b_F")
    p.ext(F.emit(None))
    stamp(p, 7)
    p(f"s_cmp_ge_u32 s{S_G}, 36\ns_cbranch_scc1 L_wt2_done")
    p.ext(wt_reads())
    p(f"s_mul_i32 s60, s{S_G}, 18432\ns_mul_i32 s61, s{S_WAVE}, 5120\ns_add_u32 s60, s60, s61\ns_add_u32 s60, s60, {WS_WOA}\ns_add_u32 s61, s60, 4096\ns_waitcnt lgkmcnt(0)")
    p.ext(wt_stores(60))
    p.label("L_wt2_done")
    if mid_epi: mid_epi(p)
    lsum(p, V_LB)
    p(f"v_cmp_nge_f32 vcc, s52, v{V_LB}\ns_nop 1\ns_or_b64 vcc, vcc, s[{S_BAD}:{S_BAD+1}]\ns_cbranch_vccnz L_b_slow")
    p.label("L_b_epi")
    epi_tile(p, 1)

def attn_b_slow(p):
    p.label("L_b_slow")
    p("s_nop 15")
    for x, (Q, O, vl) in enumerate(((QA_, OA, V_LA), (QB_, OB, V_LB))):
        if x == 0: p(f"s_mov_b32 s70, s{S_BLK}")
        else: p(f"s_sub_u32 s70, 15, s{S_BLK}")
        p(f"s_lshl_b32 s70, s70, 2\ns_add_u32 s71, s70, s{S_WAVE}\ns_add_u32 s71, s71, 1\ns_lshl_b32 s70, s70, 5")
        S = SBUF(0, 0); Pp = PBUF(0, 0)
        for ps in range(2):
            if ps == 0: p(f"v_mov_b32 v{V_NA}, 0\nv_mov_b32 v{V_NB}, {NEGBIG}")
            else:
                p(f"v_mov_b32 v8, v{V_NB}\ns_nop 1\nv_permlane32_swap_b32 v{V_NB}, v8\ns_nop 1\nv_max_f32 v{V_NB}, v{V_NB}, v8\nv_sub_f32 v{V_NA}, 0, v{V_NB}\nv_mov_b32 v{vl}, 0")
                for r in range(64): p(f"v_accvgpr_write_b32 a{O+r}, 0")
            p(f"s_mov_b32 s61, s{S_HB}\ns_mov_b32 s60, s70\ns_mov_b32 s{S_CNT}, s71")
            p.label(f"L_b_sl{x}{ps}")
            for f in range(8):
                p(f"s_add_u32 s53, s61, {f*1024}\nbuffer_load_dwordx4 {ring(f)}, v{V_L16}, {sr(SRD_WS,4)}, s53 offen {LC}")
            if ps:
                for f in range(8):
                    p(f"s_add_u32 s53, s61, {WS_VB + f*1024}\nbuffer_load_dwordx4 {ring(8+f)}, v{V_L16}, {sr(SRD_WS,4)}, s53 offen {LC}")
            for g in mask_upd(CA, V_NA, 0, 60): p.ext(g)
            p("s_waitcnt vmcnt(0)\ns_nop 0")
            for f in range(8): p(mfma(vr(S, 16), ring(f), vr(Q + 4 * f, 4), vr(CA, 16) if f == 0 else vr(S, 16)))
            p("s_nop 15")
            if ps == 0:
                for r in range(16): p(f"v_max_f32 v{V_NB}, v{V_NB}, v{S+r}")
            else:
                for r in range(16): p(f"v_exp_f32 v{S+r}, v{S+r}")
                p("s_nop 0")
                for r in range(16): p(f"v_add_f32 v{vl}, v{vl}, v{S+r}")
                for k in range(8): p(f"v_cvt_pk_bf16_f32 v{Pp+k}, v{S+2*k}, v{S+2*k+1}")
                p("s_nop 1")
                for f in range(8): p(mfma(ar(O + 16 * (f & 3), 16), ring(8 + f), vr(Pp + 4 * (f >> 2), 4), ar(O + 16 * (f & 3), 16)))
                p("s_nop 15")
            p(f"s_add_u32 s61, s61, 8192\ns_sub_u32 s60, s60, 32\ns_sub_u32 s{S_CNT}, s{S_CNT}, 1\ns_cmp_lg_u32 s{S_CNT}, 0\ns_cbranch_scc1 L_b_sl{x}{ps}")
        p(f"v_mov_b32 v8, v{vl}\ns_nop 1\nv_permlane32_swap_b32 v{vl}, v8\ns_nop 1\nv_add_f32 v{vl}, v{vl}, v8")
    epi_tile(p, 0)
    p("s_branch L_b_epi")
```

```python
from attnb import *

A_KM, A_K2, A_V, A_DM = 10, 11, 12, 13
A_N = [16, 17]
A_TK4, A_VL = 20, 21
A_FL = 240
def A_Q(x, ks): return 96 + x * 8 + ks * 4
def A_C(x): return 32 + 16 * x
def A_O(x): return 64 + 16 * x
def A_S(p, x): return 112 + p * 32 + x * 16
def A_P(p, x): return 176 + p * 16 + x * 8
def A_K(p, ks): return 208 + p * 8 + ks * 4
def A_VF(p, s): return 224 + p * 8 + s * 4
S_AG, S_AC, S_AW, S_TT = 56, 57, 58, 59
S_AD = 35
S_OT, S_OM, S_O0, S_O1, S_OW, S_IT = 61, 62, 63, 64, 65, 66
DEPTH = 8
FB0 = 96

def chunk_dma(tag):
    out = [[f"s_add_u32 m0, s{S_AD}, s{S_AW}"]]
    for j in range(5):
        g = [f"buffer_load_dwordx4 v{A_DM}, {sr(SRD_WS,4)}, s{S_AG} offen offset:{(j&3)*1024} {LC} lds ; T:{tag}"]
        if j == 3: g += ["s_add_u32 m0, m0, 4096", f"s_add_u32 s{S_AG}, s{S_AG}, 4096"]
        out.append(g)
    out.append([f"s_add_u32 s{S_AG}, s{S_AG}, {AH_CS - 4096}", f"s_add_u32 s{S_AD}, s{S_AD}, {AH_CS}"])
    out.append([f"s_cmp_eq_u32 s{S_AD}, {3*AH_CS}", f"s_cselect_b32 s{S_AD}, 0, s{S_AD}"])
    return out

class Out:
    def __init__(s, nm): s.nm = nm; s.nl = 2 + nm
    def F(s, slot, i): return ar(FB0 + (slot * s.nl + i) * 4, 4)
    def acc(s, xi, mi): return ar((mi * 2 + xi) * 16, 16)
    def mf(s, slot, first):
        return [mfma(s.acc(xi, mi), s.F(slot, 2 + mi), s.F(slot, xi), "0" if first else s.acc(xi, mi)) for mi in range(s.nm) for xi in range(2)]
    def ldc(s, slot, tag, imm):
        return [[f"buffer_load_dwordx4 {s.F(slot,x)}, v{V_L16}, {sr(SRD_WS,4)}, s{(S_O0, S_O1)[x]} offen offset:{imm} {LC} ; T:{tag}"] for x in range(2)]
    def ldw(s, slot, tag):
        o = [[f"buffer_load_dwordx4 {s.F(slot,2+mi)}, v{V_L16}, {sr(SRD_WS,4)}, s{S_OW} offen offset:{mi*1024} {LC} ; T:{tag}"] for mi in range(s.nm)]
        o[-1].append(f"s_add_u32 s{S_OW}, s{S_OW}, 18432")
        return o
    def loads(s, k, tag):
        slot = k % DEPTH
        o = s.ldc(slot, tag, (k % 4) * 1024)
        if k % 4 == 3:
            o[0].append(f"s_add_u32 s{S_O0}, s{S_O0}, 4096"); o[1].append(f"s_add_u32 s{S_O1}, s{S_O1}, 4096")
        return o + s.ldw(slot, tag)

def a_rd(par, rel, k=True, v=True):
    out = []
    if k:
        r = (rel + 2) % 8
        out += [f"ds_read_b128 {vr(A_K(par,0),4)}, v{A_KM} offset:{r*1024}", f"ds_read_b32 v{A_K(par,1)}, v{A_K2} offset:{r*128}"]
    if v: out += [f"ds_read_b128 {vr(A_VF(par,s),4)}, v{A_V} offset:{rel*1280 + s*640}" for s in range(2)]
    return out

NEXTV = [0]
def a_slot(rel, qk=True, sm=True, pv=True, first_pv=False, rdk=True, rdv=True, pre=None, bmf=None, vm=None, post=None, carry=None):
    par = rel & 1
    mf = []
    if qk:
        for ks in range(2):
            for x in range(2):
                d = vr(A_S(1 - par, x), 16)
                mf.append(mfma(d, vr(A_K(1 - par, ks), 4), vr(A_Q(x, ks), 4), vr(A_C(x), 16) if ks == 0 else d))
    if pv:
        for s in range(2):
            for x in range(2):
                d = vr(A_O(x), 16)
                mf.append(mfma(d, vr(A_VF(1 - par, s), 4), vr(A_P(1 - par, x) + 4 * s, 4), "0" if (first_pv and s == 0) else d))
    waits = {}; after = {}
    if bmf:
        seq = []
        for (w, ms, ld) in bmf:
            for j, m in enumerate(ms): seq.append((m, w if j == 0 else None, ld if j == len(ms) - 1 else None))
        m2 = []; na = len(mf); nb = len(seq); ib = 0
        for k, m in enumerate(mf):
            m2.append(m)
            while ib < nb and ib < (k + 1) * nb // na:
                if seq[ib][1]: waits[len(m2)] = seq[ib][1]
                if seq[ib][2] is not None: after[len(m2)] = seq[ib][2]
                m2.append(seq[ib][0]); ib += 1
        mf = m2
    va = []
    if sm:
        el = [A_S(par, x) + r for x in range(2) for r in range(16)]
        for e in range(32):
            va.append(f"v_exp_f32 v{el[e]}, v{el[e]}")
            if e >= 3 and e % 2 == 1:
                k = e - 3
                va.append(f"v_cvt_pk_bf16_f32 v{A_P(par, k // 16) + (k % 16) // 2}, v{el[k]}, v{el[k+1]}")
    M = len(mf)
    mem = [[] for _ in range(M)]; val = [[] for _ in range(M)]; end = [[] for _ in range(M)]
    if pre: mem[0] += pre
    rd = a_rd(par, rel, rdk, rdv)
    for j, r in enumerate(rd): mem[min(j // 2, M - 1)].append(r)
    q = [(1 if pre else 0, grp) for grp in (vm or [])]
    for pos in sorted(after): q += [(pos, grp) for grp in after[pos]]
    g = NEXTV[0]; spill = []
    step = 2 if M > 8 else 1
    for (lo, grp) in q:
        g = max(g, lo)
        if g >= M or spill: spill.append(grp); continue
        mem[g] += grp
        if any(I(x).kind in ("dma", "vld", "vst", "vat") for x in grp): g += step
        elif "m0" in grp[-1].split(",")[0]: g += 1
    NEXTV[0] = max(0, g - M)
    if carry is not None: carry[:] = spill
    else: assert not spill
    tot = sum(cost(x) for x in va); acc_ = 0
    for x in va:
        val[min(M - 1, acc_ * M // tot)].append(x); acc_ += cost(x)
    for pos, w in waits.items(): end[pos - 1].append(w)
    if post: val[M - 1] += post
    if rd: end[M - 1].append("s_waitcnt lgkmcnt(0)")
    if sm:
        if not end[M - 1] and not post: end[M - 1].append("s_nop 0")
        end[M - 1].append(f"v_cvt_pk_bf16_f32 v{A_P(par, 1) + 7}, v{el[30]}, v{el[31]}")
    return weave(mf, [mem[k] + val[k] + end[k] for k in range(M)])

KBUMP = [f"s_add_u32 s{S_AC}, s{S_AC}, {AH_CS}", f"s_cmp_eq_u32 s{S_AC}, {3*AH_CS}", f"s_cselect_b32 s{S_AC}, 0, s{S_AC}"]
KADDR = [f"v_add_u32 v{A_KM}, s{S_AC}, v{V_L16}", f"v_add_u32 v{A_K2}, s{S_AC}, v{A_TK4}"]
VADDR = [f"v_add_u32 v{A_V}, s{S_AC}, v{A_VL}"]

def iteration(it, o, ks, carry, last=False, first=False, extra=None, kmax=64, rels=range(8)):
    lines = []
    for rel in rels:
        kw = {}
        vm = list(carry)
        bm = []
        for k in ks[rel]:
            bm.append((f"VMWAIT b{k}", o.mf(k % DEPTH, k == 0), o.loads(k + DEPTH, f"b{k+DEPTH}") if k + DEPTH < kmax else []))
        if first and rel == 0: kw.update(pv=False)
        if first and rel == 1: kw.update(first_pv=True)
        if rel == 5 and not last: kw.update(post=KADDR); vm = [KBUMP[:1], KBUMP[1:]] + vm
        if rel == 6 and not last: kw.update(pre=[f"VMWAIT c{it+1}", "s_barrier"])
        if rel == 7 and not last: kw.update(post=VADDR)
        if rel == 6 and not last and (it + 2 <= 7): vm = vm + chunk_dma(f"c{it+2}")[:3]
        if rel == 7 and not last and (it + 2 <= 7): vm = vm + chunk_dma(f"c{it+2}")[3:]
        if last and rel >= 6: kw.update(rdk=False)
        if last and rel == 7: kw.update(qk=False)
        if extra and rel in extra:
            e = extra[rel]
            if 'pre' in e: kw['pre'] = kw.get('pre', []) + e['pre']
            vm = vm + e.get('vm', [])
        lines += a_slot(rel, vm=vm, bmf=bm, carry=carry, **kw)
    return lines

def flag_test(p):
    p(f"v_and_b32 v{A_FL}, v{A_FL}, v{A_FL+1}\nv_and_b32 v{A_FL+2}, v{A_FL+2}, v{A_FL+3}\nv_and_b32 v{A_FL}, v{A_FL}, v{A_FL+2}")
    p(f"v_cmp_ne_u32 vcc, 1, v{A_FL}\ns_cmp_lg_u64 vcc, 0")
def flag_load(which): return f"buffer_load_dwordx4 {vr(A_FL,4)}, v{V_L16}, {sr(SRD_WS,4)}, s67 offen offset:{which*1024} sc1"
def flag_set(which):
    return ["s_mov_b64 exec, 1", f"buffer_store_dword v9, v8, {sr(SRD_WS,4)}, s67 offen offset:{which*1024} sc1", "s_mov_b64 exec, -1"]

def mid_epi(p):
    p(f"s_waitcnt vmcnt(0)\nv_readfirstlane_b32 s52, v28\ns_cmp_lt_u32 s52, 256\ns_cbranch_scc1 L_s2spin")
    p.label("L_s2ok")
    p(f"s_mul_i32 s{S_AG}, s{S_HEAD}, {AH_STRIDE}\ns_add_u32 s{S_AG}, s{S_AG}, {WS_AH}\ns_mul_i32 s{S_AW}, s{S_WAVE}, 5120\ns_mov_b32 s{S_AD}, 0")
    p(f"v_add_u32 v{A_DM}, s{S_AW}, v{V_L16}")
    p(f"s_lshl_b32 s{S_TT}, s{S_BLK}, 3\ns_lshl_b32 s52, s{S_WAVE}, 1\ns_add_u32 s{S_TT}, s{S_TT}, s52")
    p(f"s_mul_i32 s53, s{S_HEAD}, {QA_STRIDE}\ns_mul_i32 s54, s{S_BLK}, {QA_CS}\ns_add_u32 s53, s53, s54\ns_add_u32 s53, s53, {WS_QA}")
    p(f"s_lshl_b32 s54, s52, 7\ns_add_u32 s54, s54, s53\ns_add_u32 s54, s54, {AH_K2}\ns_lshl_b32 s52, s52, 10\ns_add_u32 s53, s53, s52")
    p("v_lshlrev_b32 v4, 2, v2\nv_lshlrev_b32 v5, 31, v3\nv_or_b32 v5, v5, v4")
    d = chunk_dma("c0")
    p.ext(d[0] + ["s_nop 0"] + sum(d[1:5], []) + ["s_nop 0"] + sum(d[5:], []))
    for x in range(2):
        p(f"buffer_load_dwordx4 {vr(A_Q(x,0),4)}, v{V_L16}, {sr(SRD_WS,4)}, s53 offen offset:{x*1024} {LC}")
        p(f"buffer_load_dword v{A_Q(x,1)}, v5, {sr(SRD_WS,4)}, s54 offen offset:{x*128} {LC}")
    p("s_barrier")
    d = chunk_dma("c1")
    p.ext(d[0] + ["s_nop 0"] + sum(d[1:5], []) + ["s_nop 0"] + sum(d[5:], []))

def reduce_out(p, o, coloff, before_bar=None, between=None, weave_in=()):
    nt = 2 * o.nm
    RL = 61440; T = 200
    p(f"s_lshl_b32 s52, s{S_WAVE}, 12\ns_add_u32 s52, s52, {RL}\nv_add_u32 v6, s52, v{V_L16}\nv_add_u32 v7, 65536, v6")
    wv = list(weave_in)
    for t in range(nt):
        for j in range(4):
            p(f"ds_write_b128 v{6 if t < 4 else 7}, {ar(t*16 + 4*j, 4)} offset:{(t%4)*16384 + j*1024}")
            if wv: p.ext(wv.pop(0))
    for g in wv: p.ext(g)
    p(f"s_and_b32 s52, s{S_WAVE}, 1\ns_lshr_b32 s53, s{S_WAVE}, 1\ns_lshl_b32 s54, s52, 14\ns_lshl_b32 s55, s53, 11\ns_add_u32 s54, s54, s55\ns_add_u32 s54, s54, {RL}")
    p(f"v_add_u32 v6, s54, v{V_L16}\nv_add_u32 v7, 65536, v6")
    p(f"s_add_u32 s52, s52, s{S_OT}\ns_mul_i32 s52, s52, {32*2304}\ns_lshl_b32 s53, s53, 5\ns_add_u32 s52, s52, s53\ns_lshl_b32 s53, s{S_OM}, 6\ns_add_u32 s54, s52, s53")
    p("v_mul_u32_u24 v4, 2304, v2\nv_lshl_add_u32 v4, v3, 4, v4")
    if before_bar: before_bar(p)
    p("s_waitcnt lgkmcnt(0)\ns_barrier")
    if between: between(p)
    def rd(mi):
        for w in range(4):
            for j in range(2): p(f"ds_read_b128 {vr(T + (w*8 + 4*j if mi % 2 == 0 else -88 + w*8 + 4*j), 4)}, v{6 if mi < 2 else 7} offset:{(mi%2)*32768 + w*4096 + j*1024}")
    rd(0)
    for mi in range(o.nm):
        if mi + 1 < o.nm: rd(mi + 1)
        A = T if mi % 2 == 0 else T - 88
        p(f"s_waitcnt lgkmcnt({8 if mi + 1 < o.nm else 0})")
        for r in range(0, 8, 2): p(f"v_pk_add_f32 {vr(A+r,2)}, {vr(A+r,2)}, {vr(A+8+r,2)}\nv_pk_add_f32 {vr(A+16+r,2)}, {vr(A+16+r,2)}, {vr(A+24+r,2)}")
        for r in range(0, 8, 2): p(f"v_pk_add_f32 {vr(A+r,2)}, {vr(A+r,2)}, {vr(A+16+r,2)}")
        D = 232 + 4 * (mi % 2)
        for k in range(4): p(f"v_cvt_pk_bf16_f32 v{D+k}, v{A+2*k}, v{A+2*k+1}")
        p(f"s_nop 1\nv_permlane32_swap_b32 v{D}, v{D+2}\nv_permlane32_swap_b32 v{D+1}, v{D+3}")
        p(f"buffer_store_dwordx4 {vr(D,4)}, v4, {sr(SRD1,4)}, s54 offen offset:{coloff*2 + mi*64}")

def a_epilogue(p):
    p(f"v_rcp_f32 v{A_N[0]}, v{A_N[0]}\nv_rcp_f32 v{A_N[1]}, v{A_N[1]}")
    p(f"s_mul_i32 s52, s{S_TT}, {36*1024}\ns_add_u32 s52, s52, {WS_CTXA}\ns_lshl_b32 s53, s{S_HEAD}, 10\ns_add_u32 s54, s52, s53")
    p(f"s_lshr_b32 s53, s{S_HEAD}, 3\ns_add_u32 s53, s53, 32\ns_lshl_b32 s53, s53, 10\ns_add_u32 s55, s52, s53")
    p(f"s_bfe_u32 s53, s{S_HEAD}, {2 | (1 << 16)}\ns_lshl_b32 s53, s53, 9\ns_add_u32 s55, s55, s53\ns_and_b32 s53, s{S_HEAD}, 3\ns_lshl_b32 s53, s53, 2\ns_add_u32 s55, s55, s53")
    p("v_lshlrev_b32 v4, 4, v2\nv_lshlrev_b32 v5, 31, v3\nv_or_b32 v5, v5, v4")
    for x in range(2):
        O = A_O(x)
        for r in range(10): p(f"v_mul_f32 v{O+r}, v{O+r}, v{A_N[x]}")
        for k in range(5): p(f"v_cvt_pk_bf16_f32 v{O+k}, v{O+2*k}, v{O+2*k+1}")
        p(f"buffer_store_dwordx4 {vr(O,4)}, v{V_L16}, {sr(SRD_WS,4)}, s54 offen {SC} ; T:ca")
        p(f"buffer_store_dword v{O+4}, v5, {sr(SRD_WS,4)}, s55 offen {SC} ; T:ca")
        if x == 0: p(f"s_add_u32 s54, s54, {36*1024}\ns_add_u32 s55, s55, {36*1024}")
def a_lget(p):
    for x in range(2): p(f"v_mov_b32 v{A_N[x]}, v{A_O(x)+10}\nv_mov_b32 v{8+x}, v{A_O(x)+10}")
    p(f"s_nop 1\nv_permlane32_swap_b32 v{A_N[0]}, v8\nv_permlane32_swap_b32 v{A_N[1]}, v9\ns_nop 1")

def tail_variant(p, o, na, lab, base, S0, final):
    nm = o.nm
    q = Prog()
    regs = [vr(32 + 4 * j, 4) for j in range(20)] + [ar(FB0 + 4 * j, 4) for j in range(40)]
    def free_at(j):
        if j < 20: return 0
        bj = (j - 20) // o.nl
        return 0 if bj >= DEPTH else max(k for k in range(56, 64) if k % DEPTH == bj) + 1
    order = sorted(range(60), key=free_at)[:18 * na]
    WA = lambda k, mi: regs[order[k * na + mi]]
    wl = []
    for k in range(18):
        for mi in range(na):
            g = [f"buffer_load_dwordx4 {WA(k,mi)}, v{V_L16}, {sr(SRD_WS,4)}, s60 offen offset:{mi*1024} {LC}"]
            if mi == na - 1: g.append("s_add_u32 s60, s60, 18432")
            wl.append((free_at(order[k * na + mi]), g))
    if na == 2: q("s_lshl_b32 s34, s68, 1")
    else: q("s_mul_i32 s34, s68, 3\ns_sub_u32 s34, s34, 6")
    q(f"s_lshr_b32 s52, s{S_WAVE}, 1\ns_mul_i32 s60, s52, {18*18432}\ns_lshl_b32 s53, s34, 10\ns_add_u32 s60, s60, s53\ns_add_u32 s60, s60, {WS_WOA}")
    pend = []; g_ = 0
    for k in range(56 - S0, 64):
        q(f"VMWAIT b{k}")
        if k == 58: q("VMWAIT ca\ns_barrier"); q.ext(flag_set(1))
        mf = o.mf(k % DEPTH, False)
        gaps = []
        for j in range(len(mf)):
            g_ += 1
            if pend: gaps.append(pend.pop(0))
            elif wl and wl[0][0] <= k and k >= 56 and g_ % 2 == 0: gaps.append(wl.pop(0)[1])
            else: gaps.append([])
        q.ext(weave(mf, gaps))
        if k + DEPTH < 64: pend += o.loads(k + DEPTH, f"b{k+DEPTH}")
    assert not pend
    p.ext(resolve_vm(base + q.l)[len(base):])
    stamp2(p, 6)
    p("s_nop 3")
    def rest_w(p):
        p(flag_load(1))
    reduce_out(p, o, 576, rest_w, None, [g for _, g in wl])
    CXA = lambda k: vr(112 + 4 * k, 4)
    p(f"s_and_b32 s52, s{S_WAVE}, 1\ns_add_u32 s52, s52, s{S_OT}\ns_mul_i32 s{S_O0}, s52, {36*1024}\ns_lshr_b32 s53, s{S_WAVE}, 1\ns_mul_i32 s53, s53, {18*1024}")
    p(f"s_add_u32 s{S_O0}, s{S_O0}, s53\ns_add_u32 s{S_O0}, s{S_O0}, {WS_CTXA}")
    p(f"s_waitcnt vmcnt({nm})")
    flag_test(p)
    p(f"s_cbranch_scc1 L_faspin_{lab}")
    p.label(f"L_faok_{lab}"); stamp2(p, 7)
    for k in range(18):
        p(f"buffer_load_dwordx4 {CXA(k)}, v{V_L16}, {sr(SRD_WS,4)}, s{S_O0} offen offset:{(k%4)*1024} {LC}")
        if k % 4 == 3: p(f"s_add_u32 s{S_O0}, s{S_O0}, 4096")
    AC = lambda mi: vr(184 + 16 * mi, 16)
    p(f"s_lshl_b32 s54, s{S_WAVE}, 13\nv_add_u32 v6, s54, v{V_L16}\ns_xor_b32 s54, s54, 16384\nv_add_u32 v7, s54, v{V_L16}")
    p(f"s_mul_i32 s52, s52, {32*2304}\ns_lshr_b32 s53, s{S_WAVE}, 1\ns_lshl_b32 s53, s53, 5\ns_add_u32 s52, s52, s53\ns_lshl_b32 s53, s34, 6\ns_add_u32 s54, s52, s53")
    for k in range(18):
        if k % 2 == 0: p(f"s_waitcnt vmcnt({16 - k})")
        for mi in range(na): p(mfma(AC(mi), WA(k, mi), CXA(k), "0" if k == 0 else AC(mi)))
    stamp2(p, 8)
    p(f"s_cmp_ge_u32 s{S_WAVE}, 2\ns_nop 9\ns_cbranch_scc1 L_x1_{lab}")
    for kh in range(2):
        if kh: p.label(f"L_x1_{lab}")
        for mi in range(na):
            for j in range(2): p(f"ds_write_b128 v6, {vr(184 + 16*mi + 8*(1-kh) + 4*j, 4)} offset:{mi*2048 + j*1024}")
        p("s_waitcnt lgkmcnt(0)\ns_barrier")
        for mi in range(na):
            for j in range(2): p(f"ds_read_b128 {vr(112 + 8*mi + 4*j, 4)}, v7 offset:{mi*2048 + j*1024}")
        for mi in range(na):
            A = 184 + 16 * mi + 8 * kh; D = 144 + 4 * mi
            p(f"s_waitcnt lgkmcnt({2*(na-1-mi)})")
            for r in range(0, 8, 2): p(f"v_pk_add_f32 {vr(A+r,2)}, {vr(A+r,2)}, {vr(112+8*mi+r,2)}")
            for k in range(4): p(f"v_cvt_pk_bf16_f32 v{D+k}, v{A+2*k}, v{A+2*k+1}")
            p(f"s_nop 1\nv_permlane32_swap_b32 v{D}, v{D+2}\nv_permlane32_swap_b32 v{D+1}, v{D+3}")
            p(f"buffer_store_dwordx4 {vr(D,4)}, v4, {sr(SRD1,4)}, s54 offen offset:{mi*64}")
        if not (kh == 1 and final): p("s_branch L_fin")

def run(p):
    attn_b(p, mid_epi=mid_epi)
    stamp(p, 8)
    for x in range(2):
        for r in range(1, 4): p(f"v_mov_b32 v{A_Q(x,1)+r}, 0\nv_mov_b32 v{A_K(x,1)+r}, 0")
    p(f"v_lshlrev_b32 v{A_TK4}, 2, v2\nv_add_u32 v{A_TK4}, {AH_K2}, v{A_TK4}")
    p(f"v_min_u32 v6, 19, v2\nv_lshlrev_b32 v6, 4, v6\nv_mul_u32_u24 v7, 320, v3\nv_add_u32 v6, v6, v7\nv_add_u32 v{A_VL}, {AH_V}, v6")
    p(f"v_mov_b32 v{A_KM}, v{V_L16}\nv_mov_b32 v{A_K2}, v{A_TK4}\nv_mov_b32 v{A_V}, v{A_VL}\ns_mov_b32 s{S_AC}, 0")
    mk_srd(p, SRD1, P_OUT, 2048 * 1152 * 2)
    p(f"s_lshr_b32 s52, s{S_J}, 3\ns_lshl_b32 s{S_OT}, s{S_XCD}, 2\ns_add_u32 s{S_OT}, s{S_OT}, s52\ns_lshl_b32 s{S_OT}, s{S_OT}, 1")
    p(f"s_and_b32 s68, s{S_J}, 7\ns_lshl_b32 s{S_OM}, s68, 1\ns_add_u32 s{S_OM}, s{S_OM}, 2\ns_mul_i32 s52, s68, 3\ns_cmp_lt_u32 s68, 2\ns_cselect_b32 s{S_OM}, s52, s{S_OM}")
    p(f"s_lshl_b32 s52, s{S_WAVE}, 16\ns_lshl_b32 s{S_O0}, s{S_OT}, 18\ns_add_u32 s{S_O0}, s{S_O0}, s52\ns_add_u32 s{S_O0}, s{S_O0}, {WS_CTXB}\ns_add_u32 s{S_O1}, s{S_O0}, 262144")
    p(f"s_mul_i32 s{S_OW}, s{S_WAVE}, {64*18432}\ns_lshl_b32 s53, s{S_OM}, 10\ns_add_u32 s{S_OW}, s{S_OW}, s53\ns_add_u32 s{S_OW}, s{S_OW}, {WS_WOB}")
    p(f"s_mov_b32 s67, {WS_FLAG}\ns_lshl_b32 s52, s{S_G}, 2\ns_cmp_eq_u32 s{S_WAVE}, 0\ns_cselect_b32 s69, s52, {OOB}")
    p("s_waitcnt vmcnt(13)\ns_barrier")
    p.ext([f"ds_read_b128 {vr(A_K(0,0),4)}, v{A_KM}", f"ds_read_b32 v{A_K(0,1)}, v{A_K2}",
           f"ds_read_b128 {vr(A_K(1,0),4)}, v{A_KM} offset:1024", f"ds_read_b32 v{A_K(1,1)}, v{A_K2} offset:128", "s_waitcnt lgkmcnt(0)"])
    for x in range(2):
        for ks in range(2):
            d = vr(A_S(0, x), 16)
            p(mfma(d, vr(A_K(0, ks), 4), vr(A_Q(x, ks), 4), "0" if ks == 0 else d))
    p("s_nop 9")
    for x in range(2):
        S = A_S(0, x); vn = A_N[x]
        p(f"v_max3_f32 v{vn}, v{S}, v{S+1}, v{S+2}")
        for r in range(3, 15, 2): p(f"v_max3_f32 v{vn}, v{vn}, v{S+r}, v{S+r+1}")
        p(f"v_max_f32 v{vn}, v{vn}, v{S+15}")
    p(f"v_mov_b32 v8, v{A_N[0]}\nv_mov_b32 v9, v{A_N[1]}\ns_nop 1\nv_permlane32_swap_b32 v{A_N[0]}, v8\nv_permlane32_swap_b32 v{A_N[1]}, v9\ns_nop 1")
    p(f"v_max_f32 v{A_N[0]}, v{A_N[0]}, v8\nv_max_f32 v{A_N[1]}, v{A_N[1]}, v9")
    for x in range(2):
        for r in range(16): p(f"v_sub_f32 v{A_S(0,x)+r}, v{A_S(0,x)+r}, v{A_N[x]}\nv_sub_f32 v{A_C(x)+r}, 0, v{A_N[x]}")
    p("v_mov_b32 v8, s69\nv_mov_b32 v9, 1")
    E8 = [[] for _ in range(8)]
    CK = int(ENV("FBCK", "5"))
    it0 = iteration(0, None, E8, [], first=True, rels=range(CK),
                    extra={1: dict(pre=["s_waitcnt vmcnt(0)", "s_barrier"], vm=[flag_set(0)]), CK - 1: dict(vm=[[flag_load(0) + " ; T:fb"]])})
    p.ext(resolve_vm(it0 + ["VMWAIT fb"]))
    flag_test(p)
    p("s_cbranch_scc1 L_fbspin")
    p.label("L_fbok")
    stamp(p, 9); stamp2(p, 1)
    p("s_cmp_lt_u32 s68, 2\ns_cbranch_scc0 L_o_two")
    for nm, lab in ((3, "t"), (2, "d")):
        if nm == 2: p.label("L_o_two")
        o = Out(nm)
        carry = []; NEXTV[0] = 0
        first = sum((o.loads(k, f"b{k}") for k in range(DEPTH)), [])
        S0 = int(ENV("BST", "3"))
        nsl = 8 - CK + S0
        per = -(-len(first) // nsl)
        ex0 = {r: dict(vm=first[(r-CK)*per:(r-CK+1)*per]) for r in range(CK, 8)}
        ex1 = {r: dict(vm=first[(r+8-CK)*per:(r+9-CK)*per]) for r in range(S0)}
        its = [[x for x in iteration(0, o, E8, carry, extra=ex0, rels=range(CK, 8)) if x != "VMWAIT c1"]]
        its.append(iteration(1, o, [[] if r < S0 else [r - S0] for r in range(8)], carry, extra=ex1))
        cnt = {7: dict(vm=[[f"s_sub_u32 s{S_IT}, s{S_IT}, 1"]])}
        for it in range(2, 6): its.append(iteration(it, o, [[8 * (it - 1) - S0 + r] for r in range(8)], carry, extra=cnt))
        pf = [[f"s_lshl_b32 s52, s{S_J}, 2", f"s_add_u32 s52, s52, s{S_WAVE}"], [f"s_mul_i32 s52, s52, {41*128}", f"s_add_u32 s52, s52, {WS_WOA}"],
              [f"v_lshlrev_b32 v245, 7, v{V_LANE}", f"buffer_load_dword v244, v245, {sr(SRD_WS,4)}, s52 offen"]]
        its.append(iteration(6, o, [[40 - S0 + r] for r in range(8)], carry, extra={2: dict(vm=pf)}))
        its.append(iteration(7, o, [[48 - S0 + r] for r in range(8)], carry, last=True))
        fin = a_slot(0, qk=False, sm=False, rdk=False, rdv=False, vm=list(carry), carry=carry)
        q = Prog()
        q.ext(sum(carry, []))
        q("s_nop 10")
        a_lget(q)
        q(f"s_mov_b32 s52, 0x4e800000\nv_cmp_nge_f32 vcc, s52, v{A_N[0]}\nv_cmp_nge_f32 s[70:71], s52, v{A_N[1]}\ns_mov_b32 s{S_IT}, {nm}\ns_or_b64 vcc, vcc, s[70:71]")
        q("s_cbranch_vccnz L_a_slow")
        q.label(f"L_a_epi_{lab}")
        a_epilogue(q)
        q("v_mov_b32 v8, s69\nv_mov_b32 v9, 1")
        stamp2(q, 5)
        head = q
        base = sum(its, []) + fin + head.l
        allr = resolve_vm(base)
        cut = [0]
        for x in its: cut.append(cut[-1] + len(x))
        strip = lambda l: [x.split(" ; T:")[0] for x in l]
        seg = [strip(allr[cut[k]:cut[k+1]]) for k in range(len(its))]
        assert seg[3] == seg[4] == seg[5], "loop not in steady state"
        loop_from = 2 if seg[2] == seg[3] else 3
        check(seg[3] * 2, "mloop")
        for k in range(loop_from): p.ext(seg[k])
        stamp2(p, 2)
        p(f"s_mov_b32 s{S_IT}, {6 - loop_from}")
        p.label(f"L_m_{lab}")
        p.ext(seg[3])
        p(f"s_cmp_lg_u32 s{S_IT}, 0\ns_cbranch_scc1 L_m_{lab}")
        stamp2(p, 3)
        p.ext(allr[cut[6]:])
        if nm == 2: p(f"s_cmp_ge_u32 s68, 6\ns_cbranch_scc1 L_tail_d3")
        for na in ((2,) if nm == 3 else (2, 3)):
            lb = f"{lab}{na}"
            if na == 3: p.label("L_tail_d3")
            tail_variant(p, o, na, lb, base, S0, final=(nm == 2 and na == 3))
    p.label("L_fin")

def tail(p):
    spin(p, "L_s2spin", "L_s2ok", ["v_mov_b32 v28, 0", f"buffer_load_dword v28, v28, {sr(SRD_DBG,4)}, 0 offen sc1"],
         ["v_readfirstlane_b32 s52, v28", "s_cmp_lt_u32 s52, 256"], 53)
    q = Prog(); flag_test(q)
    spin(p, "L_fbspin", "L_fbok", [flag_load(0)], q.l, 53)
    for lab in ("t2", "d2", "d3"): spin(p, f"L_faspin_{lab}", f"L_faok_{lab}", [flag_load(1)], q.l, 53)
    p.label("L_a_slow")
    p("s_waitcnt vmcnt(0)")
    for ps in range(2):
        if ps == 0:
            for x in range(2):
                p(f"v_mov_b32 v{A_N[x]}, {NEGBIG}")
                for r in range(16): p(f"v_mov_b32 v{A_C(x)+r}, 0")
        else:
            p(f"v_mov_b32 v8, v{A_N[0]}\nv_mov_b32 v9, v{A_N[1]}\ns_nop 1\nv_permlane32_swap_b32 v{A_N[0]}, v8\nv_permlane32_swap_b32 v{A_N[1]}, v9\ns_nop 1")
            p(f"v_max_f32 v{A_N[0]}, v{A_N[0]}, v8\nv_max_f32 v{A_N[1]}, v{A_N[1]}, v9")
            for x in range(2):
                for r in range(16): p(f"v_sub_f32 v{A_C(x)+r}, 0, v{A_N[x]}\nv_mov_b32 v{A_O(x)+r}, 0")
        p("s_mov_b32 s52, 0")
        p.label(f"L_a_sl{ps}")
        p(f"s_lshr_b32 s53, s52, 3\ns_mul_i32 s53, s53, {AH_CS}\ns_mul_i32 s54, s{S_HEAD}, {AH_STRIDE}\ns_add_u32 s53, s53, s54\ns_add_u32 s53, s53, {WS_AH}\ns_and_b32 s54, s52, 7")
        p(f"s_lshl_b32 s55, s54, 10\ns_add_u32 s55, s55, s53\nbuffer_load_dwordx4 {vr(A_K(0,0),4)}, v{V_L16}, {sr(SRD_WS,4)}, s55 offen {LC}")
        p(f"s_lshl_b32 s55, s54, 7\ns_add_u32 s55, s55, s53\nbuffer_load_dword v{A_K(0,1)}, v{A_TK4}, {sr(SRD_WS,4)}, s55 offen {LC}")
        p(f"s_mul_i32 s55, s54, 1280\ns_add_u32 s55, s55, s53")
        for s in range(2): p(f"buffer_load_dwordx4 {vr(A_VF(0,s),4)}, v{A_VL}, {sr(SRD_WS,4)}, s55 offen offset:{s*640} {LC}")
        p("s_waitcnt vmcnt(0)")
        for ks in range(2):
            for x in range(2):
                d = vr(A_S(0, x), 16)
                p(mfma(d, vr(A_K(0, ks), 4), vr(A_Q(x, ks), 4), vr(A_C(x), 16) if ks == 0 else d))
        p("s_nop 15")
        for x in range(2):
            S = A_S(0, x)
            if ps == 0:
                for r in range(16): p(f"v_max_f32 v{A_N[x]}, v{A_N[x]}, v{S+r}")
            else:
                for r in range(16): p(f"v_exp_f32 v{S+r}, v{S+r}")
                p("s_nop 0")
                for k in range(8): p(f"v_cvt_pk_bf16_f32 v{A_P(0,x)+k}, v{S+2*k}, v{S+2*k+1}")
        if ps:
            p("s_nop 1")
            for s in range(2):
                for x in range(2): p(mfma(vr(A_O(x), 16), vr(A_VF(0, s), 4), vr(A_P(0, x) + 4 * s, 4), vr(A_O(x), 16)))
            p("s_nop 15")
        p(f"s_add_u32 s52, s52, 1\ns_cmp_lt_u32 s52, 64\ns_cbranch_scc1 L_a_sl{ps}")
    a_lget(p)
    p(f"s_cmp_eq_u32 s{S_IT}, 3\ns_cbranch_scc1 L_a_epi_t\ns_branch L_a_epi_d")
```

```python
from asmlib import *
import os
WSOFF = int(os.environ.get('WSOFF', '0')) << 20

NAME = "concat_heads__softmax_full_mha__compressed_kv_cla__prompt"
MB = 1 << 20
WS_KB   = 0
WS_VB   = 16 * MB
WS_CTXB = 33 * MB
WS_AH   = 50 * MB
AH_CS = 20480
AH_STRIDE = 8 * AH_CS
AH_K2 = 8192
AH_V  = 9216
WS_QA   = 56 * MB
QA_CS = 9216
QA_STRIDE = 8 * QA_CS
WS_CTXA = 59 * MB
WS_WOB  = 62 * MB
WS_WOA  = WS_WOB + 256 * 18 * 1024
WS_FLAG = 68 * MB
WS_SIZE = 256 * MB
SRD_DBG = 72

P_AX, P_AWQKV, P_AWO, P_BX, P_CKV, P_WQ, P_WUK, P_WUV, P_BWO, P_OUT, P_DBG, P_WS = range(4, 28, 2)
S_WAVE, S_XCD, S_J, S_HEAD, S_BLK, S_G = 28, 29, 30, 31, 32, 33
SRD_WS, SRD1, SRD2, SRD3 = 36, 40, 44, 48
V_TID, V_LANE = 0, 1

def mk_srd(p, d, ptr, size):
    p(f"s_mov_b32 s{d}, s{ptr}\ns_mov_b32 s{d+1}, s{ptr+1}\ns_mov_b32 s{d+2}, {size}\ns_mov_b32 s{d+3}, 0x20000")

def entry(p, nwg, exit_label):
    p(f"s_cmp_ge_u32 s2, {nwg}\ns_cbranch_scc1 {exit_label}")
    p("s_load_dwordx16 s[4:19], s[0:1], 0\ns_load_dwordx8 s[20:27], s[0:1], 64")
    p(f"v_lshrrev_b32 v2, 6, v0\nv_and_b32 v{V_LANE}, 63, v0\ns_mov_b32 s{S_G}, s2")
    p(f"v_readfirstlane_b32 s{S_WAVE}, v2")
    p(f"s_and_b32 s{S_XCD}, s2, 7\ns_lshr_b32 s{S_J}, s2, 3")
    p(f"s_and_b32 s{S_HEAD}, s{S_J}, 3\ns_lshl_b32 s52, s{S_XCD}, 2\ns_add_u32 s{S_HEAD}, s{S_HEAD}, s52")
    p(f"s_lshr_b32 s{S_BLK}, s{S_J}, 2")
    p("s_waitcnt lgkmcnt(0)")
    if WSOFF: p(f"s_add_u32 s{P_WS}, s{P_WS}, {WSOFF}\ns_addc_u32 s{P_WS+1}, s{P_WS+1}, 0")
    mk_srd(p, SRD_WS, P_WS, hex(WS_SIZE - WSOFF))

def kernel_header(name):
    return f".globl {name}\n.p2align 8\n.type {name},@function\n{name}:\n"

def kernel_desc(name, vgpr=512, accum=256, sgpr=102):
    return f""".amdhsa_kernel {name}
  .amdhsa_next_free_vgpr {vgpr}
  .amdhsa_next_free_sgpr {sgpr}
  .amdhsa_accum_offset {accum}
  .amdhsa_group_segment_fixed_size 0
  .amdhsa_kernarg_size 96
  .amdhsa_user_sgpr_count 2
  .amdhsa_user_sgpr_kernarg_segment_ptr 1
  .amdhsa_system_sgpr_workgroup_id_x 1
  .amdhsa_float_denorm_mode_32 3
.end_amdhsa_kernel
"""

def mfma(d, a, b, c):
    return f"v_mfma_f32_32x32x16_bf16 {d}, {a}, {b}, {c}"

STAMPS = False
STI = 's_memrealtime' if os.environ.get('RT') else 's_memtime'
WS_STAMP = 100 * MB
_stamp_n = [0]
def stamp_begin(p):
    if not STAMPS: return
    _stamp_n[0] = 0
    p("s_memrealtime s[98:99]")
    for k in range(11): p(f"s_mov_b32 s{76+2*k}, 0")
    stamp(p)
def stamp2(p, idx):
    if STAMPS and os.environ.get('STAMPS') == '2': p(f"{STI} s[{76+2*idx}:{77+2*idx}]")
def stamp(p, idx=None):
    if not STAMPS: return
    if os.environ.get('STAMPS') in ('2', '3') and idx: return
    k = _stamp_n[0] if idx is None else idx
    _stamp_n[0] = k + 1
    assert k < 11
    p(f"{STI} s[{76+2*k}:{77+2*k}]")
def stamp_end(p, kidx):
    if not STAMPS: return
    p(STI + " s[96:97]\ns_memrealtime s[100:101]\ns_waitcnt lgkmcnt(0)")
    p(f"s_lshl_b32 s52, s{S_G}, 2\ns_add_u32 s52, s52, s{S_WAVE}\ns_lshl_b32 s52, s52, 6\ns_add_u32 s52, s52, {WS_STAMP + kidx*65536}")
    p("v_mov_b32 v2, 0")
    for k in range(11):
        p(f"v_mov_b32 v3, s{76+2*k}\nbuffer_store_dword v3, v2, {sr(SRD_WS,4)}, s52 offen offset:{4*k}")
    p(f"v_mov_b32 v3, s98\nbuffer_store_dword v3, v2, {sr(SRD_WS,4)}, s52 offen offset:44")
    p(f"v_mov_b32 v3, s100\nbuffer_store_dword v3, v2, {sr(SRD_WS,4)}, s52 offen offset:48")
```

```python
from phase1 import lane_parts, act_read_addrs, w_read_addrs, act_dma_addrs, w_dma_addrs, finish, split_at_mfma, groups, f32hex, LOG2E
from gemm import *
import os
ENV = os.environ.get
SC = "sc1"
LC = ENV("LC", "sc1")
NT = ENV("NT", "nt")
OOB = "0x80000000"

VA_ = {0: [10, 11, 12, 13], 131072: [14, 15, 16, 17]}
VW_ = {65536: [18, 19, 20, 21]}
ACC, PP = 64, 192
def abase(st): return (0, 32768, 131072)[st % 3]
def wbase(g): return (98304, 65536, 81920)[g % 3]
S_ST, S_STT = 63, 64
S_RB, S_CB = 68, 69
V_L16 = 30
V_FLAG = 31
SRD_PF = 72

def segs(role):
    cm = dict(mt=2, nt=4, acc=lambda ti, fi: vr(ACC + (ti * 4 + fi) * 16, 16), vA=VA_, vW=VW_,
              fw=lambda k, fi: vr(32 + (k % 2) * 16 + 4 * fi, 4), sM0A=56, sM0W=57, stepW=64 * 8192, vDW=[26, 27, 28, 29], abase=abase)
    vda = [(22, 58), (23, 58), (24, 58), (25, 58), (22, 60), (23, 60), (24, 60), (25, 60)]
    K = Seg("kk", nst=8, wbase=wbase, orient=lambda ti, fi: 'FT', fa=lambda k, ti: ar((k * 2 + ti) * 4, 4), vDA=vda, srdA=SRD1, srdW=SRD2, sOffW=59, flW=NT, **cm)
    V = Seg("kv", nst=8, wbase=lambda st: wbase(st + 8), orient=lambda ti, fi: 'TF', fa=lambda k, ti: ar((k * 2 + ti) * 4, 4), read_act=False, srdW=SRD3, sOffW=61, flW=ENV('NTV', ''), **cm)
    Q = Seg("q", nst=9, wbase=lambda st: wbase(st + 16), orient=lambda ti, fi: 'FT', fa=lambda k, ti: ar(((k % 2) * 2 + ti) * 4, 4), vDA=vda, srdA=SRD1, srdW=SRD2, sOffW=62, flW=ENV('NTV', ''), **cm)
    q = Prog(); mk_srd(q, SRD2, P_AWQKV, 576 * 3456)
    A = Seg("aq", mt=2, nt=2, nst=9, abase=lambda st: (st % 4) * 32768, wbase=lambda st: (st % 4) * 32768 + 16384,
            acc=lambda ti, fi: ar(64 + (ti * 2 + fi) * 16, 16), orient=lambda ti, fi: role,
            vA={0: [244, 245, 246, 247], 65536: [248, 249, 250, 251]}, vW={0: [252, 253], 65536: [254, 255]},
            fa=lambda k, ti: ar(16 + (k % 3) * 16 + 4 * ti, 4), fw=lambda k, fi: ar(16 + (k % 3) * 16 + 8 + 4 * fi, 4),
            vDA=[236, 237, 238, 239], vDW=[240, 241, 242, 243], sM0A=65, sM0W=65, sOffA=66, sOffW=67, stepW=64 * 3456,
            srdA=SRD3, srdW=SRD2, dist=2, pre_dma=q.l)
    return K, V, Q, A

def pack():
    return {(ti, fi): [f"v_cvt_pk_bf16_f32 v{PP + (ti*4+fi)*8 + e}, v{ACC + (ti*4+fi)*16 + 2*e}, v{ACC + (ti*4+fi)*16 + 2*e + 1}" for e in range(8)]
            for ti in range(2) for fi in range(4)}
def stores(isV):
    out = []
    for ti in range(2):
        for half in range(2):
            for q in range(4):
                blk = half * 4 + q
                fi, s = (blk & 3, blk >> 2) if isV else (blk >> 1, blk & 1)
                pre = [f"s_add_u32 s{S_STT}, s{S_ST}, {(WS_VB if isV else 0) + ti*8192 + half*4096}"] if q == 0 else []
                out.append(pre + [f"buffer_store_dwordx4 {vr(PP + (ti*4+fi)*8 + 4*s, 4)}, v{V_L16}, {sr(SRD_WS,4)}, s{S_STT} offen offset:{q*1024} {SC} ; T:{'vst' if isV else 'kst'}"])
    return out

def splice_pack(lines, first_mfma, order):
    pk = pack(); res = []; nm = 0
    for x in lines:
        if not x.startswith("VMWAIT") and I(x).kind == "mfma":
            j = nm - first_mfma
            if 0 <= j < 8: res += (["s_nop 3"] if j == 0 else []) + pk[order[j]] + ["s_nop 0"]
            nm += 1
        res.append(x)
    return res

def signal(imm, vtmp=8, vone=9):
    return [f"s_mov_b64 exec, 1", f"buffer_atomic_add v{vone}, v{vtmp}, {sr(SRD_DBG,4)}, 0 offen offset:{imm} sc1", "s_mov_b64 exec, -1"]

QSC = 70
def q_epilogue():
    early = []; late = []
    for t in range(8):
        a0 = ACC + t * 16
        for e in range(16): early.append([f"v_mul_f32 v{a0+e}, s{QSC}, v{a0+e}"])
        for e in range(8):
            d = PP + t * 8 + e
            it = [f"v_cvt_pk_bf16_f32 v{d}, v{a0+2*e}, v{a0+2*e+1}"]
            (early if d < 236 else late).append((d, it) if d >= 236 else it)
    mid = [it for d, it in late if d < 244]; last = [it for d, it in late if d >= 244]
    return early, mid, last

E_A4, E_A2A, E_A2B, E_AP, E_AP2, E_REM = 32, 39, 40, 41, 42, 43
E_T = 52
E_OFF = 160
S_EB, S_EHS, S_ECS, S_ESC, S_ETT, S_EF = 56, 34, 60, 61, 62, 71
def aq_addr_qk_valu():
    q = Prog()
    T = 224; AP = 231; R = 232; X = 233
    st = lambda e, r: q(f"v_accvgpr_write_b32 a{128 + e - 32}, v{r}")
    q(f"s_and_b32 s52, s{S_WAVE}, 1\ns_lshl_b32 s52, s52, 6\ns_lshl_b32 s{S_EF}, s{S_CB}, 7\ns_add_u32 s{S_EF}, s{S_EF}, s52")
    q(f"s_mov_b32 s{S_EHS}, {AH_STRIDE}\ns_cmp_lt_u32 s{S_EF}, 576\ns_cmov_b32 s{S_EHS}, {QA_STRIDE}\ns_cselect_b32 s52, 0, 576")
    q(f"s_sub_u32 s52, s{S_EF}, s52\ns_mov_b32 s53, 3641")
    q(f"v_lshlrev_b32 v{T}, 4, v2\nv_lshlrev_b32 v{T+1}, 2, v2\nv_lshlrev_b32 v{T+2}, 2, v3\nv_add_u32 v{T+2}, s52, v{T+2}\nv_mov_b32 v{T+3}, {OOB}\nv_mov_b32 v{AP}, {OOB}")
    for n in range(8):
        q(f"v_add_u32 v{T+4}, {8*n}, v{T+2}\nv_mul_lo_u32 v{T+5}, v{T+4}, s53\nv_lshrrev_b32 v{T+5}, 16, v{T+5}")
        q(f"v_mul_u32_u24 v{R}, 18, v{T+5}\nv_sub_u32 v{R}, v{T+4}, v{R}\nv_mul_lo_u32 v{T+5}, v{T+5}, s{S_EHS}")
        q(f"v_cmp_eq_u32 vcc, 16, v{R}\nv_add_u32 v{T+4}, v{T+5}, v{T+1}\nv_bfe_u32 v{T+6}, v{R}, 2, 1\nv_cndmask_b32 v{AP}, v{AP}, v{T+4}, vcc")
        q(f"v_cmp_gt_u32 vcc, 8, v{R}\nv_lshlrev_b32 v{T+6}, 9, v{T+6}\nv_add3_u32 v{T+6}, v{T+6}, v{T+5}, v{T}")
        q(f"v_cndmask_b32 v{X}, v{T+3}, v{T+6}, vcc")
        st(E_REM + n, R); st(E_A4 + n if n < 7 else E_A2B, X)
        if n == 0:
            q(f"v_add_u32 v{T+4}, -8, v{R}\nv_cmp_gt_u32 vcc, 8, v{T+4}\nv_add_u32 v{T+6}, 8, v{T+6}\ns_nop 0\nv_cndmask_b32 v{X}, v{T+3}, v{T+6}, vcc")
            st(E_A2A, X)
    q(f"v_add_u32 v{X}, s{S_EHS}, v{AP}")
    st(E_AP, AP); st(E_AP2, X)
    return q.l
def aq_addr_qk():
    q = Prog()
    q(f"s_mov_b32 s{S_EB}, {WS_AH}\ns_mov_b32 s{S_ECS}, {AH_CS}\ns_cmp_lt_u32 s{S_EF}, 576")
    q(f"s_cmov_b32 s{S_EB}, {WS_QA}\ns_cmov_b32 s{S_ECS}, {QA_CS}\ns_cselect_b32 s{S_ESC}, 1, 0")
    q(f"s_lshl_b32 s{S_ETT}, s{S_RB}, 2\ns_and_b32 s52, s{S_WAVE}, 2\ns_add_u32 s{S_ETT}, s{S_ETT}, s52\ns_lshr_b32 s52, s{S_ETT}, 3\ns_mul_i32 s52, s52, s{S_ECS}")
    q(f"s_add_u32 s{S_EB}, s{S_EB}, s52\ns_and_b32 s{S_ETT}, s{S_ETT}, 7")
    return q.l
def aq_addr_v():
    q = Prog(); T = E_T
    q(f"s_sub_u32 s{S_EF}, s{S_EF}, 1152")
    q(f"s_lshl_b32 s{S_ETT}, s{S_RB}, 2\ns_and_b32 s52, s{S_WAVE}, 2\ns_add_u32 s{S_ETT}, s{S_ETT}, s52\ns_lshr_b32 s52, s{S_ETT}, 3\ns_mul_i32 s{S_EB}, s52, {AH_CS}")
    q(f"s_and_b32 s{S_ETT}, s{S_ETT}, 7\ns_mul_i32 s52, s{S_ETT}, 1280\ns_add_u32 s{S_EB}, s{S_EB}, s52\ns_add_u32 s{S_EB}, s{S_EB}, {WS_AH + AH_V}")
    q(f"s_mov_b32 s53, 3641\ns_mov_b32 s{S_EHS}, {AH_STRIDE}\nv_mul_u32_u24 v{T}, 320, v3\nv_mov_b32 v{T+3}, {OOB}")
    for fi in range(2):
        q(f"s_add_u32 s52, s{S_EF}, {32*fi}\nv_add_u32 v{T+4}, s52, v2\nv_mul_lo_u32 v{T+5}, v{T+4}, s53\nv_lshrrev_b32 v{T+5}, 16, v{T+5}")
        q(f"v_mul_u32_u24 v{T+6}, 18, v{T+5}\nv_sub_u32 v{T+6}, v{T+4}, v{T+6}\nv_mul_lo_u32 v{T+5}, v{T+5}, s{S_EHS}\nv_lshlrev_b32 v{T+6}, 4, v{T+6}")
        q(f"v_cmp_gt_u32 vcc, 576, v{T+4}\nv_add3_u32 v{T+6}, v{T+6}, v{T+5}, v{T}\ns_nop 0\nv_cndmask_b32 v{E_A4+fi}, v{T+3}, v{T+6}, vcc")
    return q.l

def fgroups(lines):
    out = []; cmp_ = None; open_ = False
    for x in lines:
        op = x.split()[0]
        if op.startswith("s_cmp"):
            cmp_ = x; open_ = False; continue
        if op.startswith("s_cselect") or op.startswith("s_cmov"):
            if open_ and len(out[-1]) < 3: out[-1].append(x)
            else: out.append([cmp_, x]); open_ = True
            continue
        open_ = False
        out.append([x])
    return out

def idx(lines, pred):
    return [i for i, x in enumerate(lines) if not x.startswith("VMWAIT") and not x.endswith(":") and pred(I(x), x)]
def before(lines, a, b, msg):
    A = idx(lines, a); B = idx(lines, b)
    assert A and B, msg + " (empty)"
    assert max(A) < min(B), f"{msg}: {max(A)} !< {min(B)}"
def W(lo, hi): return lambda i, x: i.kind == "valu" and any(r[0] == 'v' and lo <= r[1] <= hi for r in i.w)
def RD(lo, hi, kinds): return lambda i, x: i.kind in kinds and any(r[0] == 'v' and lo <= r[1] <= hi for r in i.r)

def aq_epi_qk(p):
    R0 = 64
    for r in range(19): p(f"v_accvgpr_read_b32 v{32+r}, a{128+r}")
    for ti in range(2):
        for fi in range(2):
            for e in range(16): p(f"v_accvgpr_read_b32 v{R0 + ti*32 + fi*16 + e}, a{64 + (ti*2+fi)*16 + e}")
    p(f"s_cmp_eq_u32 s{S_ESC}, 0\ns_cbranch_scc1 L_aq_nosc\ns_mov_b32 s52, {f32hex(18 ** -0.5 * LOG2E)}\ns_mov_b32 s53, s52")
    for e in range(0, 64, 2): p(f"v_pk_mul_f32 {vr(R0+e,2)}, {vr(R0+e,2)}, s[52:53]")
    p.label("L_aq_nosc")
    for ti in range(2):
        b = R0 + ti * 32
        for e in range(16): p(f"v_cvt_pk_bf16_f32 v{b+e}, v{b+2*e}, v{b+2*e+1}")
        p(f"s_add_u32 s52, s{S_ETT}, {ti}\ns_lshl_b32 s53, s52, 10\ns_add_u32 s53, s53, s{S_EB}")
        if ti == 0: p(f"s_lshl_b32 s54, s52, 7\ns_add_u32 s54, s54, s{S_EB}\ns_add_u32 s54, s54, {AH_K2}")
        for n in range(7): p(f"buffer_store_dwordx4 {vr(b+2*n,4)}, v{E_A4+n}, {sr(SRD_WS,4)}, s53 offen {SC}")
        p(f"buffer_store_dwordx2 {vr(b,2)}, v{E_A2A}, {sr(SRD_WS,4)}, s53 offen {SC}\nbuffer_store_dwordx2 {vr(b+14,2)}, v{E_A2B}, {sr(SRD_WS,4)}, s53 offen {SC}")
    for n in range(8):
        p(f"v_cmp_eq_u32 vcc, 16, v{E_REM+n}\ns_cbranch_vccz L_aq_np{n}\ns_mov_b64 exec, vcc")
        for ti in range(2):
            b = R0 + ti * 32
            p(f"buffer_store_dword v{b+2*n}, v{E_AP}, {sr(SRD_WS,4)}, s54 offen offset:{ti*128} {SC}\nbuffer_store_dword v{b+2*n+1}, v{E_AP2}, {sr(SRD_WS,4)}, s54 offen offset:{ti*128} {SC}")
        p("s_mov_b64 exec, -1")
        p.label(f"L_aq_np{n}")
def aq_epi_v(p, after):
    R0 = 64
    p(f"s_cmp_ge_u32 s{S_EF}, 576\ns_cbranch_scc1 L_aq_vc")
    for ti in range(2):
        for fi in range(2):
            b = R0 + (ti * 2 + fi) * 16
            for e in range(16): p(f"v_accvgpr_read_b32 v{b + e}, a{64 + (ti*2+fi)*16 + e}")
            for e in range(8): p(f"v_cvt_pk_bf16_f32 v{b+e}, v{b+2*e}, v{b+2*e+1}")
            for s in range(2): p(f"buffer_store_dwordx4 {vr(b+4*s,4)}, v{E_A4+fi}, {sr(SRD_WS,4)}, s{S_EB} offen offset:{ti*1280 + s*640} {SC}")
    p.label("L_aq_vc")
    p(f"s_cmp_lg_u32 s{S_CB}, 9\ns_cbranch_scc1 {after}")
    T = E_T
    p(f"v_and_b32 v{T}, 1, v{V_LANE}\nv_bfe_u32 v{T+1}, v{V_LANE}, 1, 1\nv_bfe_u32 v{T+2}, v{V_LANE}, 2, 3")
    p(f"v_mul_u32_u24 v{T+1}, 320, v{T+1}\nv_mul_u32_u24 v{T+2}, 640, v{T+2}\nv_lshlrev_b32 v{T+3}, 4, v{T}\nv_add3_u32 v{T+3}, v{T+3}, v{T+1}, v{T+2}")
    p(f"v_mul_lo_u32 v{T+1}, v3, s{S_EHS}\nv_add_u32 v{T+3}, v{T+3}, v{T+1}")
    p(f"v_cmp_eq_u32 vcc, 0, v{T}\nv_mov_b32 v{T+1}, 0x3f803f80\ns_nop 0\nv_cndmask_b32 v128, 0, v{T+1}, vcc\nv_mov_b32 v129, v128\nv_mov_b32 v130, v128\nv_mov_b32 v131, v128")
    p(f"s_lshr_b32 s52, s{S_RB}, 1\ns_mul_i32 s53, s52, {AH_CS}\ns_and_b32 s52, s{S_RB}, 1\ns_mul_i32 s52, s52, {8*640}\ns_add_u32 s53, s53, s52")
    p(f"s_mul_i32 s52, s{S_WAVE}, {8*AH_STRIDE}\ns_add_u32 s53, s53, s52\ns_add_u32 s53, s53, {WS_AH + AH_V + 18*16}")
    for it in range(4):
        p(f"buffer_store_dwordx4 v[128:131], v{T+3}, {sr(SRD_WS,4)}, s53 offen {SC}\ns_add_u32 s53, s53, {2*AH_STRIDE}")

def front(p, ring_setup, ring_groups, post, after):
    lane_parts(p)
    mk_srd(p, SRD1, P_CKV, 2048 * 1024)
    mk_srd(p, SRD2, P_WUK, 512 * 8192)
    K, V, Q, A = segs('FT')
    p(f"s_lshl_b32 s54, s{S_WAVE}, 4")
    w_dma_addrs(p, [26, 27, 28, 29], 54, 8192)
    p(f"s_lshl_b32 s54, s{S_WAVE}, 6")
    act_dma_addrs(p, [22, 23, 24, 25], 54, 1024)
    p(f"s_lshl_b32 s56, s{S_WAVE}, 13\ns_lshl_b32 s57, s{S_WAVE}, 12")
    p(f"s_lshl_b32 s58, s{S_BLK}, 18\ns_add_u32 s60, s58, {32*1024}\ns_lshl_b32 s59, s{S_HEAD}, 8\ns_mov_b32 s61, s59\ns_mov_b32 s62, s59")
    pre = []
    for st in range(3):
        for g in K.dma(st): pre += g
    p.ext(pre)
    mk_srd(p, SRD3, P_WUV, 512 * 8192)
    p(f"s_lshl_b32 s54, s{S_WAVE}, 13")
    act_read_addrs(p, VA_, 54)
    w_read_addrs(p, VW_, None)
    p(f"v_lshlrev_b32 v{V_L16}, 4, v{V_LANE}")
    p(f"s_lshl_b32 s{S_ST}, s{S_HEAD}, 19\ns_lshl_b32 s52, s{S_BLK}, 16\ns_add_u32 s{S_ST}, s{S_ST}, s52\ns_lshl_b32 s52, s{S_WAVE}, 14\ns_add_u32 s{S_ST}, s{S_ST}, s52")
    p(f"s_mul_i32 s52, s{S_J}, 9363\ns_lshr_b32 s52, s52, 16\ns_mul_i32 s53, s52, 7\ns_sub_u32 s53, s{S_J}, s53")
    p(f"s_lshr_b32 s{S_RB}, s{S_XCD}, 1\ns_lshl_b32 s{S_RB}, s{S_RB}, 2\ns_and_b32 s54, s52, 3\ns_add_u32 s{S_RB}, s{S_RB}, s54")
    p(f"s_and_b32 s{S_CB}, s{S_XCD}, 1\ns_mul_i32 s{S_CB}, s{S_CB}, 7\ns_add_u32 s{S_CB}, s{S_CB}, s53\ns_cmp_ge_u32 s{S_J}, 28\ns_cselect_b32 s{S_CB}, 14, s{S_CB}")
    p(f"s_lshl_b32 s65, s{S_WAVE}, 12\ns_mul_i32 s66, s{S_RB}, {128*1152}\ns_lshl_b32 s67, s{S_CB}, 8\ns_mov_b32 s{QSC}, {f32hex(128 ** -0.5 * LOG2E)}")
    q = Prog()
    q(f"v_lshlrev_b32 v9, 10, v{V_LANE}\ns_lshl_b32 s52, s{S_G}, 2\ns_add_u32 s52, s52, {WS_FLAG}\ns_cmp_eq_u32 s{S_WAVE}, 0")
    q(f"v_mov_b32 v{V_FLAG}, 0")
    q(f"s_cselect_b32 s53, 2, 0\nv_cmp_gt_u32 vcc, s53, v{V_LANE}\nv_mov_b32 v8, {OOB}\ns_nop 0\nv_cndmask_b32 v9, v8, v9, vcc")
    q(f"buffer_store_dword v{V_FLAG}, v9, {sr(SRD_WS,4)}, s52 offen {SC}")
    q(f"v_lshrrev_b32 v8, 4, v{V_LANE}")
    p.ext(q.l); pre.append(q.l[-2])
    stamp(p, 1)

    def build(role):
        K, V, Q, A = segs(role)
        issue = {g: [g + 3] for g in range(22)}
        issue[22] = [25]; issue[23] = [26, 27]
        for a in range(6): issue[25 + a] = [25 + a + 3]
        issue[31] = [ring_groups[0], ring_groups[1]]; issue[32] = [ring_groups[2]]
        lg = {g: True for g in range(24)}
        fill = {}
        vfill = {}
        def add(gk, gs): fill.setdefault(gk, []).extend(gs)
        def vadd(gk, gs): vfill.setdefault(gk, []).extend(gs)
        PFS = ENV("PF", "cvbqaw")
        NL = int(ENV("PFL", "8"))
        if PFS:
            def pieces(setup, nlines, step, fl):
                out = []
                for k in range(-(-nlines // NL)):
                    out.append((groups(setup) if k == 0 else []) + [[f"buffer_load_dword v{V_FLAG}, v9, {sr(SRD_PF,4)}, s64 offen {fl} ; T:pf", f"s_add_u32 s64, s64, {step}"]])
                return out
            def lin(ptr, size, nl, fl):
                q = Prog()
                mk_srd(q, SRD_PF, ptr, size)
                q(f"s_mul_i32 s64, s35, {nl*128}\nv_cmp_gt_u32 vcc, {NL}, v{V_LANE}\nv_lshlrev_b32 v9, 7, v{V_LANE}\ns_nop 0\nv_cndmask_b32 v9, v0, v9, vcc")
                return pieces(q.l, nl, NL * 128, fl)
            def wsl(ptr, rows, fl):
                r = rows // 32
                q = Prog()
                mk_srd(q, SRD_PF, ptr, rows * 8192)
                q(f"s_lshl_b32 s64, s{S_BLK}, 2\ns_add_u32 s64, s64, s{S_WAVE}\ns_mul_i32 s64, s64, {r*8192}\ns_add_u32 s64, s64, s62")
                q(f"v_cmp_gt_u32 vcc, {NL}, v{V_LANE}\nv_lshrrev_b32 v9, 1, v{V_LANE}\nv_lshlrev_b32 v9, 6, v9\nv_and_or_b32 v9, v{V_LANE}, 1, v9\nv_lshlrev_b32 v9, 7, v9\nv_cndmask_b32 v9, v0, v9, vcc")
                return pieces(q.l, 2 * r, NL // 2 * 8192, fl)
            q = Prog(); q(f"s_lshl_b32 s35, s{S_G}, 2\ns_add_u32 s35, s35, s{S_WAVE}\nv_mov_b32 v0, {OOB}")
            add(0, groups(q.l))
            items = {'v': wsl(P_WUV, 512, ""), 'b': lin(P_BX, 2048 * 1152, 18, ""), 'q': wsl(P_WQ, 576, ""),
                     'a': lin(P_AX, 2048 * 1152, 18, ""), 'w': lin(P_AWQKV, 576 * 3456, 16, ""), 'c': lin(P_CKV, 2048 * 1024, 16, "")}
            allp = sum((items[c] for c in PFS), [])
            p0, p1 = float(ENV("PF0", "0")), float(ENV("PF1", "31"))
            for n, it in enumerate(allp): add(int(p0 + n * (p1 - p0) / len(allp)), it)
        q = Prog()
        mk_srd(q, SRD1, P_BX, 2048 * 1152); mk_srd(q, SRD2, P_WQ, 576 * 8192); mk_srd(q, SRD_DBG, P_DBG, 256)
        q("s_mov_b32 s54, 0"); act_dma_addrs(q, [22, 23, 24, 25], 54, 1152)
        q(f"s_lshl_b32 s52, s{S_BLK}, 2\ns_add_u32 s52, s52, s{S_WAVE}\ns_mul_i32 s58, s52, {32*1152}")
        q(f"s_sub_u32 s52, 15, s{S_BLK}\ns_lshl_b32 s52, s52, 2\ns_add_u32 s52, s52, s{S_WAVE}\ns_mul_i32 s60, s52, {32*1152}")
        add(33, groups(q.l))
        SB = int(ENV("SB", "1"))
        def batch(gs): return [sum(gs[i:i+SB], []) for i in range(0, len(gs), SB)]
        for i, g in enumerate(batch(stores(False))): vadd(33 + int(i * SB * float(ENV('KS', '1.5'))), [g])
        VS = float(ENV("VS", "1.6"))
        vst = stores(True)
        vst = vst[8:] + vst[:8]
        for i, g in enumerate(batch(vst)): vadd(65 + int(i * SB * VS), [g])
        SIGB = int(ENV('SIGB', '24'))
        q = Prog()
        mk_srd(q, SRD3, P_AX, 2048 * 1152)
        q(f"s_lshl_b32 s54, s{S_WAVE}, 5"); act_dma_addrs(q, A.vDA, 54, 1152)
        q(f"s_lshl_b32 s54, s{S_WAVE}, 4"); w_dma_addrs(q, A.vDW, 54, 3456)
        q(f"s_lshr_b32 s54, s{S_WAVE}, 1\ns_lshl_b32 s54, s54, 13"); act_read_addrs(q, A.vA, 54)
        q(f"s_and_b32 s55, s{S_WAVE}, 1\ns_lshl_b32 s55, s55, 1"); w_read_addrs(q, A.vW, 55)
        aqs = groups(q.l)
        q = Prog()
        q(f"s_lshl_b32 s55, s{S_HEAD}, 2\ns_cmp_eq_u32 s{S_WAVE}, 0\ns_cselect_b32 s55, s55, {OOB}\nv_mov_b32 v0, s55\nv_mov_b32 v{V_FLAG}, 1")
        sig_setup = [q.l[:3], q.l[3:4], q.l[4:5]]
        add(66 + int(8 * VS), aqs + fgroups(aq_addr_qk_valu()))
        add(64, sig_setup)
        early, mid, last = q_epilogue()
        add(100, groups(ring_setup))
        add(101, early[:96])
        add(117, fgroups(aq_addr_qk() if role == 'FT' else aq_addr_v()) + early[96:])
        q = Prog()
        q(f"s_lshl_b32 s64, s{S_HEAD}, 2\nv_mov_b32 v{V_FLAG}, s64")
        add(104, groups(q.l))
        add(126, mid); add(134, last)
        hooks = {124: ["VMWAIT poll", f"v_readfirstlane_b32 s64, v{V_FLAG}", "s_cmp_lt_u32 s64, 8", f"s_cbranch_scc1 L_kvspin_{role}", f"L_kvok_{role}:"]}
        hooks[{22: 92, 23: 96, 24: 99, 25: 103}[SIGB]] = signal(128, 0, V_FLAG)
        hooks[119] = [f"buffer_load_dword v{V_FLAG}, v{V_FLAG}, {sr(SRD_DBG,4)}, 0 offen offset:128 sc1 ; T:poll"]
        if STAMPS:
            for n, gk in ((2, 32), (3, 64)):
                q = Prog(); stamp(q, n); hooks[gk] = q.l
        lines = pipeline([K, V, Q, A], issue, lg, fillers=fill, hooks=hooks, xwait={SIGB: "vst"}, endbar=ring_groups[3], vfill=vfill, budget=int(ENV('BUD', '22')))
        lines = splice_pack(lines, 256, V.morder())
        lines = splice_pack(lines, 512, Q.morder())
        cvtP = lambda i, x: i.op.startswith("v_cvt") and PP <= i.w[0][1]
        mf = idx(lines, lambda i, x: i.kind == "mfma")
        assert max(idx(lines, lambda i, x: "T:kst" in x)) < mf[510], "K stores late"
        assert max(idx(lines, lambda i, x: i.kind == "valu" and not i.op.startswith("v_cvt") and any(r[0] == 'v' and 236 <= r[1] <= 243 for r in i.w))) < min(idx(lines, lambda i, x: "T:aq0" in x))
        assert max(idx(lines, lambda i, x: i.kind == "valu" and not i.op.startswith("v_cvt") and any(r[0] == 'v' and 244 <= r[1] for r in i.w))) < min(idx(lines, RD(244, 255, ("dsr",))))
        late_ = [k for k in idx(lines, cvtP) if k > mf[800]]
        for k in late_:
            d = I(lines[k]).w[0][1]
            if d >= 236: assert k > max(idx(lines, RD(d, d, ("dsr", "dma")))), f"cvt into v{d} too early"
        assert max(idx(lines, W(22, 25))) < min(idx(lines, lambda i, x: "T:q0" in x))
        assert min(idx(lines, W(22, 25))) > max(idx(lines, lambda i, x: "T:kk7" in x))
        assert max(idx(lines, lambda i, x: i.op == "v_accvgpr_write_b32")) < mf[800], "address precompute spills into AQ"
        assert max(idx(lines, lambda i, x: "T:poll" in x)) < [k for k, x in enumerate(lines) if x.startswith("VMWAIT poll")][0]
        vs_ = idx(lines, lambda i, x: "T:vst" in x)
        assert len(vs_) == 16 and vs_[7] < min(k for k in idx(lines, W(224, 255)) if k > mf[520]), "P reused before V stores"
        assert vs_[15] < [k for k, x in enumerate(lines) if x.startswith("VMWAIT") and "vst" in x][0]
        assert vs_[15] < min(k for k in idx(lines, W(192, 223)) if k > mf[520])
        assert max(idx(lines, lambda i, x: x.startswith(f"v_mov_b32 v{V_FLAG}, s64"))) < min(idx(lines, lambda i, x: "T:poll" in x))
        assert min(idx(lines, lambda i, x: x.startswith(f"v_mov_b32 v{V_FLAG}, s64"))) > max(idx(lines, lambda i, x: i.kind == "vat"))
        lab = [k for k, x in enumerate(lines) if x.startswith("L_kvok")][0]
        assert lab < min(idx(lines, lambda i, x: "T:ring" in x))
        assert max(idx(lines, lambda i, x: x in ring_setup)) < min(idx(lines, lambda i, x: "T:ring" in x))
        return finish(lines + post, pre)
    h1, tFT = split_at_mfma(build('FT'), 800)
    h2, tTF = split_at_mfma(build('TF'), 800)
    assert h1 == h2
    p.ext(h1)
    stamp(p, 4)
    p(f"s_cmp_ge_u32 s{S_CB}, 9\ns_cbranch_scc1 L_aq_V")
    p.ext(tFT)
    stamp(p, 5)
    aq_epi_qk(p)
    p(f"s_branch {after}")
    p.label("L_aq_V")
    p.ext(tTF)
    stamp(p, 5)
    aq_epi_v(p, after)

def spin(p, lab, back, load, test, cnt):
    p.label(lab)
    p(f"s_mov_b32 s{cnt}, 0x40000")
    p.label(lab + "_l")
    p("s_sleep 2")
    p.ext(load)
    p("s_waitcnt vmcnt(0)")
    p.ext(test)
    p(f"s_cbranch_scc0 {back}\ns_sub_u32 s{cnt}, s{cnt}, 1\ns_cmp_lg_u32 s{cnt}, 0\ns_cbranch_scc1 {lab}_l\ns_branch {back}")

def front_spins(p):
    for role in ('FT', 'TF'):
        spin(p, f"L_kvspin_{role}", f"L_kvok_{role}",
             [f"s_lshl_b32 s64, s{S_HEAD}, 2", f"v_mov_b32 v{V_FLAG}, s64", f"buffer_load_dword v{V_FLAG}, v{V_FLAG}, {sr(SRD_DBG,4)}, 0 offen offset:128 sc1"],
             [f"v_readfirstlane_b32 s64, v{V_FLAG}", "s_cmp_lt_u32 s64, 8"], 55)
```

```python
from common import *

def auto_lgkm(lines, pending=None, slack_cycles=96):
    q = list(pending or [])
    out = []
    t = 0
    lastm = -1000
    for s in lines:
        x = I(s)
        if x.kind == "label":
            out.append(s); continue
        touched = set(x.r) | set(x.w)
        if x.kind == "mfma": t = max(t, lastm + 28)
        need = -1
        for k, (rs, tt) in enumerate(q):
            if rs & touched: need = k
        if x.kind == "salu" and x.op == "s_barrier" and "; lgkm0" in s:
            need = len(q) - 1
        if need >= 0:
            k = need
            while k + 1 < len(q) and t - q[k + 1][1] >= slack_cycles: k += 1
            n = min(15, len(q) - 1 - k)
            out.append(f"s_waitcnt lgkmcnt({n})")
            t += 4
            q = q[len(q) - n:] if n else []
        if x.kind == "wait" and x.lg is not None:
            q = q[len(q) - x.lg:] if 0 < x.lg < len(q) else ([] if x.lg == 0 else q)
        if x.kind == "dsr": q.append((set(x.w), t))
        if x.kind == "dsw": q.append((set(), t))
        out.append(s)
        if x.kind == "mfma":
            t = max(t, lastm + 32); lastm = t; t += 8
        else: t += cost(s)
    return out, q

def resolve_vm(lines):
    out = []
    vm = []
    for s in lines:
        if s.startswith("VMWAIT"):
            n = 63
            for tag in s.split()[1:]:
                idx = [k for k, t in enumerate(vm) if t == tag]
                assert idx, "no VMEM op tagged " + tag
                n = min(n, len(vm) - 1 - idx[-1])
            out.append(f"s_waitcnt vmcnt({min(n, 63)})")
            continue
        x = I(s)
        if x.kind in ("dma", "vld", "vst", "vat", "vmisc"):
            m = re.search(r"; T:(\S+)", s)
            vm.append(m.group(1) if m else None)
        out.append(s)
    return out

def win(d, S):
    b = max(x for x in d if x <= S)
    assert S - b <= 65535, (S, b)
    return b

class Seg:
    def __init__(s, name, mt, nt, nst, abase, wbase, acc, orient, vA, vW, fa, fw, read_act=True,
                 vDA=(), vDW=(), sM0A=None, sM0W=None, sOffA=None, sOffW=None, stepA=128, stepW=0, srdA=None, srdW=None,
                 wrow=256, dist=1, flA='', flW='', pre_dma=None):
        s.__dict__.update(locals()); del s.__dict__['s']
    def morder(s):
        o = []
        n = max(s.mt, s.nt)
        for d in range(n):
            for ti in range(min(d + 1, s.mt)):
                if d < s.nt: o.append((ti, d))
            for fi in range(min(d, s.nt)):
                if d < s.mt: o.append((d, fi))
        assert len(set(o)) == s.mt * s.nt, o
        return o
    def reads(s, k):
        st, ks = divmod(k, 4)
        out = {}
        for ti in range(s.mt):
            S = s.abase(st) + ti * 4096 if s.read_act else 0
            if s.read_act:
                b = win(s.vA, S)
                out[('a', ti)] = [f"ds_read_b128 {s.fa(k, ti)}, v{s.vA[b][ks]} offset:{S - b}"]
            else: out[('a', ti)] = []
        for fi in range(s.nt):
            l = []
            m = re.match(r"([va])\[(\d+):", s.fw(k, fi))
            for u in range(2):
                S = s.wbase(st) + (16 * ks + 4 * u) * s.wrow
                b = win(s.vW, S)
                l.append(f"ds_read_b64_tr_b16 {vr(int(m.group(2)) + 2 * u, 2, m.group(1))}, v{s.vW[b][fi]} offset:{S - b}")
            out[('w', fi)] = l
        order = []; seen = set()
        for (ti, fi) in s.morder():
            for key in (('w', fi), ('a', ti)):
                if key not in seen:
                    seen.add(key); order += out[key]
        return order
    def mf(s, k):
        out = []
        for (ti, fi) in s.morder():
            a = s.fa(k, ti); w = s.fw(k, fi); d = s.acc(ti, fi)
            c = "0" if k == 0 else d
            out.append(mfma(d, w, a, c) if s.orient(ti, fi) == 'FT' else mfma(d, a, w, c))
        return out
    def dma(s, st):
        tag = f"{s.name}{st}"
        g = []
        if st == 0 and s.pre_dma: g += [[x] for x in s.pre_dma]
        for (regs, sM0, base, srd, soff, step, fl) in ((s.vDA, s.sM0A, s.abase, s.srdA, s.sOffA, s.stepA, s.flA), (s.vDW, s.sM0W, s.wbase, s.srdW, s.sOffW, s.stepW, s.flW)):
            regs = [r if isinstance(r, tuple) else (r, soff) for r in regs]
            for j, (r, so) in enumerate(regs):
                pre = [f"s_add_u32 m0, s{sM0}, {base(st) + (j // 4) * 4096}", "s_nop 0"] if j % 4 == 0 else []
                g.append(pre + [f"buffer_load_dwordx4 v{r}, {sr(srd, 4)}, s{so} offen offset:{(j % 4) * 1024} {fl} lds ; T:{tag}"])
                if j == len(regs) - 1 or regs[j + 1][1] != so:
                    g[-1].append(f"s_add_u32 s{so}, s{so}, {step}")
        return g

MAXG = int(os.environ.get('MAXG', '24'))
def pipeline(segs, issue, lgkm0, fillers=None, prologue_reads=True, budget=22, vsp=2, hooks=None, xwait=None, endbar=None, vfill=None, dq0=None):
    G = [(sg, st) for sg in segs for st in range(sg.nst)]
    K = [(sg, k) for sg in segs for k in range(4 * sg.nst)]
    lines = []
    if prologue_reads:
        lines += [f"VMWAIT {G[0][0].name}0", "s_barrier"]
        for k in range(segs[0].dist): lines += segs[0].reads(k)
    nread = segs[0].dist
    dq = list(dq0 or []); fq = []; vq = []; late = []; gap0 = 0; lastv = -10
    for gk, (sg, k) in enumerate(K):
        gi = gk // 4
        mf = sg.mf(k); M = len(mf)
        gaps = [[] for _ in range(M)]
        if fillers and gk in fillers: fq += fillers[gk]
        if vfill and gk in vfill: vq += vfill[gk]
        if hooks and gk in hooks: lines += hooks[gk]
        rd = []; pre = []
        dq += late; late = []
        while nread < len(K) and nread <= gk + K[nread][0].dist and nread <= gk + 2:
            tsg, tk = K[nread]
            if nread % 4 == 0:
                tgi = nread // 4
                assert not pre
                assert not any(x.endswith(f"T:{tsg.name}{tk // 4}") for f in dq + late for x in f), f"DMA of stage not issued at its barrier {gi}"
                pre = [f"VMWAIT {tsg.name}{tk // 4}" + (" " + xwait[tgi - 1] if xwait and tgi - 1 in xwait else ""), "s_barrier" + (" ; lgkm0" if lgkm0.get(tgi - 1) else "")]
                newd = []
                for t in issue.get(tgi - 1, []): newd += G[t][0].dma(G[t][1]) if isinstance(t, int) else t
                if rd:
                    rd += pre; pre = []; late = newd
                else: dq += newd
            rd += tsg.reads(tk); nread += 1
        if endbar is not None and gk == len(K) - 2:
            pre = ["s_barrier"]; dq += endbar
        avail = M - min(3, M // 4 + 1) if M > 4 else M - 1
        per = max(1, -(-len(rd) // avail))
        if pre: gaps[0] += pre
        g = 0
        while rd:
            gaps[g] += rd[:per]; rd = rd[per:]; g += 1
        def isv(f): return any(I(x).kind in ("dma", "vst", "vld", "vat") for x in f)
        for g in range(M):
            gg = gap0 + g
            used = sum(4 if x.startswith("VMWAIT") else cost(x) for x in gaps[g])
            barpos = bool(pre and g == 0)
            while dq and not barpos and not isv(dq[0]) and used + sum(cost(x) for x in dq[0]) <= MAXG:
                f = dq.pop(0); gaps[g] += f; used += sum(cost(x) for x in f)
            if dq and not barpos and gg - lastv >= vsp and used + sum(cost(x) for x in dq[0]) <= MAXG:
                f = dq.pop(0); gaps[g] += f; used += sum(cost(x) for x in f); lastv = gg
            if vq and not dq and not barpos and gg - lastv >= vsp and (used + sum(cost(x) for x in vq[0]) <= MAXG or used <= 4):
                f = vq.pop(0); gaps[g] += f; used += sum(cost(x) for x in f); lastv = gg
            while fq and used + sum(cost(x) for x in fq[0]) <= budget:
                f = fq[0]
                if isv(f):
                    if gg - lastv < vsp or dq or any(I(x).kind == "valu" for x in gaps[g] if not x.startswith("VMWAIT")): break
                    lastv = gg
                fq.pop(0)
                gaps[g] += f; used += sum(cost(x) for x in f)
        gap0 += M
        lines += weave(mf, gaps)
    for f in dq:
        if 'm0' in lines[-1].split(',')[0]: lines.append('s_nop 0')
        lines += f
    assert not vq
    for f in fq: lines += f
    return lines
```

```python
import sys, os
import common
common.STAMPS = bool(os.environ.get('STAMPS'))
from attnb import *
HEAD = open("cdna_kernels/" + NAME + ".s.ref").read().split("; Override launch")[0]

def build(kernels, out, single=False):
    s = HEAD
    for (n, lds, p) in kernels:
        s += (f"; @launch grid=(256,1,1) block=(256,1,1) lds={lds}\n" if single else f"; @launch kernel={n} grid=(256,1,1) block=(256,1,1) lds={lds}\n")
    s += '.amdgcn_target "amdgcn-amd-amdhsa--gfx950"\n.text\n'
    for (n, lds, p) in kernels: s += kernel_header(n) + p.text()
    s += '.section .rodata,"a"\n'
    for (n, lds, p) in kernels: s += ".p2align 6\n" + kernel_desc(n)
    open(out, "w").write(s)

def m1(back=None):
    p = Prog()
    entry(p, 256, "L_end")
    stamp_begin(p)
    q = Prog()
    q("VMWAIT ring0\ns_barrier")
    mk_srd(q, SRD1, P_BWO, 4096 * 1152)
    q(f"s_mul_i32 s54, s{S_G}, {16*1152}")
    wt_dma(q, SRD1, 54)
    front.front(p, ring_setup(), ring_groups(), q.l, "L_attn")
    p.label("L_attn")
    if back: back.run(p)
    else:
        attn_b(p)
        stamp(p, 8)
        p("s_waitcnt vmcnt(0)")
    stamp_end(p, 0)
    p.label("L_end")
    p("s_endpgm")
    attn_b_slow(p)
    front_spins(p)
    if back: back.tail(p)
    return p

if __name__ == "__main__":
    which = sys.argv[1]; out = sys.argv[2] if len(sys.argv) > 2 else "out.s"
    if which == "m1": ks = [("m1_kernel", 163840, m1())]
    else:
        import back
        ks = [(NAME + "_kernel", 163840, m1(back))]
    for n, _, p in ks:
        if not common.STAMPS: check(p.l, n)
    build(ks, out, single=bool(os.environ.get("SINGLE")))
    print("wrote", out)
```

```python
from front import *
import front
RB = 32768
V_LR = 19

V_B = [10, 11]
V_L16 = 14
V_DK, V_DV, V_DKS, V_DVS = 12, 13, 15, 16
V_LA, V_LB = 17, 18
V_NA, V_NB = 20, 21
V_TD, V_T, V_T2, V_NEG = 22, 23, 24, 25
CA, CB = 32, 48
def SBUF(p, x): return 64 + p * 32 + x * 16
def PBUF(p, x): return 128 + p * 16 + x * 8
QA_, QB_ = 192, 224
OA, OB = 0, 64
RING = 128
NR = 16
DIST = int(ENV('DIST', '12'))
S_X = 56
S_Y = [57, 58]
S_SO = 59
S_BIG0, S_BIG7, S_CNT, S_HB = 60, 61, 62, 63
MASKS = [64, 66, 68, 54]
NEGBIG = "0xf149f2ca"

def ring(n): return ar(RING + 4 * (n % NR), 4)

def mask_upd(C, vN, c, sbig=None, vT=V_T):
    out = []
    if sbig is None: out.append([f"v_subrev_u32 v{vT}, {32*c}, v{V_TD}"])
    else: out.append([f"s_sub_u32 s52, s{sbig}, {32*c}", f"v_add_u32 v{vT}, s52, v{V_TD}"])
    cm = []; cn = []
    for r in range(16):
        cr = 8 * (r >> 2) + (r & 3); m = MASKS[r % 4]
        cm.append(f"v_cmp_gt_i32 {sr(m,2)}, {cr}, v{vT}")
        cn.append(f"v_cndmask_b32 v{C+r}, v{vN}, v{V_NEG}, {sr(m,2)}")
    seq = cm[:3]
    for r in range(16):
        if r + 3 < 16: seq.append(cm[r + 3])
        elif r >= 14: pass
        seq.append(cn[r])
    seq = cm[:3]
    for r in range(16):
        if r + 3 < 16: seq.append(cm[r + 3])
        seq.append(cn[r])
    return out + [[x] for x in seq]

TRI = 176
def mask2(C, vN, c, sw=S_WAVE, vT=V_T, sa=64):
    out = [[f"s_cmp_eq_u32 s{sw}, {c}", f"s_cselect_b32 s{sa}, 1.0, 0"], [f"s_cmp_lt_u32 s{sw}, {c}", f"s_cselect_b32 s{sa+1}, {NEGBIG}, 0"],
           [f"v_add_f32 v{vT}, s{sa+1}, v{vN}"]]
    return out + [[f"v_fma_f32 v{C+r}, v{TRI+r}, s{sa}, v{vT}"] for r in range(16)]

def gcost(x):
    k = I(x)
    return DMAC if k.kind in ("dma", "vst", "vld", "vat") else cost(x)
DMAC = int(ENV("DMAC", "12"))
WPER = int(ENV("WPER", "8"))

def frag_list(qk, pv, pvoff=8192, kb=None, vb=None):
    fr = []; use = []
    n = 0
    if qk == 'd':
        for f in range(8):
            fr.append((len(use), kb, f * 1024)); use += [n, n]; n += 1
    elif qk == 's':
        for f in range(8):
            for h in range(2):
                fr.append((len(use), kb, h * 16384 + f * 1024)); use.append(n); n += 1
    if pv == 'd':
        for f in range(8):
            fr.append((len(use), vb, pvoff + f * 1024)); use += [n, n]; n += 1
    elif pv == 's':
        for h in range(2):
            for f in range(8):
                fr.append((len(use), vb, pvoff + h * 16384 + f * 1024)); use.append(n); n += 1
    return fr, use

class Slot:
    def __init__(s, par, qk, sm, pv, kb, vb, pvoff=8192, dma=None, upd=None, vmn=None, first_pv=False, ring0=0, adv=16384, extra=None, at=None):
        s.__dict__.update(locals()); del s.__dict__['s']
        s.fr, s.use = frag_list(qk, pv, pvoff, kb, vb)
    def rd(s, k):
        m, b, imm = s.fr[k]
        return f"ds_read_b128 {ring(s.ring0 + k)}, v{b} offset:{imm}"
    def head_reads(s):
        return [s.rd(k) for k in range(len(s.fr)) if s.fr[k][0] < DIST]
    def mfmas(s):
        out = []; i = 0
        p = s.par
        if s.qk:
            for f in range(8):
                for x in range(2):
                    q = (QA_ if x == 0 else QB_) if s.qk == 'd' else QB_
                    d = vr(SBUF(1 - p, x), 16)
                    c = vr(CA if x == 0 else CB, 16) if f == 0 else d
                    out.append(mfma(d, ring(s.ring0 + s.use[i]), vr(q + 4 * f, 4), c)); i += 1
        if s.pv == 'd':
            for f in range(8):
                st, dt = f >> 2, f & 3
                for x in range(2):
                    d = ar((OA if x == 0 else OB) + 16 * dt, 16)
                    c = "0" if (s.first_pv and st == 0) else d
                    out.append(mfma(d, ring(s.ring0 + s.use[i]), vr(PBUF(1 - p, x) + 4 * st, 4), c)); i += 1
        elif s.pv == 's':
            for h in range(2):
                for f in range(8):
                    st, dt = f >> 2, f & 3
                    d = ar(OB + 16 * dt, 16)
                    out.append(mfma(d, ring(s.ring0 + s.use[i]), vr(PBUF(1 - p, h) + 4 * st, 4), d)); i += 1
        return out
    def softmax(s):
        if not s.sm: return []
        p = s.par
        el = [(x, r) for x in range(2) for r in range(16)]
        def S(e): return SBUF(p, el[e][0]) + el[e][1]
        def L(e): return V_LB if (s.sm == 's' or el[e][0] == 1) else V_LA
        g = []
        for e in range(32):
            it = [f"v_exp_f32 v{S(e)}, v{S(e)}"]
            if e >= 1: it.append(f"v_add_f32 v{L(e-1)}, v{L(e-1)}, v{S(e-1)}")
            if e >= 2 and e % 2 == 0:
                k = e - 2
                it.append(f"v_cvt_pk_bf16_f32 v{PBUF(p, el[k][0]) + el[k][1] // 2}, v{S(k)}, v{S(k+1)}")
            g.append(it)
        g[-1] += [f"v_add_f32 v{L(31)}, v{L(31)}, v{S(31)}", f"v_cvt_pk_bf16_f32 v{PBUF(p, 1) + 7}, v{S(30)}, v{S(31)}"]
        return g
    def emit(s, nxt, tail=None):
        mf = s.mfmas(); M = len(mf)
        mem = [[] for _ in range(M)]; val = [[] for _ in range(M)]; end = [[] for _ in range(M)]
        rds = []
        for k, (m, b, imm) in enumerate(s.fr):
            rds.append((m - DIST, m))
            if m >= DIST: mem[m - DIST].append(s.rd(k))
        if nxt is not None:
            bar = M - DIST
            mem[bar] = [f"s_waitcnt vmcnt({s.vmn})", "s_barrier"] + mem[bar]
            for k, (m, b, imm) in enumerate(nxt.fr):
                if m < DIST:
                    mem[bar + m].append(nxt.rd(k)); rds.append((bar + m, M + m))
            mem[bar - 3] += [f"s_add_u32 s{S_X}, s{S_X}, {s.adv}"]
            mem[bar - 1] += [f"s_and_b32 s{S_X}, s{S_X}, 0x1ffff"]
            val[bar - 1].append(f"v_add_u32 v{V_B[1 - s.par]}, s{S_X}, v{V_LR}")
        for m in range(1, M, WPER):
            need = [g for (g, c) in rds if m <= c <= m + WPER - 1]
            if not need: continue
            n = len([g for (g, c) in rds if max(need) < g < m])
            end[m - 1].append(f"s_waitcnt lgkmcnt({n})")
        g = 1; late_d = 0
        for grp in (s.dma or []):
            if grp[0].startswith("s_") and "m0" in grp[0] and len(grp) == 1:
                mem[g - 1] += grp; continue
            isd = any(I(x).kind == "dma" for x in grp)
            if isd and len(grp) > 1 and M > 16:
                mem[g] += grp[:1]; mem[g + 1] += grp[1:]
            else: mem[g] += grp
            if isd and g >= M - DIST:
                assert M <= 16
                late_d += 1; mem[M - DIST][0] = f"s_waitcnt vmcnt({s.vmn - late_d})"
            g += 2 if M > 16 else 1
        for g_, it in (s.at or {}).items(): mem[g_] += it
        if tail: mem[M - 1] += tail
        up = list(s.upd or []) + list(s.extra or [])
        g = 2
        upv = []
        for it in up:
            if all(I(x).kind == "valu" for x in it): upv += it
            else:
                upv.append(("S", it))
        sm = sum(s.softmax(), [])
        stream = []
        ns, nu = len(sm), len(upv); iu = 0
        for k, x in enumerate(sm):
            stream.append(x)
            while iu < nu and k >= 5 and iu < (k - 4) * nu // max(1, ns - 12):
                stream.append(upv[iu]); iu += 1
        stream += upv[iu:]
        cap = [max(0, 24 - sum(gcost(x) for x in mem[k] + val[k] + end[k])) for k in range(M)]
        cst = lambda x: sum(cost(y) for y in x[1]) if isinstance(x, tuple) else cost(x)
        V = sum(cst(x) for x in stream); C = sum(cap)
        if V > C - 8:
            ex = -(-(V - C + 8) // 4); cap = list(cap)
            for j in range(ex): cap[(j * M // ex + 1) % M if ex <= M else j % M] += 4
            C = sum(cap)
        used = 0.0; lim = 0.0
        tight = V > float(ENV("TIGHT", "0.5")) * C
        def indep(x, skipped, prev):
            if isinstance(x, tuple): return not skipped
            i = I(x)
            for y in skipped:
                if isinstance(y, tuple): return False
                j = I(y)
                if (set(j.w) & (set(i.r) | set(i.w))) or (set(j.r) & set(i.w)): return False
            if prev is not None and I(prev).kind == 'valu' and I(prev).trans and set(I(prev).w) & set(i.r) and not i.trans: return False
            return True
        for gi in range(M):
            lim += cap[gi] * (1.0 if tight else V / C)
            room = cap[gi]
            while stream:
                prev = val[gi][-1] if val[gi] else None
                pick = None
                for j in range(min(3, len(stream))):
                    x = stream[j]
                    if (gi == M - 1 or (used + cst(x) / 2 <= lim + 4 * tight and cst(x) <= room + 0.01)) and indep(x, stream[:j], prev):
                        pick = j; break
                if pick is None:
                    if gi == M - 1: val[gi].append("s_nop 0"); continue
                    break
                x = stream.pop(pick)
                if isinstance(x, tuple): mem[gi] += x[1]
                else: val[gi].append(x)
                used += cst(x); room -= cst(x)
        if ENV("SHOWG"): print("slot", s.qk, s.sm, s.pv, [sum(gcost(x) for x in mem[k] + val[k] + end[k]) for k in range(M)])
        return weave(mf, [mem[k] + val[k] + end[k] for k in range(M)])

def dma_dual(tag=""):
    y = S_Y[0]
    L = lambda v, o: f"buffer_load_dwordx4 v{v}, {sr(SRD_WS,4)}, s{S_SO} offen offset:{o} {LC} lds" + tag
    return [[f"s_add_u32 m0, s{y}, {RB}"],
            [L(V_DK, 0)],
            [L(V_DK, 1024), f"s_add_u32 m0, s{y}, {RB + 8192}"],
            [L(V_DV, 0), f"s_add_u32 s{y}, s{y}, 16384"],
            [L(V_DV, 1024), f"s_and_b32 s{y}, s{y}, 0x1ffff"],
            [f"s_add_u32 s{S_SO}, s{S_SO}, 8192"]]
def dma_single(par, k=True, v=True):
    yc, yp = S_Y[par], S_Y[1 - par]
    L = lambda v, o: f"buffer_load_dwordx4 v{v}, {sr(SRD_WS,4)}, s{S_SO} offen offset:{o} {LC} lds"
    out = []
    if v:
        out.append([f"s_add_u32 m0, s{yp}, {RB + 8192}"])
        for j in range(4): out.append([L(V_DVS, j * 1024)])
    if k:
        if v: out[-1].append(f"s_add_u32 m0, s{yc}, {RB}")
        else: out.append([f"s_add_u32 m0, s{yc}, {RB}"])
        for j in range(4): out.append([L(V_DKS, j * 1024)])
    out[-1].append(f"s_add_u32 s{yp}, s{yc}, 32768")
    out.append([f"s_and_b32 s{yp}, s{yp}, 0x1ffff", f"s_add_u32 s{S_SO}, s{S_SO}, 16384"])
    return out

def lg(lines, pend):
    return lines


S_BAD = 70
WT_V = [29, 30, 0, 7, 28]
WT_R, WT_S = 26, 27
WT_A = 192
def ring_setup():
    q = Prog()
    q(f"v_lshlrev_b32 v{V_L16}, 4, v{V_LANE}\ns_lshl_b32 s{S_HB}, s{S_HEAD}, 19\ns_lshl_b32 s{S_Y[0]}, s{S_WAVE}, 11")
    q(f"v_add_u32 v{V_DKS}, s{S_Y[0]}, v{V_L16}\nv_add_u32 v{V_DK}, 16384, v{V_DKS}\nv_add_u32 v{V_DV}, {WS_VB}, v{V_DKS}\ns_mov_b32 s{S_SO}, s{S_HB}")
    q(f"v_lshlrev_b32 v9, 2, v3\nv_add_u32 v9, v9, v4\nv_mul_u32_u24 v9, 320, v9\nv_lshl_add_u32 v9, v5, 5, v9\nv_lshl_add_u32 v9, v6, 3, v9")
    q(f"s_mul_i32 s55, s{S_WAVE}, 5120\nv_add_u32 v{WT_R}, s55, v9\ns_lshr_b32 s55, s{S_WAVE}, 1\ns_and_b32 s55, s55, s{S_WAVE}\ns_lshl_b32 s55, s55, 31\nv_or_b32 v{WT_S}, s55, v{V_L16}")
    return q.l
def wt_addr(q, dst, special, t=160):
    q("s_mov_b32 s55, 3277")
    for n in range(5):
        r = dst[n]
        q(f"v_add_u32 v9, {64*n}, v{V_LANE}\nv_mul_lo_u32 v8, v9, s55\nv_lshrrev_b32 v8, 16, v8\nv_mul_u32_u24 v{r}, 20, v8\nv_sub_u32 v9, v9, v{r}")
        if special:
            q(f"v_bfe_u32 v{t}, v8, 2, 1\nv_lshlrev_b32 v{t}, 2, v{t}\nv_lshrrev_b32 v{t+1}, 3, v8\nv_lshl_add_u32 v{t}, v{t+1}, 1, v{t}\nv_bfe_u32 v{t+1}, v8, 1, 1\nv_add_u32 v{t}, v{t}, v{t+1}")
            q(f"v_mul_u32_u24 v{t}, 18, v{t}\nv_and_b32 v8, 1, v8\nv_add_u32 v8, v8, v{t}")
        q(f"v_mul_u32_u24 v8, 1152, v8\nv_lshl_add_u32 v{r}, v9, 4, v8")
        if n & 3: q(f"v_subrev_u32 v{r}, {1024*(n&3)}, v{r}")
def ring_groups():
    T = " ; T:ring"
    g0 = []
    for h in range(2):
        g0.append([f"s_add_u32 m0, s{S_Y[0]}, {RB + (6+h)*16384}", f"s_add_u32 s64, s{S_HB}, {h*8192}"])
        for o in (0, 1024): g0.append([f"buffer_load_dwordx4 v{V_DKS}, {sr(SRD_WS,4)}, s64 offen offset:{o} {LC} lds ; T:ring0"])
    def two():
        d = dma_dual(T)
        return [d[0] + ["s_nop 0"] + d[1]] + d[2:]
    return [g0, two() + two(), two() + two(), two()]

def wt_dma(p, srd, soff, vb=WT_V, fl=NT):
    p(f"s_mul_i32 s52, s{S_WAVE}, 5120\ns_mov_b32 m0, s52\ns_mul_i32 s53, s{S_WAVE}, 320\ns_add_u32 s53, s53, s{soff}")
    for n in range(5):
        if n == 4: p("s_add_u32 m0, s52, 4096\ns_nop 0")
        p(f"buffer_load_dwordx4 v{vb[n]}, {sr(srd,4)}, s53 offen offset:{(n&3)*1024} {fl} lds")
def wt_reads():
    return [f"ds_read_b64_tr_b16 {ar(WT_A + 4*mi + 2*u, 2)}, v{WT_R} offset:{u*2560 + mi*64}" for mi in range(5) for u in range(2)]
def wt_stores(s):
    return [f"buffer_store_dwordx4 {ar(WT_A + 4*mi, 4)}, v{V_L16 if mi < 3 else WT_S}, {sr(SRD_WS,4)}, s{s + (mi >> 2)} offen offset:{(mi&3)*1024} {SC}" for mi in range(5)]

def epi_tile(p, x, t0=160, wv=None):
    O, vl = ((OA, V_LA), (OB, V_LB))[x]
    p(f"v_rcp_f32 v9, v{vl}")
    p(f"s_lshl_b32 s53, s{S_HEAD}, 13\ns_add_u32 s53, s53, {WS_CTXB}")
    if x == 0: p(f"s_lshl_b32 s52, s{S_BLK}, 2")
    else: p(f"s_sub_u32 s52, 15, s{S_BLK}\ns_lshl_b32 s52, s52, 2")
    p(f"s_add_u32 s52, s52, s{S_WAVE}\ns_lshl_b32 s52, s52, 18\ns_add_u32 s52, s52, s53\ns_add_u32 s53, s52, 4096\nv_mov_b32 v8, v9")
    for b in range(8):
        t = t0
        for e in range(8): p(f"v_accvgpr_read_b32 v{t+e}, a{O + b*8 + e}")
        if wv: p.ext(wv[b])
        for e in range(4): p(f"v_pk_mul_f32 {vr(t+2*e,2)}, {vr(t+2*e,2)}, v[8:9]")
        for e in range(4): p(f"v_cvt_pk_bf16_f32 v{t+8+e+4*(b&1)}, v{t+2*e}, v{t+2*e+1}")
        p(f"buffer_store_dwordx4 {vr(t+8+4*(b&1),4)}, v{V_L16}, {sr(SRD_WS,4)}, s{52 + (b>>2)} offen offset:{(b&3)*1024} {SC}")

def lsum(p, vl):
    p(f"v_mov_b32 v8, v{vl}\ns_nop 1\nv_permlane32_swap_b32 v{vl}, v8\ns_nop 1\nv_add_f32 v{vl}, v{vl}, v8\ns_mov_b32 s52, 0x4e800000")

def late_setup():
    p = Prog()
    p(f"v_add_u32 v{V_LR}, {RB}, v{V_L16}\nv_add_u32 v{V_B[1]}, {6*16384}, v{V_LR}\nv_add_u32 v{V_B[0]}, {7*16384}, v{V_LR}")
    p(f"s_lshl_b32 s55, s{S_WAVE}, 5\nv_lshlrev_b32 v9, 2, v3\nv_sub_u32 v9, v2, v9\nv_add_u32 v{V_TD}, s55, v9")
    p(f"v_mov_b32 v{V_NEG}, {NEGBIG}\nv_mov_b32 v{V_NA}, 0\nv_mov_b32 v{V_LA}, 0\nv_mov_b32 v{V_LB}, 0")
    for n in range(5): p(f"v_accvgpr_read_b32 v{WT_V[n]}, a{ST_WT+n}")
    return p.l
ST_WT, ST_TRI = 147, 152
def early_setup():
    p = Prog()
    p(f"v_lshlrev_b32 v8, 2, v3\nv_sub_u32 v8, v2, v8\nv_mov_b32 v31, {NEGBIG}")
    ms = ["vcc", "s[52:53]", "s[54:55]"]
    cm = [f"v_cmp_gt_i32 {ms[r % 3]}, {8 * (r >> 2) + (r & 3)}, v8" for r in range(16)]
    p.ext(cm[:2])
    for r in range(16):
        if r + 2 < 16: p(cm[r + 2])
        else: p("s_nop 0")
        d = (9, 0)[r & 1]
        p(f"v_cndmask_b32 v{d}, 0, v31, {ms[r % 3]}\nv_accvgpr_write_b32 a{ST_TRI+r}, v{d}")
    for n in range(5):
        q = Prog(); wt_addr(q, [0] * 5, False)
        k = [j for j, x in enumerate(q.l) if x.startswith(f"v_add_u32 v9, {64*n}, v{V_LANE}")][0]
        e = [j for j, x in enumerate(q.l) if x.startswith(f"v_add_u32 v9, {64*(n+1)}, v{V_LANE}")]
        if n == 0: p(q.l[0])
        p.ext(q.l[k:(e[0] if e else len(q.l))])
        p(f"v_accvgpr_write_b32 a{ST_WT+n}, v0")
    p(f"v_lshrrev_b32 v8, 4, v{V_LANE}")
    return p.l
def Z0slot(): return Slot(0, 'd', 'd', None, V_B[0], None, dma=dma_dual(), vmn=28, upd=mask2(CA, V_NA, 2, S_BIG0))
def attn_prologue(p0, pack, stores):
    p0.ext([f"v_accvgpr_read_b32 v{TRI+r}, a{ST_TRI+r}" for r in range(16)])
    p0.ext([f"ds_read_b128 {ring(8 + f)}, v{V_B[1]} offset:{f*1024}" for f in range(8)])
    p0(f"s_lshl_b32 s52, s{S_WAVE}, 12\nv_add_u32 v9, s52, v{V_L16}\nv_add_u32 v{V_DKS}, 32768, v9\nv_add_u32 v{V_DVS}, {WS_VB}, v9")
    npre = max(0, len(pack) - 48)
    p0.ext(pack[:npre])
    p0("s_waitcnt lgkmcnt(0)")
    fl = pack[npre:]
    mfB = [mfma(vr(SBUF(0, 1), 16), ring(8 + f), vr(QB_ + 4 * f, 4), "0" if f == 0 else vr(SBUF(0, 1), 16)) for f in range(8)]
    p0.ext(weave(mfB, [fl[g*6:(g+1)*6] for g in range(8)]))
    stamp5(p0, 5)
    p = Prog()
    p(f"s_cmp_eq_u32 s{S_BLK}, 0\ns_cselect_b32 s{S_BIG0}, s{S_WAVE}, 64\ns_cmp_eq_u32 s{S_BLK}, 7\ns_cselect_b32 s{S_BIG7}, s{S_WAVE}, 64\ns_mov_b32 s{S_X}, {7*16384}")
    p.ext(sum(mask2(CA, V_NA, 0, S_BIG0), []) + ["s_nop 1"])
    def mx(x, vn):
        S = SBUF(0, x)
        o = [f"v_max3_f32 v{vn}, v{S}, v{S+1}, v{S+2}"] + [f"v_max3_f32 v{vn}, v{vn}, v{S+r}, v{S+r+1}" for r in range(3, 15, 2)] + [f"v_max_f32 v{vn}, v{vn}, v{S+15}"]
        o += [f"v_mov_b32 v8, v{vn}", "s_nop 1", f"v_permlane32_swap_b32 v{vn}, v8", "s_nop 1", f"v_max_f32 v{vn}, v{vn}, v8", f"v_sub_f32 v{vn}, 0, v{vn}"]
        o += [f"v_add_f32 v{S+r}, v{S+r}, v{vn}" for r in range(16)]
        return o
    hr = Z0slot().head_reads()
    fl = mx(1, V_NB) + [f"v_mov_b32 v{CB+r}, v{V_NB}" for r in range(16)]
    mfA = [mfma(vr(SBUF(0, 0), 16), ring(8 + f), vr(QA_ + 4 * f, 4), vr(CA, 16) if f == 0 else vr(SBUF(0, 0), 16)) for f in range(8)]
    gaps = [hr[:3], hr[3:]] + [[] for _ in range(6)]
    n = -(-len(fl) // 8)
    for g in range(8): gaps[g] += fl[g*n:(g+1)*n]
    p.ext(weave(mfA, gaps))
    stamp5(p, 7)
    p("s_nop 7")
    p.ext(mx(0, V_NA))
    for g in mask2(CA, V_NA, 1, S_BIG0): p.ext(g)
    p("s_waitcnt lgkmcnt(0)\ns_nop 0")
    L = p.l; k = 0; out = []
    for j, x in enumerate(L):
        out.append(x)
        while k < len(stores) and (k + 0.3) * len(L) / len(stores) <= j and not x.startswith("s_cmp") and not x.startswith("s_cselect"):
            out += stores[k]; k += 1
    assert k == len(stores)
    p0.ext(out)

def wt1_groups():
    q = Prog()
    mk_srd(q, SRD1, P_BWO, 4096 * 1152)
    q(f"s_mul_i32 s54, s{S_G}, {16*1152}")
    wt_dma(q, SRD1, 54)
    L = q.l
    first = [k for k, x in enumerate(L) if I(x).kind == "dma"][0]
    return L[:first], L[first:]
def qk_path(p):
    q = Prog(); st, mixed = aq_epi_qk(q)
    attn_prologue(p, q.l, [mixed] + st)
    p("s_branch L_attn")
def v_path(p):
    p(f"s_cmp_eq_u32 s{S_CB}, 14\ns_cbranch_scc1 L_wt2_n\ns_cmp_lg_u32 s{S_CB}, 13\ns_cbranch_scc1 L_wt2_skip\ns_cmp_lg_u32 s{S_J}, 6\ns_cbranch_scc1 L_wt2_skip")
    p(f"s_lshr_b32 s35, s{S_XCD}, 1\ns_mul_i32 s54, s35, {8*18*1152}\ns_add_u32 s54, s54, {16*1152}\ns_add_u32 s35, s35, 32")
    wt_addr(p, list(range(162, 167)), True)
    p("s_branch L_wt2_go")
    p.label("L_wt2_n")
    p(f"s_lshl_b32 s35, s{S_XCD}, 2\ns_add_u32 s35, s35, s{S_J}\ns_sub_u32 s35, s35, 28\ns_mul_i32 s54, s35, {18*1152}")
    wt_addr(p, list(range(162, 167)), False)
    p.label("L_wt2_go")
    mk_srd(p, SRD1, P_AWO, 576 * 1152)
    wt_dma(p, SRD1, 54, list(range(162, 167)), fl="")
    p(f"s_mul_i32 s54, s35, 18432\ns_mul_i32 s55, s{S_WAVE}, 5120\ns_add_u32 s54, s54, s55\ns_add_u32 s54, s54, {WS_WOA}\ns_add_u32 s55, s54, 4096")
    p("s_waitcnt vmcnt(0)")
    p.ext(wt_reads())
    p("s_waitcnt lgkmcnt(0)")
    p.ext(wt_stores(54))
    p.label("L_wt2_skip")
    q = Prog(); st = aq_epi_v(q)
    attn_prologue(p, q.l, st)

def attn_b(p, mid_epi=None):
    stamp(p, 6); stamp4(p, 1); stamp5(p, 8)
    D = lambda par, **kw: Slot(par, 'd', 'd', 'd', V_B[par], V_B[par], dma=dma_dual(), vmn=20, **kw)
    Z0 = Z0slot()
    w0, w1 = wt1_groups()
    at1 = {10: w0[:5], 11: w0[5:]}
    g = 13
    for x in w1:
        if I(x).kind == "dma": at1[g] = at1.get(g, []) + [x]; g += 2
        elif "m0" in x: at1[g - 1] = [x]
    Z1 = Slot(1, 'd', 'd', 'd', V_B[1], V_B[1], dma=dma_dual(), vmn=28 + 4, upd=mask2(CA, V_NA, 3, S_BIG0), first_pv=True, ring0=8, at=at1)
    def R8(s): s.ring0 = 8; return s
    E, O_ = R8(D(0)), R8(D(1))
    p.ext(Z0.emit(Z1))
    p.ext(Z1.emit(E, tail=[f"s_lshl_b32 s{S_CNT}, s{S_BLK}, 1", f"s_cmp_eq_u32 s{S_BLK}, 0"]))
    stamp4(p, 2); stamp5(p, 9)
    p("s_cbranch_scc1 L_b_DL")
    p(f"s_cmp_eq_u32 s{S_BLK}, 1\ns_cbranch_scc1 L_b_DS0")
    p.label("L_b_dloop")
    body = E.emit(O_) + O_.emit(E, tail=[f"s_sub_u32 s{S_CNT}, s{S_CNT}, 1", f"s_cmp_gt_u32 s{S_CNT}, 2"])
    check(body + body, "dloop")
    p.ext(body)
    p("s_cbranch_scc1 L_b_dloop")
    p.label("L_b_DS0"); stamp4(p, 3)
    for c in range(4):
        s = R8(D(c & 1, upd=mask2(CA, V_NA, c)))
        p.ext(s.emit(O_ if c % 2 == 0 else E))
    p.label("L_b_DL"); stamp4(p, 4)
    DL = R8(Slot(0, 'd', 'd', 'd', V_B[0], V_B[0], dma=dma_dual(), vmn=16,
                 upd=mask2(CA, V_NB, 0, S_BIG7) + mask2(CB, V_NB, 1, S_BIG7, V_T2, 66)))
    fix = [[f"s_sub_u32 s{S_SO}, s{S_SO}, 16384"],
           [f"s_lshr_b32 s70, s{S_WAVE}, 1", "s_lshl_b32 s70, s70, 14"], [f"s_and_b32 s71, s{S_WAVE}, 1", "s_lshl_b32 s71, s71, 12"],
           ["s_add_u32 s70, s70, s71", f"s_lshl_b32 s71, s{S_WAVE}, 11"], ["s_sub_u32 s70, s70, s71", f"s_add_u32 s{S_Y[0]}, s{S_Y[0]}, s70"],
           [f"s_cmp_eq_u32 s{S_WAVE}, 0", f"s_cselect_b32 s70, 0, {OOB}"], ["v_mov_b32 v8, s70", "v_mov_b32 v9, 1"],
           [f"s_mul_i32 s70, s{S_G}, 18432", f"s_mul_i32 s71, s{S_WAVE}, 5120"], ["s_add_u32 s70, s70, s71", f"s_add_u32 s70, s70, {WS_WOB}"], ["s_add_u32 s71, s70, 4096"]]
    T1 = R8(Slot(1, 's', 'd', 'd', V_B[1], V_B[1], dma=fix, vmn=8, adv=32768, at={27: signal(0)},
                 upd=mask2(CA, V_NB, 2, S_BIG7) + mask2(CB, V_NB, 3, S_BIG7, V_T2, 66)))
    wr, ws_ = wt_reads(), wt_stores(70)
    at = {}
    for k in range(5): at[8 + k] = wr[2*k:2*k+2]
    at[8] = ["s_waitcnt vmcnt(9)"] + at[8]
    for k in range(5): at[23 + 2*k] = at.get(23 + 2*k, []) + [ws_[k]]
    T2 = Slot(0, 's', 's', 'd', V_B[0], V_B[1], pvoff=16384 + 8192, dma=dma_single(0, v=False), vmn=4, adv=32768, ring0=0, at=at)
    Sg = lambda par, **kw: R8(Slot(par, kw.pop('qk', 's'), 's', 's', V_B[par], V_B[1 - par], adv=32768, **kw))
    SO, SE = Sg(1, dma=dma_single(1), vmn=8), Sg(0, dma=dma_single(0), vmn=8)
    p.ext(DL.emit(T1)); p.ext(T1.emit(T2)); p.ext(T2.emit(SO))
    stamp4(p, 5)
    lsum(p, V_LA)
    p(f"v_cmp_nge_f32 s[{S_BAD}:{S_BAD+1}], s52, v{V_LA}")
    epi_tile(p, 0)
    stamp4(p, 6)
    p(f"s_cmp_eq_u32 s{S_BLK}, 7\ns_cbranch_scc1 L_b_S0e")
    SO1 = Sg(1, dma=dma_single(1), vmn=8 + 8 + 5)
    p.ext(SO1.emit(SE, tail=[f"s_sub_u32 s{S_CNT}, 6, s{S_BLK}", f"s_lshl_b32 s{S_CNT}, s{S_CNT}, 1"]))
    stamp4(p, 7)
    p("s_cbranch_scc0 L_b_S3")
    p.label("L_b_sloop")
    body = SE.emit(SO) + SO.emit(SE, tail=[f"s_sub_u32 s{S_CNT}, s{S_CNT}, 1", f"s_cmp_lg_u32 s{S_CNT}, 0"])
    check(body + body, "sloop")
    p.ext(body)
    p("s_cbranch_scc1 L_b_sloop")
    p.label("L_b_S3"); stamp4(p, 8)
    S3 = Sg(0, dma=dma_single(0), vmn=8, upd=mask2(CA, V_NB, 0) + mask2(CB, V_NB, 1, S_WAVE, V_T2, 66))
    S2 = Sg(1, dma=dma_single(1, k=False), vmn=4, upd=mask2(CA, V_NB, 2) + mask2(CB, V_NB, 3, S_WAVE, V_T2, 66))
    S1 = Sg(0, dma=dma_single(0, k=False), vmn=4)
    s2at = {10: ["v_mov_b32 v28, 0"], 12: [f"buffer_load_dword v28, v28, {sr(SRD_DBG,4)}, 0 offen sc1"]}
    S0 = Sg(1, qk=None, vmn=0, at=s2at)
    F = Slot(0, None, None, 's', None, V_B[1], ring0=8)
    p.ext(S3.emit(S2)); p.ext(S2.emit(S1)); p.ext(S1.emit(S0)); p.ext(S0.emit(F))
    p("s_branch L_b_F")
    p.label("L_b_S0e")
    p("s_waitcnt lgkmcnt(0)")
    p.ext(S0.head_reads())
    p("s_waitcnt lgkmcnt(0)")
    p.ext(Sg(1, qk=None, vmn=63, at=s2at).emit(F))
    p.label("L_b_F")
    p.ext(F.emit(None))
    stamp(p, 7); stamp4(p, 9)
    lsum(p, V_LB)
    p(f"v_cmp_nge_f32 vcc, s52, v{V_LB}\ns_nop 1\ns_or_b64 vcc, vcc, s[{S_BAD}:{S_BAD+1}]\ns_cbranch_vccnz L_b_slow")
    p.label("L_b_epi")
    epi_tile(p, 1, wv=mid_epi(p) if mid_epi else None)

def attn_b_slow(p):
    p.label("L_b_slow")
    p("s_nop 15")
    for x, (Q, O, vl) in enumerate(((QA_, OA, V_LA), (QB_, OB, V_LB))):
        if x == 0: p(f"s_mov_b32 s70, s{S_BLK}")
        else: p(f"s_sub_u32 s70, 15, s{S_BLK}")
        p(f"s_lshl_b32 s70, s70, 2\ns_add_u32 s71, s70, s{S_WAVE}\ns_add_u32 s71, s71, 1\ns_lshl_b32 s70, s70, 5")
        S = SBUF(0, 0); Pp = PBUF(0, 0)
        for ps in range(2):
            if ps == 0: p(f"v_mov_b32 v{V_NA}, 0\nv_mov_b32 v{V_NB}, {NEGBIG}")
            else:
                p(f"v_mov_b32 v8, v{V_NB}\ns_nop 1\nv_permlane32_swap_b32 v{V_NB}, v8\ns_nop 1\nv_max_f32 v{V_NB}, v{V_NB}, v8\nv_sub_f32 v{V_NA}, 0, v{V_NB}\nv_mov_b32 v{vl}, 0")
                for r in range(64): p(f"v_accvgpr_write_b32 a{O+r}, 0")
            p(f"s_mov_b32 s61, s{S_HB}\ns_mov_b32 s60, s70\ns_mov_b32 s{S_CNT}, s71")
            p.label(f"L_b_sl{x}{ps}")
            for f in range(8):
                p(f"s_add_u32 s53, s61, {f*1024}\nbuffer_load_dwordx4 {ring(f)}, v{V_L16}, {sr(SRD_WS,4)}, s53 offen {LC}")
            if ps:
                for f in range(8):
                    p(f"s_add_u32 s53, s61, {WS_VB + f*1024}\nbuffer_load_dwordx4 {ring(8+f)}, v{V_L16}, {sr(SRD_WS,4)}, s53 offen {LC}")
            for g in mask_upd(CA, V_NA, 0, 60): p.ext(g)
            p("s_waitcnt vmcnt(0)\ns_nop 0")
            for f in range(8): p(mfma(vr(S, 16), ring(f), vr(Q + 4 * f, 4), vr(CA, 16) if f == 0 else vr(S, 16)))
            p("s_nop 15")
            if ps == 0:
                for r in range(16): p(f"v_max_f32 v{V_NB}, v{V_NB}, v{S+r}")
            else:
                for r in range(16): p(f"v_exp_f32 v{S+r}, v{S+r}")
                p("s_nop 0")
                for r in range(16): p(f"v_add_f32 v{vl}, v{vl}, v{S+r}")
                for k in range(8): p(f"v_cvt_pk_bf16_f32 v{Pp+k}, v{S+2*k}, v{S+2*k+1}")
                p("s_nop 1")
                for f in range(8): p(mfma(ar(O + 16 * (f & 3), 16), ring(8 + f), vr(Pp + 4 * (f >> 2), 4), ar(O + 16 * (f & 3), 16)))
                p("s_nop 15")
            p(f"s_add_u32 s61, s61, 8192\ns_sub_u32 s60, s60, 32\ns_sub_u32 s{S_CNT}, s{S_CNT}, 1\ns_cmp_lg_u32 s{S_CNT}, 0\ns_cbranch_scc1 L_b_sl{x}{ps}")
        p(f"v_mov_b32 v8, v{vl}\ns_nop 1\nv_permlane32_swap_b32 v{vl}, v8\ns_nop 1\nv_add_f32 v{vl}, v{vl}, v8")
    epi_tile(p, 0)
    p("s_branch L_b_epi")
```

```python
from attnb import *

A_KM, A_K2, A_V, A_DM = 10, 11, 12, 13
A_N = [16, 17]
A_TK4, A_VL = 20, 21
A_FL = 240
def A_Q(x, ks): return 96 + x * 8 + ks * 4
def A_C(x): return 32 + 16 * x
def A_O(x): return 64 + 16 * x
def A_S(p, x): return 112 + p * 32 + x * 16
def A_P(p, x): return 176 + p * 16 + x * 8
def A_K(p, ks): return 208 + p * 8 + ks * 4
def A_VF(p, s): return 224 + p * 8 + s * 4
S_AG, S_AC, S_AW, S_TT = 56, 57, 58, 59
S_AD = 35
S_OT, S_OM, S_O0, S_O1, S_OW, S_IT = 61, 62, 63, 64, 65, 66
DEPTH = 8
FB0 = 96

def chunk_dma(tag):
    out = [[f"s_add_u32 m0, s{S_AD}, s{S_AW}"]]
    for j in range(5):
        g = [f"buffer_load_dwordx4 v{A_DM}, {sr(SRD_WS,4)}, s{S_AG} offen offset:{(j&3)*1024} {LC} lds ; T:{tag}"]
        if j == 3: g += ["s_add_u32 m0, m0, 4096", f"s_add_u32 s{S_AG}, s{S_AG}, 4096"]
        out.append(g)
    out.append([f"s_add_u32 s{S_AG}, s{S_AG}, {AH_CS - 4096}", f"s_add_u32 s{S_AD}, s{S_AD}, {AH_CS}"])
    out.append([f"s_cmp_eq_u32 s{S_AD}, {3*AH_CS}", f"s_cselect_b32 s{S_AD}, 0, s{S_AD}"])
    return out

class Out:
    def __init__(s, nm): s.nm = nm; s.nl = 2 + nm
    def F(s, slot, i): return ar(FB0 + (slot * s.nl + i) * 4, 4)
    def acc(s, xi, mi): return ar((mi * 2 + xi) * 16, 16)
    def mf(s, slot, first):
        return [mfma(s.acc(xi, mi), s.F(slot, 2 + mi), s.F(slot, xi), "0" if first else s.acc(xi, mi)) for mi in range(s.nm) for xi in range(2)]
    def ldc(s, slot, tag, imm):
        return [[f"buffer_load_dwordx4 {s.F(slot,x)}, v{V_L16}, {sr(SRD_WS,4)}, s{(S_O0, S_O1)[x]} offen offset:{imm} {LC} ; T:{tag}"] for x in range(2)]
    def ldw(s, slot, tag):
        o = [[f"buffer_load_dwordx4 {s.F(slot,2+mi)}, v{V_L16}, {sr(SRD_WS,4)}, s{S_OW} offen offset:{mi*1024} {LC} ; T:{tag}"] for mi in range(s.nm)]
        o[-1].append(f"s_add_u32 s{S_OW}, s{S_OW}, 18432")
        return o
    def loads(s, k, tag):
        slot = k % DEPTH
        o = s.ldc(slot, tag, (k % 4) * 1024)
        if k % 4 == 3:
            o[0].append(f"s_add_u32 s{S_O0}, s{S_O0}, 4096"); o[1].append(f"s_add_u32 s{S_O1}, s{S_O1}, 4096")
        return o + s.ldw(slot, tag)

def a_rd(par, rel, k=True, v=True):
    out = []
    if k:
        r = (rel + 2) % 8
        out += [f"ds_read_b128 {vr(A_K(par,0),4)}, v{A_KM} offset:{r*1024}", f"ds_read_b32 v{A_K(par,1)}, v{A_K2} offset:{r*128}"]
    if v: out += [f"ds_read_b128 {vr(A_VF(par,s),4)}, v{A_V} offset:{rel*1280 + s*640}" for s in range(2)]
    return out

NEXTV = [0]
def a_slot(rel, qk=True, sm=True, pv=True, first_pv=False, rdk=True, rdv=True, pre=None, bmf=None, vm=None, post=None, carry=None):
    par = rel & 1
    mf = []
    if qk:
        for ks in range(2):
            for x in range(2):
                d = vr(A_S(1 - par, x), 16)
                mf.append(mfma(d, vr(A_K(1 - par, ks), 4), vr(A_Q(x, ks), 4), vr(A_C(x), 16) if ks == 0 else d))
    if pv:
        for s in range(2):
            for x in range(2):
                d = vr(A_O(x), 16)
                mf.append(mfma(d, vr(A_VF(1 - par, s), 4), vr(A_P(1 - par, x) + 4 * s, 4), "0" if (first_pv and s == 0) else d))
    waits = {}; after = {}
    if bmf:
        seq = []
        for (w, ms, ld) in bmf:
            for j, m in enumerate(ms): seq.append((m, w if j == 0 else None, ld if j == len(ms) - 1 else None))
        m2 = []; na = len(mf); nb = len(seq); ib = 0
        for k, m in enumerate(mf):
            m2.append(m)
            while ib < nb and ib < (k + 1) * nb // na:
                if seq[ib][1]: waits[len(m2)] = seq[ib][1]
                if seq[ib][2] is not None: after[len(m2)] = seq[ib][2]
                m2.append(seq[ib][0]); ib += 1
        mf = m2
    va = []
    if sm:
        el = [A_S(par, x) + r for x in range(2) for r in range(16)]
        for e in range(32):
            va.append(f"v_exp_f32 v{el[e]}, v{el[e]}")
            if e >= 3 and e % 2 == 1:
                k = e - 3
                va.append(f"v_cvt_pk_bf16_f32 v{A_P(par, k // 16) + (k % 16) // 2}, v{el[k]}, v{el[k+1]}")
    M = len(mf)
    mem = [[] for _ in range(M)]; val = [[] for _ in range(M)]; end = [[] for _ in range(M)]
    if pre: mem[0] += pre
    rd = a_rd(par, rel, rdk, rdv)
    for j, r in enumerate(rd): mem[min(j // 2, M - 1)].append(r)
    q = [(1 if pre else 0, grp) for grp in (vm or [])]
    for pos in sorted(after): q += [(pos, grp) for grp in after[pos]]
    g = NEXTV[0]; spill = []
    step = 2 if M > 8 else 1
    for (lo, grp) in q:
        g = max(g, lo)
        if g >= M or spill: spill.append(grp); continue
        mem[g] += grp
        if any(I(x).kind in ("dma", "vld", "vst", "vat") for x in grp): g += step
        elif "m0" in grp[-1].split(",")[0]: g += 1
    NEXTV[0] = max(0, g - M)
    if carry is not None: carry[:] = spill
    else: assert not spill
    tot = sum(cost(x) for x in va); acc_ = 0
    for x in va:
        val[min(M - 1, acc_ * M // tot)].append(x); acc_ += cost(x)
    for pos, w in waits.items(): end[pos - 1].append(w)
    if post: val[M - 1] += post
    if rd: end[M - 1].append("s_waitcnt lgkmcnt(0)")
    if sm:
        if not end[M - 1] and not post: end[M - 1].append("s_nop 0")
        end[M - 1].append(f"v_cvt_pk_bf16_f32 v{A_P(par, 1) + 7}, v{el[30]}, v{el[31]}")
    return weave(mf, [mem[k] + val[k] + end[k] for k in range(M)])

KBUMP = [f"s_add_u32 s{S_AC}, s{S_AC}, {AH_CS}", f"s_cmp_eq_u32 s{S_AC}, {3*AH_CS}", f"s_cselect_b32 s{S_AC}, 0, s{S_AC}"]
A_CN, A_FX, A_FT = 248, 252, 253
FIX = f"ds_write_b128 v{A_FT}, {vr(A_CN,4)}"
KADDR = [f"v_add_u32 v{A_KM}, s{S_AC}, v{V_L16}", f"v_add_u32 v{A_K2}, s{S_AC}, v{A_TK4}", f"v_add_u32 v{A_FT}, s{S_AC}, v{A_FX}"]
VADDR = [f"v_add_u32 v{A_V}, s{S_AC}, v{A_VL}"]

def iteration(it, o, ks, carry, last=False, first=False, extra=None, kmax=64, rels=range(8)):
    lines = []
    for rel in rels:
        kw = {}
        vm = list(carry)
        bm = []
        for k in ks[rel]:
            bm.append((f"VMWAIT b{k}", o.mf(k % DEPTH, k == 0), o.loads(k + DEPTH, f"b{k+DEPTH}") if k + DEPTH < kmax else []))
        if first and rel == 0: kw.update(pv=False)
        if first and rel == 1: kw.update(first_pv=True)
        if rel == 5 and not last: kw.update(post=KADDR); vm = [KBUMP[:1], KBUMP[1:]] + vm
        if rel == 6 and not last: kw.update(pre=[f"VMWAIT c{it+1}", FIX, "s_waitcnt lgkmcnt(0)", "s_barrier"])
        if rel == 7 and not last: kw.update(post=VADDR)
        if rel == 6 and not last and (it + 2 <= 7): vm = vm + chunk_dma(f"c{it+2}")[:3]
        if rel == 7 and not last and (it + 2 <= 7): vm = vm + chunk_dma(f"c{it+2}")[3:]
        if last and rel >= 6: kw.update(rdk=False)
        if last and rel == 7: kw.update(qk=False)
        if extra and rel in extra:
            e = extra[rel]
            if 'pre' in e: kw['pre'] = kw.get('pre', []) + e['pre']
            vm = vm + e.get('vm', [])
        lines += a_slot(rel, vm=vm, bmf=bm, carry=carry, **kw)
    return lines

def flag_test(p):
    p(f"v_and_b32 v{A_FL}, v{A_FL}, v{A_FL+1}\nv_and_b32 v{A_FL+2}, v{A_FL+2}, v{A_FL+3}\nv_and_b32 v{A_FL}, v{A_FL}, v{A_FL+2}")
    p(f"v_cmp_ne_u32 vcc, 1, v{A_FL}\ns_cmp_lg_u64 vcc, 0")
def flag_load(which): return f"buffer_load_dwordx4 {vr(A_FL,4)}, v{V_L16}, {sr(SRD_WS,4)}, s67 offen offset:{which*1024} sc1"
def flag_set(which):
    return ["s_mov_b64 exec, 1", f"buffer_store_dword v9, v8, {sr(SRD_WS,4)}, s67 offen offset:{which*1024} sc1", "s_mov_b64 exec, -1"]

def mid_epi(p):
    p(f"s_waitcnt vmcnt(0)\nv_readfirstlane_b32 s52, v28\ns_cmp_lt_u32 s52, 256\ns_cbranch_scc1 L_s2spin")
    p.label("L_s2ok")
    p(f"s_mul_i32 s{S_AG}, s{S_HEAD}, {AH_STRIDE}\ns_add_u32 s{S_AG}, s{S_AG}, {WS_AH}\ns_mul_i32 s{S_AW}, s{S_WAVE}, 5120\ns_mov_b32 s{S_AD}, 0")
    p(f"v_add_u32 v{A_DM}, s{S_AW}, v{V_L16}")
    p(f"s_lshl_b32 s{S_TT}, s{S_BLK}, 3\ns_lshl_b32 s52, s{S_WAVE}, 1\ns_add_u32 s{S_TT}, s{S_TT}, s52")
    p(f"s_mul_i32 s53, s{S_HEAD}, {QA_STRIDE}\ns_mul_i32 s54, s{S_BLK}, {QA_CS}\ns_add_u32 s53, s53, s54\ns_add_u32 s53, s53, {WS_QA}")
    p(f"s_lshl_b32 s54, s52, 7\ns_add_u32 s54, s54, s53\ns_add_u32 s54, s54, {AH_K2}\ns_lshl_b32 s52, s52, 10\ns_add_u32 s53, s53, s52")
    p("v_lshlrev_b32 v4, 2, v2\nv_lshlrev_b32 v5, 31, v3\nv_or_b32 v5, v5, v4")
    p(f"s_mov_b32 s35, 0\ns_mov_b32 s60, s53\ns_mov_b32 s61, s54")
    d0 = chunk_dma("c0"); d1 = chunk_dma("c1")
    ql = []
    for x in range(2):
        ql.append(f"buffer_load_dwordx4 {vr(A_Q(x,0),4)}, v{V_L16}, {sr(SRD_WS,4)}, s60 offen offset:{x*1024} {LC}")
        ql.append(f"buffer_load_dword v{A_Q(x,1)}, v5, {sr(SRD_WS,4)}, s61 offen offset:{x*128} {LC}")
    n0 = ["s_nop 0"]
    wv = [d0[0] + n0 + d0[1] + d0[2], d0[3] + d0[4], d0[5] + d0[6] + d0[7] + ql[:2], ql[2:] + ["s_barrier"],
          d1[0] + n0 + d1[1] + d1[2], d1[3] + d1[4], d1[5] + d1[6] + d1[7], []]
    return wv

def reduce_out(p, o, coloff, before_bar=None, between=None, weave_in=()):
    nt = 2 * o.nm
    RL = 61440; T = 200
    p(f"s_lshl_b32 s52, s{S_WAVE}, 12\ns_add_u32 s52, s52, {RL}\nv_add_u32 v6, s52, v{V_L16}\nv_add_u32 v7, 65536, v6")
    wv = list(weave_in)
    for t in range(nt):
        for j in range(4):
            p(f"ds_write_b128 v{6 if t < 4 else 7}, {ar(t*16 + 4*j, 4)} offset:{(t%4)*16384 + j*1024}")
            if wv: p.ext(wv.pop(0))
    for g in wv: p.ext(g)
    p(f"s_and_b32 s52, s{S_WAVE}, 1\ns_lshr_b32 s53, s{S_WAVE}, 1\ns_lshl_b32 s54, s52, 14\ns_lshl_b32 s55, s53, 11\ns_add_u32 s54, s54, s55\ns_add_u32 s54, s54, {RL}")
    p(f"v_add_u32 v6, s54, v{V_L16}\nv_add_u32 v7, 65536, v6")
    p(f"s_add_u32 s52, s52, s{S_OT}\ns_mul_i32 s52, s52, {32*2304}\ns_lshl_b32 s53, s53, 5\ns_add_u32 s52, s52, s53\ns_lshl_b32 s53, s{S_OM}, 6\ns_add_u32 s54, s52, s53")
    p("v_mul_u32_u24 v4, 2304, v2\nv_lshl_add_u32 v4, v3, 4, v4")
    if before_bar: before_bar(p)
    p("s_waitcnt lgkmcnt(0)\ns_barrier")
    if between: between(p)
    def rd(mi):
        for w in range(4):
            for j in range(2): p(f"ds_read_b128 {vr(T + (w*8 + 4*j if mi % 2 == 0 else -88 + w*8 + 4*j), 4)}, v{6 if mi < 2 else 7} offset:{(mi%2)*32768 + w*4096 + j*1024}")
    rd(0)
    for mi in range(o.nm):
        if mi + 1 < o.nm: rd(mi + 1)
        A = T if mi % 2 == 0 else T - 88
        p(f"s_waitcnt lgkmcnt({8 if mi + 1 < o.nm else 0})")
        for r in range(0, 8, 2): p(f"v_pk_add_f32 {vr(A+r,2)}, {vr(A+r,2)}, {vr(A+8+r,2)}\nv_pk_add_f32 {vr(A+16+r,2)}, {vr(A+16+r,2)}, {vr(A+24+r,2)}")
        for r in range(0, 8, 2): p(f"v_pk_add_f32 {vr(A+r,2)}, {vr(A+r,2)}, {vr(A+16+r,2)}")
        D = 232 + 4 * (mi % 2)
        for k in range(4): p(f"v_cvt_pk_bf16_f32 v{D+k}, v{A+2*k}, v{A+2*k+1}")
        p(f"s_nop 1\nv_permlane32_swap_b32 v{D}, v{D+2}\nv_permlane32_swap_b32 v{D+1}, v{D+3}")
        p(f"buffer_store_dwordx4 {vr(D,4)}, v4, {sr(SRD1,4)}, s54 offen offset:{coloff*2 + mi*64}")

def a_epilogue(p):
    p(f"v_rcp_f32 v{A_N[0]}, v{A_N[0]}\nv_rcp_f32 v{A_N[1]}, v{A_N[1]}")
    p(f"s_mul_i32 s52, s{S_TT}, {36*1024}\ns_add_u32 s52, s52, {WS_CTXA}\ns_lshl_b32 s53, s{S_HEAD}, 10\ns_add_u32 s54, s52, s53")
    p(f"s_lshr_b32 s53, s{S_HEAD}, 3\ns_add_u32 s53, s53, 32\ns_lshl_b32 s53, s53, 10\ns_add_u32 s55, s52, s53")
    p(f"s_bfe_u32 s53, s{S_HEAD}, {2 | (1 << 16)}\ns_lshl_b32 s53, s53, 9\ns_add_u32 s55, s55, s53\ns_and_b32 s53, s{S_HEAD}, 3\ns_lshl_b32 s53, s53, 2\ns_add_u32 s55, s55, s53")
    p("v_lshlrev_b32 v4, 4, v2\nv_lshlrev_b32 v5, 31, v3\nv_or_b32 v5, v5, v4")
    for x in range(2):
        O = A_O(x)
        for r in range(10): p(f"v_mul_f32 v{O+r}, v{O+r}, v{A_N[x]}")
        for k in range(5): p(f"v_cvt_pk_bf16_f32 v{O+k}, v{O+2*k}, v{O+2*k+1}")
        p(f"buffer_store_dwordx4 {vr(O,4)}, v{V_L16}, {sr(SRD_WS,4)}, s54 offen {SC} ; T:ca")
        p(f"buffer_store_dword v{O+4}, v5, {sr(SRD_WS,4)}, s55 offen {SC} ; T:ca")
        if x == 0: p(f"s_add_u32 s54, s54, {36*1024}\ns_add_u32 s55, s55, {36*1024}")
def a_lget(p):
    for x in range(2): p(f"v_mov_b32 v{A_N[x]}, v{A_O(x)+10}\nv_mov_b32 v{8+x}, v{A_O(x)+10}")
    p(f"s_nop 1\nv_permlane32_swap_b32 v{A_N[0]}, v8\nv_permlane32_swap_b32 v{A_N[1]}, v9\ns_nop 1")

def tail_variant(p, o, na, lab, base, S0, final):
    nm = o.nm
    q = Prog()
    regs = [vr(32 + 4 * j, 4) for j in range(20)] + [ar(FB0 + 4 * j, 4) for j in range(40)]
    def free_at(j):
        if j < 20: return 0
        bj = (j - 20) // o.nl
        return 0 if bj >= DEPTH else max(k for k in range(56, 64) if k % DEPTH == bj) + 1
    order = sorted(range(60), key=free_at)[:18 * na]
    WA = lambda k, mi: regs[order[k * na + mi]]
    wl = []
    for k in range(18):
        for mi in range(na):
            g = [f"buffer_load_dwordx4 {WA(k,mi)}, v{V_L16}, {sr(SRD_WS,4)}, s60 offen offset:{mi*1024} {LC}"]
            if mi == na - 1: g.append("s_add_u32 s60, s60, 18432")
            wl.append((free_at(order[k * na + mi]), g))
    if na == 2: q("s_lshl_b32 s34, s68, 1")
    else: q("s_mul_i32 s34, s68, 3\ns_sub_u32 s34, s34, 6")
    q(f"s_lshr_b32 s52, s{S_WAVE}, 1\ns_mul_i32 s60, s52, {18*18432}\ns_lshl_b32 s53, s34, 10\ns_add_u32 s60, s60, s53\ns_add_u32 s60, s60, {WS_WOA}")
    pend = []; g_ = 0
    for k in range(56 - S0, 64):
        q(f"VMWAIT b{k}")
        if k == 58: q("VMWAIT ca\ns_barrier"); q.ext(flag_set(1))
        mf = o.mf(k % DEPTH, False)
        gaps = []
        for j in range(len(mf)):
            g_ += 1
            if pend: gaps.append(pend.pop(0))
            elif wl and wl[0][0] <= k and k >= 56 and g_ % 2 == 0: gaps.append(wl.pop(0)[1])
            else: gaps.append([])
        q.ext(weave(mf, gaps))
        if k + DEPTH < 64: pend += o.loads(k + DEPTH, f"b{k+DEPTH}")
    assert not pend
    p.ext(resolve_vm(base + q.l)[len(base):])
    stamp2(p, 6)
    p("s_nop 3")
    def rest_w(p):
        p(flag_load(1))
    reduce_out(p, o, 576, rest_w, None, [g for _, g in wl])
    CXA = lambda k: vr(112 + 4 * k, 4)
    p(f"s_and_b32 s52, s{S_WAVE}, 1\ns_add_u32 s52, s52, s{S_OT}\ns_mul_i32 s{S_O0}, s52, {36*1024}\ns_lshr_b32 s53, s{S_WAVE}, 1\ns_mul_i32 s53, s53, {18*1024}")
    p(f"s_add_u32 s{S_O0}, s{S_O0}, s53\ns_add_u32 s{S_O0}, s{S_O0}, {WS_CTXA}")
    p(f"s_waitcnt vmcnt({nm})")
    flag_test(p)
    p(f"s_cbranch_scc1 L_faspin_{lab}")
    p.label(f"L_faok_{lab}"); stamp2(p, 7)
    for k in range(18):
        p(f"buffer_load_dwordx4 {CXA(k)}, v{V_L16}, {sr(SRD_WS,4)}, s{S_O0} offen offset:{(k%4)*1024} {LC}")
        if k % 4 == 3: p(f"s_add_u32 s{S_O0}, s{S_O0}, 4096")
    AC = lambda mi: vr(184 + 16 * mi, 16)
    p(f"s_lshl_b32 s54, s{S_WAVE}, 13\nv_add_u32 v6, s54, v{V_L16}\ns_xor_b32 s54, s54, 16384\nv_add_u32 v7, s54, v{V_L16}")
    p(f"s_mul_i32 s52, s52, {32*2304}\ns_lshr_b32 s53, s{S_WAVE}, 1\ns_lshl_b32 s53, s53, 5\ns_add_u32 s52, s52, s53\ns_lshl_b32 s53, s34, 6\ns_add_u32 s54, s52, s53")
    for k in range(18):
        if k % 2 == 0: p(f"s_waitcnt vmcnt({16 - k})")
        for mi in range(na): p(mfma(AC(mi), WA(k, mi), CXA(k), "0" if k == 0 else AC(mi)))
    stamp2(p, 8)
    p(f"s_cmp_ge_u32 s{S_WAVE}, 2\ns_nop 9\ns_cbranch_scc1 L_x1_{lab}")
    for kh in range(2):
        if kh: p.label(f"L_x1_{lab}")
        for mi in range(na):
            for j in range(2): p(f"ds_write_b128 v6, {vr(184 + 16*mi + 8*(1-kh) + 4*j, 4)} offset:{mi*2048 + j*1024}")
        p("s_waitcnt lgkmcnt(0)\ns_barrier")
        for mi in range(na):
            for j in range(2): p(f"ds_read_b128 {vr(112 + 8*mi + 4*j, 4)}, v7 offset:{mi*2048 + j*1024}")
        for mi in range(na):
            A = 184 + 16 * mi + 8 * kh; D = 144 + 4 * mi
            p(f"s_waitcnt lgkmcnt({2*(na-1-mi)})")
            for r in range(0, 8, 2): p(f"v_pk_add_f32 {vr(A+r,2)}, {vr(A+r,2)}, {vr(112+8*mi+r,2)}")
            for k in range(4): p(f"v_cvt_pk_bf16_f32 v{D+k}, v{A+2*k}, v{A+2*k+1}")
            p(f"s_nop 1\nv_permlane32_swap_b32 v{D}, v{D+2}\nv_permlane32_swap_b32 v{D+1}, v{D+3}")
            p(f"buffer_store_dwordx4 {vr(D,4)}, v4, {sr(SRD1,4)}, s54 offen offset:{mi*64}")
        if not (kh == 1 and final): p("s_branch L_fin")

def run(p):
    attn_b(p, mid_epi=mid_epi)
    stamp(p, 8)
    for x in range(2):
        for r in range(1, 4): p(f"v_mov_b32 v{A_Q(x,1)+r}, 0\nv_mov_b32 v{A_K(x,1)+r}, 0")
    p(f"v_lshlrev_b32 v{A_TK4}, 2, v2\nv_add_u32 v{A_TK4}, {AH_K2}, v{A_TK4}")
    p(f"v_min_u32 v6, 19, v2\nv_lshlrev_b32 v6, 4, v6\nv_mul_u32_u24 v7, 320, v3\nv_add_u32 v6, v6, v7\nv_add_u32 v{A_VL}, {AH_V}, v6")
    p(f"v_mov_b32 v{A_KM}, v{V_L16}\nv_mov_b32 v{A_K2}, v{A_TK4}\nv_mov_b32 v{A_V}, v{A_VL}\ns_mov_b32 s{S_AC}, 0")
    mk_srd(p, SRD1, P_OUT, 2048 * 1152 * 2)
    p(f"s_lshr_b32 s52, s{S_J}, 3\ns_lshl_b32 s{S_OT}, s{S_XCD}, 2\ns_add_u32 s{S_OT}, s{S_OT}, s52\ns_lshl_b32 s{S_OT}, s{S_OT}, 1")
    p(f"s_and_b32 s68, s{S_J}, 7\ns_lshl_b32 s{S_OM}, s68, 1\ns_add_u32 s{S_OM}, s{S_OM}, 2\ns_mul_i32 s52, s68, 3\ns_cmp_lt_u32 s68, 2\ns_cselect_b32 s{S_OM}, s52, s{S_OM}")
    p(f"s_lshl_b32 s52, s{S_WAVE}, 16\ns_lshl_b32 s{S_O0}, s{S_OT}, 18\ns_add_u32 s{S_O0}, s{S_O0}, s52\ns_add_u32 s{S_O0}, s{S_O0}, {WS_CTXB}\ns_add_u32 s{S_O1}, s{S_O0}, 262144")
    p(f"s_mul_i32 s{S_OW}, s{S_WAVE}, {64*18432}\ns_lshl_b32 s53, s{S_OM}, 10\ns_add_u32 s{S_OW}, s{S_OW}, s53\ns_add_u32 s{S_OW}, s{S_OW}, {WS_WOB}")
    p(f"s_mov_b32 s67, {WS_FLAG}\ns_lshl_b32 s52, s{S_G}, 2\ns_cmp_eq_u32 s{S_WAVE}, 0\ns_cselect_b32 s69, s52, {OOB}")
    p(f"v_and_b32 v4, 1, v{V_LANE}\nv_bfe_u32 v5, v{V_LANE}, 1, 1\nv_lshrrev_b32 v6, 2, v{V_LANE}\nv_mul_u32_u24 v5, 320, v5\nv_mul_u32_u24 v6, 640, v6\nv_lshlrev_b32 v7, 4, v4")
    p(f"v_add3_u32 v5, v5, v6, v7\nv_add_u32 v5, {AH_V + 288}, v5\nv_subrev_u32 v6, s{S_AW}, v5\nv_cmp_gt_u32 vcc, 5120, v6\nv_mov_b32 v7, 0x100000\nv_mov_b32 v6, 0x3f803f80\nv_cndmask_b32 v{A_FX}, v7, v5, vcc")
    p(f"v_cmp_eq_u32 vcc, 0, v4\nv_mov_b32 v{A_FT}, v{A_FX}\ns_nop 0\nv_cndmask_b32 v{A_CN}, 0, v6, vcc\nv_mov_b32 v{A_CN+1}, v{A_CN}\nv_mov_b32 v{A_CN+2}, v{A_CN}\nv_mov_b32 v{A_CN+3}, v{A_CN}")
    p(f"s_waitcnt vmcnt(10)\n{FIX}\ns_waitcnt lgkmcnt(0)\ns_barrier")
    p.ext([f"ds_read_b128 {vr(A_K(0,0),4)}, v{A_KM}", f"ds_read_b32 v{A_K(0,1)}, v{A_K2}",
           f"ds_read_b128 {vr(A_K(1,0),4)}, v{A_KM} offset:1024", f"ds_read_b32 v{A_K(1,1)}, v{A_K2} offset:128", "s_waitcnt lgkmcnt(0)"])
    for x in range(2):
        for ks in range(2):
            d = vr(A_S(0, x), 16)
            p(mfma(d, vr(A_K(0, ks), 4), vr(A_Q(x, ks), 4), "0" if ks == 0 else d))
    p("s_nop 9")
    for x in range(2):
        S = A_S(0, x); vn = A_N[x]
        p(f"v_max3_f32 v{vn}, v{S}, v{S+1}, v{S+2}")
        for r in range(3, 15, 2): p(f"v_max3_f32 v{vn}, v{vn}, v{S+r}, v{S+r+1}")
        p(f"v_max_f32 v{vn}, v{vn}, v{S+15}")
    p(f"v_mov_b32 v8, v{A_N[0]}\nv_mov_b32 v9, v{A_N[1]}\ns_nop 1\nv_permlane32_swap_b32 v{A_N[0]}, v8\nv_permlane32_swap_b32 v{A_N[1]}, v9\ns_nop 1")
    p(f"v_max_f32 v{A_N[0]}, v{A_N[0]}, v8\nv_max_f32 v{A_N[1]}, v{A_N[1]}, v9")
    for x in range(2):
        for r in range(16): p(f"v_sub_f32 v{A_S(0,x)+r}, v{A_S(0,x)+r}, v{A_N[x]}\nv_sub_f32 v{A_C(x)+r}, 0, v{A_N[x]}")
    p("v_mov_b32 v8, s69\nv_mov_b32 v9, 1")
    E8 = [[] for _ in range(8)]
    CK = int(ENV("FBCK", "5"))
    it0 = iteration(0, None, E8, [], first=True, rels=range(CK),
                    extra={1: dict(pre=["s_waitcnt vmcnt(0)", "s_barrier"], vm=[flag_set(0)]), CK - 1: dict(vm=[[flag_load(0) + " ; T:fb"]])})
    p.ext(resolve_vm(it0 + ["VMWAIT fb"]))
    flag_test(p)
    p("s_cbranch_scc1 L_fbspin")
    p.label("L_fbok")
    stamp(p, 9); stamp2(p, 1)
    p("s_cmp_lt_u32 s68, 2\ns_cbranch_scc0 L_o_two")
    for nm, lab in ((3, "t"), (2, "d")):
        if nm == 2: p.label("L_o_two")
        o = Out(nm)
        carry = []; NEXTV[0] = 0
        first = sum((o.loads(k, f"b{k}") for k in range(DEPTH)), [])
        S0 = int(ENV("BST", "3"))
        nsl = 8 - CK + S0
        per = -(-len(first) // nsl)
        ex0 = {r: dict(vm=first[(r-CK)*per:(r-CK+1)*per]) for r in range(CK, 8)}
        ex1 = {r: dict(vm=first[(r+8-CK)*per:(r+9-CK)*per]) for r in range(S0)}
        its = [[x for x in iteration(0, o, E8, carry, extra=ex0, rels=range(CK, 8)) if x != "VMWAIT c1"]]
        its.append(iteration(1, o, [[] if r < S0 else [r - S0] for r in range(8)], carry, extra=ex1))
        cnt = {7: dict(vm=[[f"s_sub_u32 s{S_IT}, s{S_IT}, 1"]])}
        for it in range(2, 6): its.append(iteration(it, o, [[8 * (it - 1) - S0 + r] for r in range(8)], carry, extra=cnt))
        pf = [[f"s_lshl_b32 s52, s{S_J}, 2", f"s_add_u32 s52, s52, s{S_WAVE}"], [f"s_mul_i32 s52, s52, {41*128}", f"s_add_u32 s52, s52, {WS_WOA}"],
              [f"v_lshlrev_b32 v245, 7, v{V_LANE}", f"buffer_load_dword v244, v245, {sr(SRD_WS,4)}, s52 offen"]]
        its.append(iteration(6, o, [[40 - S0 + r] for r in range(8)], carry, extra={2: dict(vm=pf)}))
        its.append(iteration(7, o, [[48 - S0 + r] for r in range(8)], carry, last=True))
        fin = a_slot(0, qk=False, sm=False, rdk=False, rdv=False, vm=list(carry), carry=carry)
        q = Prog()
        q.ext(sum(carry, []))
        q("s_nop 10")
        a_lget(q)
        q(f"s_mov_b32 s52, 0x4e800000\nv_cmp_nge_f32 vcc, s52, v{A_N[0]}\nv_cmp_nge_f32 s[70:71], s52, v{A_N[1]}\ns_mov_b32 s{S_IT}, {nm}\ns_or_b64 vcc, vcc, s[70:71]")
        q("s_cbranch_vccnz L_a_slow")
        q.label(f"L_a_epi_{lab}")
        a_epilogue(q)
        q("v_mov_b32 v8, s69\nv_mov_b32 v9, 1")
        stamp2(q, 5)
        head = q
        base = sum(its, []) + fin + head.l
        allr = resolve_vm(base)
        cut = [0]
        for x in its: cut.append(cut[-1] + len(x))
        strip = lambda l: [x.split(" ; T:")[0] for x in l]
        seg = [strip(allr[cut[k]:cut[k+1]]) for k in range(len(its))]
        assert seg[3] == seg[4] == seg[5], "loop not in steady state"
        loop_from = 2 if seg[2] == seg[3] else 3
        check(seg[3] * 2, "mloop")
        for k in range(loop_from): p.ext(seg[k])
        stamp2(p, 2)
        p(f"s_mov_b32 s{S_IT}, {6 - loop_from}")
        p.label(f"L_m_{lab}")
        p.ext(seg[3])
        p(f"s_cmp_lg_u32 s{S_IT}, 0\ns_cbranch_scc1 L_m_{lab}")
        stamp2(p, 3)
        p.ext(allr[cut[6]:])
        if nm == 2: p(f"s_cmp_ge_u32 s68, 6\ns_cbranch_scc1 L_tail_d3")
        for na in ((2,) if nm == 3 else (2, 3)):
            lb = f"{lab}{na}"
            if na == 3: p.label("L_tail_d3")
            tail_variant(p, o, na, lb, base, S0, final=(nm == 2 and na == 3))
    p.label("L_fin")

def tail(p):
    spin(p, "L_s2spin", "L_s2ok", ["v_mov_b32 v28, 0", f"buffer_load_dword v28, v28, {sr(SRD_DBG,4)}, 0 offen sc1"],
         ["v_readfirstlane_b32 s52, v28", "s_cmp_lt_u32 s52, 256"], 53)
    q = Prog(); flag_test(q)
    spin(p, "L_fbspin", "L_fbok", [flag_load(0)], q.l, 53)
    for lab in ("t2", "d2", "d3"): spin(p, f"L_faspin_{lab}", f"L_faok_{lab}", [flag_load(1)], q.l, 53)
    p.label("L_a_slow")
    p("s_waitcnt vmcnt(0)")
    for ps in range(2):
        if ps == 0:
            for x in range(2):
                p(f"v_mov_b32 v{A_N[x]}, {NEGBIG}")
                for r in range(16): p(f"v_mov_b32 v{A_C(x)+r}, 0")
        else:
            p(f"v_mov_b32 v8, v{A_N[0]}\nv_mov_b32 v9, v{A_N[1]}\ns_nop 1\nv_permlane32_swap_b32 v{A_N[0]}, v8\nv_permlane32_swap_b32 v{A_N[1]}, v9\ns_nop 1")
            p(f"v_max_f32 v{A_N[0]}, v{A_N[0]}, v8\nv_max_f32 v{A_N[1]}, v{A_N[1]}, v9")
            for x in range(2):
                for r in range(16): p(f"v_sub_f32 v{A_C(x)+r}, 0, v{A_N[x]}\nv_mov_b32 v{A_O(x)+r}, 0")
        p("s_mov_b32 s52, 0")
        p.label(f"L_a_sl{ps}")
        p(f"s_lshr_b32 s53, s52, 3\ns_mul_i32 s53, s53, {AH_CS}\ns_mul_i32 s54, s{S_HEAD}, {AH_STRIDE}\ns_add_u32 s53, s53, s54\ns_add_u32 s53, s53, {WS_AH}\ns_and_b32 s54, s52, 7")
        p(f"s_lshl_b32 s55, s54, 10\ns_add_u32 s55, s55, s53\nbuffer_load_dwordx4 {vr(A_K(0,0),4)}, v{V_L16}, {sr(SRD_WS,4)}, s55 offen {LC}")
        p(f"s_lshl_b32 s55, s54, 7\ns_add_u32 s55, s55, s53\nbuffer_load_dword v{A_K(0,1)}, v{A_TK4}, {sr(SRD_WS,4)}, s55 offen {LC}")
        p(f"s_mul_i32 s55, s54, 1280\ns_add_u32 s55, s55, s53")
        for s in range(2): p(f"buffer_load_dwordx4 {vr(A_VF(0,s),4)}, v{A_VL}, {sr(SRD_WS,4)}, s55 offen offset:{s*640} {LC}")
        p("v_cmp_eq_u32 vcc, 18, v2\nv_mov_b32 v6, 0x3f803f80\ns_waitcnt vmcnt(0)\nv_cndmask_b32 v6, 0, v6, vcc\nv_cmp_gt_u32 vcc, 18, v2\ns_nop 1")
        for r in range(8): p(f"v_cndmask_b32 v{A_VF(0,0)+r}, v6, v{A_VF(0,0)+r}, vcc")
        for ks in range(2):
            for x in range(2):
                d = vr(A_S(0, x), 16)
                p(mfma(d, vr(A_K(0, ks), 4), vr(A_Q(x, ks), 4), vr(A_C(x), 16) if ks == 0 else d))
        p("s_nop 15")
        for x in range(2):
            S = A_S(0, x)
            if ps == 0:
                for r in range(16): p(f"v_max_f32 v{A_N[x]}, v{A_N[x]}, v{S+r}")
            else:
                for r in range(16): p(f"v_exp_f32 v{S+r}, v{S+r}")
                p("s_nop 0")
                for k in range(8): p(f"v_cvt_pk_bf16_f32 v{A_P(0,x)+k}, v{S+2*k}, v{S+2*k+1}")
        if ps:
            p("s_nop 1")
            for s in range(2):
                for x in range(2): p(mfma(vr(A_O(x), 16), vr(A_VF(0, s), 4), vr(A_P(0, x) + 4 * s, 4), vr(A_O(x), 16)))
            p("s_nop 15")
        p(f"s_add_u32 s52, s52, 1\ns_cmp_lt_u32 s52, 64\ns_cbranch_scc1 L_a_sl{ps}")
    a_lget(p)
    p(f"s_cmp_eq_u32 s{S_IT}, 3\ns_cbranch_scc1 L_a_epi_t\ns_branch L_a_epi_d")
```

```python
from asmlib import *
import os
WSOFF = int(os.environ.get('WSOFF', '0')) << 20

NAME = "concat_heads__softmax_full_mha__compressed_kv_cla__prompt"
MB = 1 << 20
WS_KB   = 0
WS_VB   = 16 * MB
WS_CTXB = 33 * MB
WS_AH   = 50 * MB
AH_CS = 20480
AH_STRIDE = 8 * AH_CS
AH_K2 = 8192
AH_V  = 9216
WS_QA   = 56 * MB
QA_CS = 9216
QA_STRIDE = 8 * QA_CS
WS_CTXA = 59 * MB
WS_WOB  = 62 * MB
WS_WOA  = WS_WOB + 256 * 18 * 1024
WS_FLAG = 68 * MB
WS_SIZE = 256 * MB
SRD_DBG = 72

P_AX, P_AWQKV, P_AWO, P_BX, P_CKV, P_WQ, P_WUK, P_WUV, P_BWO, P_OUT, P_DBG, P_WS = range(4, 28, 2)
S_WAVE, S_XCD, S_J, S_HEAD, S_BLK, S_G = 28, 29, 30, 31, 32, 33
SRD_WS, SRD1, SRD2, SRD3 = 36, 40, 44, 48
V_TID, V_LANE = 0, 1

def mk_srd(p, d, ptr, size):
    p(f"s_mov_b32 s{d}, s{ptr}\ns_mov_b32 s{d+1}, s{ptr+1}\ns_mov_b32 s{d+2}, {size}\ns_mov_b32 s{d+3}, 0x20000")

def entry(p, nwg, exit_label):
    p(f"s_cmp_ge_u32 s2, {nwg}\ns_cbranch_scc1 {exit_label}")
    p("s_load_dwordx16 s[4:19], s[0:1], 0\ns_load_dwordx8 s[20:27], s[0:1], 64")
    p(f"v_lshrrev_b32 v2, 6, v0\nv_and_b32 v{V_LANE}, 63, v0\ns_mov_b32 s{S_G}, s2")
    p(f"v_readfirstlane_b32 s{S_WAVE}, v2")
    p(f"s_and_b32 s{S_XCD}, s2, 7\ns_lshr_b32 s{S_J}, s2, 3")
    p(f"s_and_b32 s{S_HEAD}, s{S_J}, 3\ns_lshl_b32 s52, s{S_XCD}, 2\ns_add_u32 s{S_HEAD}, s{S_HEAD}, s52")
    p(f"s_lshr_b32 s{S_BLK}, s{S_J}, 2")
    p("s_waitcnt lgkmcnt(0)")
    if WSOFF: p(f"s_add_u32 s{P_WS}, s{P_WS}, {WSOFF}\ns_addc_u32 s{P_WS+1}, s{P_WS+1}, 0")
    mk_srd(p, SRD_WS, P_WS, hex(WS_SIZE - WSOFF))

def kernel_header(name):
    return f".globl {name}\n.p2align 8\n.type {name},@function\n{name}:\n"

def kernel_desc(name, vgpr=512, accum=256, sgpr=102):
    return f""".amdhsa_kernel {name}
  .amdhsa_next_free_vgpr {vgpr}
  .amdhsa_next_free_sgpr {sgpr}
  .amdhsa_accum_offset {accum}
  .amdhsa_group_segment_fixed_size 0
  .amdhsa_kernarg_size 96
  .amdhsa_user_sgpr_count 2
  .amdhsa_user_sgpr_kernarg_segment_ptr 1
  .amdhsa_system_sgpr_workgroup_id_x 1
  .amdhsa_float_denorm_mode_32 3
.end_amdhsa_kernel
"""

def mfma(d, a, b, c):
    return f"v_mfma_f32_32x32x16_bf16 {d}, {a}, {b}, {c}"

STAMPS = False
STI = 's_memrealtime' if os.environ.get('RT') else 's_memtime'
WS_STAMP = 100 * MB
_stamp_n = [0]
def stamp_begin(p):
    if not STAMPS: return
    _stamp_n[0] = 0
    p("s_memrealtime s[98:99]")
    for k in range(11): p(f"s_mov_b32 s{76+2*k}, 0")
    stamp(p)
def stamp2(p, idx):
    if STAMPS and os.environ.get('STAMPS') == '2': p(f"{STI} s[{76+2*idx}:{77+2*idx}]")
def stamp4(p, idx):
    if STAMPS and os.environ.get('STAMPS') == '4': p(f"{STI} s[{76+2*idx}:{77+2*idx}]")
def stamp5(p, idx):
    if STAMPS and os.environ.get('STAMPS') == '5': p(f"{STI} s[{76+2*idx}:{77+2*idx}]")
def stamp(p, idx=None):
    if not STAMPS: return
    if os.environ.get('STAMPS') in ('2', '3', '4', '5') and idx: return
    k = _stamp_n[0] if idx is None else idx
    _stamp_n[0] = k + 1
    assert k < 11
    p(f"{STI} s[{76+2*k}:{77+2*k}]")
def stamp_end(p, kidx):
    if not STAMPS: return
    p(STI + " s[96:97]\ns_memrealtime s[100:101]\ns_waitcnt lgkmcnt(0)")
    p(f"s_lshl_b32 s52, s{S_G}, 2\ns_add_u32 s52, s52, s{S_WAVE}\ns_lshl_b32 s52, s52, 6\ns_add_u32 s52, s52, {WS_STAMP + kidx*65536}")
    p("v_mov_b32 v2, 0")
    for k in range(11):
        p(f"v_mov_b32 v3, s{76+2*k}\nbuffer_store_dword v3, v2, {sr(SRD_WS,4)}, s52 offen offset:{4*k}")
    p(f"v_mov_b32 v3, s98\nbuffer_store_dword v3, v2, {sr(SRD_WS,4)}, s52 offen offset:44")
    p(f"v_mov_b32 v3, s100\nbuffer_store_dword v3, v2, {sr(SRD_WS,4)}, s52 offen offset:48")
```

```python
from phase1 import lane_parts, act_read_addrs, w_read_addrs, act_dma_addrs, w_dma_addrs, finish, split_at_mfma, groups, f32hex, LOG2E
from gemm import *
import os
ENV = os.environ.get
SC = "sc1"
LC = ENV("LC", "sc1")
NT = ENV("NT", "nt")
OOB = "0x80000000"

VA_ = {0: [10, 11, 12, 13], 131072: [14, 15, 16, 17]}
VW_ = {65536: [18, 19, 20, 21]}
ACC, PP = 64, 192
def abase(st): return (0, 32768, 131072)[st % 3]
def wbase(g): return (98304, 65536, 81920)[g % 3]
S_ST, S_STT = 63, 64
S_RB, S_CB = 68, 69
V_L16 = 30
V_FLAG = 31
SRD_PF = 72

def segs(role):
    cm = dict(mt=2, nt=4, acc=lambda ti, fi: vr(ACC + (ti * 4 + fi) * 16, 16), vA=VA_, vW=VW_,
              fw=lambda k, fi: vr(32 + (k % 2) * 16 + 4 * fi, 4), sM0A=56, sM0W=57, stepW=64 * 8192, vDW=[26, 27, 28, 29], abase=abase)
    vda = [(22, 58), (23, 58), (24, 58), (25, 58), (22, 60), (23, 60), (24, 60), (25, 60)]
    K = Seg("kk", nst=8, wbase=wbase, orient=lambda ti, fi: 'FT', fa=lambda k, ti: ar((k * 2 + ti) * 4, 4), vDA=vda, srdA=SRD1, srdW=SRD2, sOffW=59, flW=NT, **cm)
    V = Seg("kv", nst=8, wbase=lambda st: wbase(st + 8), orient=lambda ti, fi: 'TF', fa=lambda k, ti: ar((k * 2 + ti) * 4, 4), read_act=False, srdW=SRD3, sOffW=61, flW=ENV('NTV', ''), **cm)
    Q = Seg("q", nst=9, wbase=lambda st: wbase(st + 16), orient=lambda ti, fi: 'FT', fa=lambda k, ti: ar(((k % 2) * 2 + ti) * 4, 4), vDA=vda, srdA=SRD1, srdW=SRD2, sOffW=62, flW=ENV('NTV', ''), **cm)
    q = Prog(); mk_srd(q, SRD2, P_AWQKV, 576 * 3456)
    A = Seg("aq", mt=2, nt=2, nst=9, abase=lambda st: (st % 4) * 32768, wbase=lambda st: (st % 4) * 32768 + 16384,
            acc=lambda ti, fi: ar(64 + (ti * 2 + fi) * 16, 16), orient=lambda ti, fi: role,
            vA={0: [244, 245, 246, 247], 65536: [248, 249, 250, 251]}, vW={0: [252, 253], 65536: [254, 255]},
            fa=lambda k, ti: ar(16 + (k % 3) * 16 + 4 * ti, 4), fw=lambda k, fi: ar(16 + (k % 3) * 16 + 8 + 4 * fi, 4),
            vDA=[236, 237, 238, 239], vDW=[240, 241, 242, 243], sM0A=65, sM0W=65, sOffA=66, sOffW=67, stepW=64 * 3456,
            srdA=SRD3, srdW=SRD2, dist=2, pre_dma=q.l)
    return K, V, Q, A

def pack():
    return {(ti, fi): [f"v_cvt_pk_bf16_f32 v{PP + (ti*4+fi)*8 + e}, v{ACC + (ti*4+fi)*16 + 2*e}, v{ACC + (ti*4+fi)*16 + 2*e + 1}" for e in range(8)]
            for ti in range(2) for fi in range(4)}
def stores(isV):
    out = []
    S_STT = 64 if isV else 71
    for ti in range(2):
        for half in range(2):
            for q in range(4):
                blk = half * 4 + q
                fi, s = (blk & 3, blk >> 2) if isV else (blk >> 1, blk & 1)
                pre = [f"s_add_u32 s{S_STT}, s{S_ST}, {(WS_VB if isV else 0) + ti*8192 + half*4096}"] if q == 0 else []
                out.append(pre + [f"buffer_store_dwordx4 {vr(PP + (ti*4+fi)*8 + 4*s, 4)}, v{V_L16}, {sr(SRD_WS,4)}, s{S_STT} offen offset:{q*1024} {SC} ; T:{'vst' if isV else 'kst'}"])
    return out

def splice_pack(lines, first_mfma, order):
    pk = pack(); res = []; nm = 0
    for x in lines:
        if not x.startswith("VMWAIT") and I(x).kind == "mfma":
            j = nm - first_mfma
            if 0 <= j < 8: res += (["s_nop 3"] if j == 0 else []) + pk[order[j]] + ["s_nop 0"]
            nm += 1
        res.append(x)
    return res

def signal(imm, vtmp=8, vone=9):
    return [f"s_mov_b64 exec, 1", f"buffer_atomic_add v{vone}, v{vtmp}, {sr(SRD_DBG,4)}, 0 offen offset:{imm} sc1", "s_mov_b64 exec, -1"]

QSC = 70
def q_epilogue():
    early = []; late = []
    for t in range(8):
        a0 = ACC + t * 16
        for e in range(16): early.append([f"v_mul_f32 v{a0+e}, s{QSC}, v{a0+e}"])
        for e in range(8):
            d = PP + t * 8 + e
            it = [f"v_cvt_pk_bf16_f32 v{d}, v{a0+2*e}, v{a0+2*e+1}"]
            (early if d < 236 else late).append((d, it) if d >= 236 else it)
    mid = [it for d, it in late if d < 244]; last = [it for d, it in late if d >= 244]
    return early, mid, last

E_A4, E_A2A, E_A2B, E_AP, E_AP2, E_REM = 32, 39, 40, 41, 42, 43
E_T = 52
E_OFF = 160
S_EB, S_EHS, S_ECS, S_ESC, S_ETT, S_EF = 56, 34, 60, 61, 62, 71
def aq_addr_qk_valu():
    q = Prog()
    T = 224; AP = 231; R = 232; X = 233
    st = lambda e, r: q(f"v_accvgpr_write_b32 a{128 + e - 32}, v{r}")
    q(f"s_and_b32 s52, s{S_WAVE}, 1\ns_lshl_b32 s52, s52, 6\ns_lshl_b32 s{S_EF}, s{S_CB}, 7\ns_add_u32 s{S_EF}, s{S_EF}, s52")
    q(f"s_mov_b32 s{S_EHS}, {AH_STRIDE}\ns_cmp_lt_u32 s{S_EF}, 576\ns_cmov_b32 s{S_EHS}, {QA_STRIDE}\ns_cselect_b32 s52, 0, 576")
    q(f"s_sub_u32 s52, s{S_EF}, s52\ns_mov_b32 s53, 3641")
    q(f"v_lshlrev_b32 v{T}, 4, v2\nv_lshlrev_b32 v{T+1}, 2, v2\nv_lshlrev_b32 v{T+2}, 2, v3\nv_add_u32 v{T+2}, s52, v{T+2}\nv_mov_b32 v{T+3}, {OOB}\nv_mov_b32 v{AP}, {OOB}")
    for n in range(8):
        q(f"v_add_u32 v{T+4}, {8*n}, v{T+2}\nv_mul_lo_u32 v{T+5}, v{T+4}, s53\nv_lshrrev_b32 v{T+5}, 16, v{T+5}")
        q(f"v_mul_u32_u24 v{R}, 18, v{T+5}\nv_sub_u32 v{R}, v{T+4}, v{R}\nv_mul_lo_u32 v{T+5}, v{T+5}, s{S_EHS}")
        q(f"v_cmp_eq_u32 vcc, 16, v{R}\nv_add_u32 v{T+4}, v{T+5}, v{T+1}\nv_bfe_u32 v{T+6}, v{R}, 2, 1\nv_cndmask_b32 v{AP}, v{AP}, v{T+4}, vcc")
        q(f"v_cmp_gt_u32 vcc, 8, v{R}\nv_lshlrev_b32 v{T+6}, 9, v{T+6}\nv_add3_u32 v{T+6}, v{T+6}, v{T+5}, v{T}")
        q(f"v_cndmask_b32 v{X}, v{T+3}, v{T+6}, vcc")
        st(E_REM + n, R); st(E_A4 + n if n < 7 else E_A2B, X)
        if n == 0:
            q(f"v_add_u32 v{T+4}, -8, v{R}\nv_cmp_gt_u32 vcc, 8, v{T+4}\nv_add_u32 v{T+6}, 8, v{T+6}\ns_nop 0\nv_cndmask_b32 v{X}, v{T+3}, v{T+6}, vcc")
            st(E_A2A, X)
    q(f"v_add_u32 v{X}, s{S_EHS}, v{AP}")
    st(E_AP, AP); st(E_AP2, X)
    return q.l
def aq_addr_qk():
    q = Prog()
    q(f"s_mov_b32 s{S_EB}, {WS_AH}\ns_mov_b32 s{S_ECS}, {AH_CS}\ns_cmp_lt_u32 s{S_EF}, 576")
    q(f"s_cmov_b32 s{S_EB}, {WS_QA}\ns_cmov_b32 s{S_ECS}, {QA_CS}\ns_cselect_b32 s{S_ESC}, 1, 0")
    q(f"s_lshl_b32 s{S_ETT}, s{S_RB}, 2\ns_and_b32 s52, s{S_WAVE}, 2\ns_add_u32 s{S_ETT}, s{S_ETT}, s52\ns_lshr_b32 s52, s{S_ETT}, 3\ns_mul_i32 s52, s52, s{S_ECS}")
    q(f"s_add_u32 s{S_EB}, s{S_EB}, s52\ns_and_b32 s{S_ETT}, s{S_ETT}, 7")
    return q.l
def aq_addr_v():
    q = Prog(); T = E_T
    q(f"s_sub_u32 s{S_EF}, s{S_EF}, 1152")
    q(f"s_lshl_b32 s{S_ETT}, s{S_RB}, 2\ns_and_b32 s52, s{S_WAVE}, 2\ns_add_u32 s{S_ETT}, s{S_ETT}, s52\ns_lshr_b32 s52, s{S_ETT}, 3\ns_mul_i32 s{S_EB}, s52, {AH_CS}")
    q(f"s_and_b32 s{S_ETT}, s{S_ETT}, 7\ns_mul_i32 s52, s{S_ETT}, 1280\ns_add_u32 s{S_EB}, s{S_EB}, s52\ns_add_u32 s{S_EB}, s{S_EB}, {WS_AH + AH_V}")
    q(f"s_mov_b32 s53, 3641\ns_mov_b32 s{S_EHS}, {AH_STRIDE}\nv_mul_u32_u24 v{T}, 320, v3\nv_mov_b32 v{T+3}, {OOB}")
    for fi in range(2):
        q(f"s_add_u32 s52, s{S_EF}, {32*fi}\nv_add_u32 v{T+4}, s52, v2\nv_mul_lo_u32 v{T+5}, v{T+4}, s53\nv_lshrrev_b32 v{T+5}, 16, v{T+5}")
        q(f"v_mul_u32_u24 v{T+6}, 18, v{T+5}\nv_sub_u32 v{T+6}, v{T+4}, v{T+6}\nv_mul_lo_u32 v{T+5}, v{T+5}, s{S_EHS}\nv_lshlrev_b32 v{T+6}, 4, v{T+6}")
        q(f"v_cmp_gt_u32 vcc, 576, v{T+4}\nv_add3_u32 v{T+6}, v{T+6}, v{T+5}, v{T}\ns_nop 0\nv_cndmask_b32 v{E_A4+fi}, v{T+3}, v{T+6}, vcc")
    return q.l

def fgroups(lines):
    out = []; cmp_ = None; open_ = False
    for x in lines:
        op = x.split()[0]
        if op.startswith("s_cmp"):
            cmp_ = x; open_ = False; continue
        if op.startswith("s_cselect") or op.startswith("s_cmov"):
            if open_ and len(out[-1]) < 3: out[-1].append(x)
            else: out.append([cmp_, x]); open_ = True
            continue
        open_ = False
        out.append([x])
    return out

def idx(lines, pred):
    return [i for i, x in enumerate(lines) if not x.startswith("VMWAIT") and not x.endswith(":") and pred(I(x), x)]
def before(lines, a, b, msg):
    A = idx(lines, a); B = idx(lines, b)
    assert A and B, msg + " (empty)"
    assert max(A) < min(B), f"{msg}: {max(A)} !< {min(B)}"
def W(lo, hi): return lambda i, x: i.kind == "valu" and any(r[0] == 'v' and lo <= r[1] <= hi for r in i.w)
def RD(lo, hi, kinds): return lambda i, x: i.kind in kinds and any(r[0] == 'v' and lo <= r[1] <= hi for r in i.r)

EV = 96 - 32
def aq_epi_qk(p):
    for r in range(19): p(f"v_accvgpr_read_b32 v{96+r}, a{128+r}")
    p(f"s_cmp_eq_u32 s{S_ESC}, 0\ns_cselect_b32 s52, 1.0, {f32hex(18 ** -0.5 * LOG2E)}\ns_mov_b32 s53, s52")
    p(f"s_lshl_b32 s34, s{S_ETT}, 10\ns_add_u32 s34, s34, s{S_EB}\ns_add_u32 s35, s34, 1024")
    p(f"s_lshl_b32 s71, s{S_ETT}, 7\ns_add_u32 s71, s71, s{S_EB}\ns_add_u32 s71, s71, {AH_K2}")
    st = []
    for ti in range(2):
        b = 128 + ti * 16
        for fi in range(2):
            for e in range(16): p(f"v_accvgpr_read_b32 v{64+e}, a{64 + ti*32 + fi*16 + e}")
            last = ti == 1 and fi == 1
            if last:
                for e in range(16): p(f"v_mul_f32 v{64+e}, s52, v{64+e}")
            else:
                for e in range(0, 16, 2): p(f"v_pk_mul_f32 {vr(64+e,2)}, {vr(64+e,2)}, s[52:53]")
            for e in range(8): p(f"v_cvt_pk_bf16_f32 v{b+fi*8+e}, v{64+2*e}, v{64+2*e+1}")
        so = 34 + ti
        for n in range(7): st.append([f"buffer_store_dwordx4 {vr(b+2*n,4)}, v{E_A4+EV+n}, {sr(SRD_WS,4)}, s{so} offen {SC}"])
        st.append([f"buffer_store_dwordx2 {vr(b,2)}, v{E_A2A+EV}, {sr(SRD_WS,4)}, s{so} offen {SC}"])
        st.append([f"buffer_store_dwordx2 {vr(b+14,2)}, v{E_A2B+EV}, {sr(SRD_WS,4)}, s{so} offen {SC}"])
    m = Prog()
    for n in range(8): m(f"v_cmp_eq_u32 s[{(42, 44, 46, 48, 50, 40, 66, 68)[n]}:{(42, 44, 46, 48, 50, 40, 66, 68)[n]+1}], 16, v{E_REM+EV+n}")
    for n in range(8):
        r = (42, 44, 46, 48, 50, 40, 66, 68)[n]
        m(f"s_cmp_eq_u64 s[{r}:{r+1}], 0\ns_cbranch_scc1 L_aq_np{n}\ns_mov_b64 exec, s[{r}:{r+1}]")
        for ti in range(2):
            b = 128 + ti * 16
            m(f"buffer_store_dword v{b+2*n}, v{E_AP+EV}, {sr(SRD_WS,4)}, s71 offen offset:{ti*128} {SC}\nbuffer_store_dword v{b+2*n+1}, v{E_AP2+EV}, {sr(SRD_WS,4)}, s71 offen offset:{ti*128} {SC}")
        m("s_mov_b64 exec, -1")
        m.label(f"L_aq_np{n}")
    return st, m.l
def aq_epi_v(p):
    st = []
    p(f"v_mov_b32 v96, v{E_A4}\nv_mov_b32 v97, v{E_A4+1}\ns_mov_b32 s34, s{S_EB}")
    for ti in range(2):
        for fi in range(2):
            b = 128 + (ti * 2 + fi) * 8
            for e in range(16): p(f"v_accvgpr_read_b32 v{64 + e}, a{64 + (ti*2+fi)*16 + e}")
            for e in range(8): p(f"v_cvt_pk_bf16_f32 v{b+e}, v{64+2*e}, v{64+2*e+1}")
            for s in range(2): st.append([f"buffer_store_dwordx4 {vr(b+4*s,4)}, v{96+fi}, {sr(SRD_WS,4)}, s34 offen offset:{ti*1280 + s*640} {SC}"])
    return st

def front(p, ring_setup, ring_groups, post, qk_path, v_path, late_setup, early_setup):
    lane_parts(p)
    mk_srd(p, SRD1, P_CKV, 2048 * 1024)
    mk_srd(p, SRD2, P_WUK, 512 * 8192)
    K, V, Q, A = segs('FT')
    p(f"s_lshl_b32 s54, s{S_WAVE}, 4")
    w_dma_addrs(p, [26, 27, 28, 29], 54, 8192)
    p(f"s_lshl_b32 s54, s{S_WAVE}, 6")
    act_dma_addrs(p, [22, 23, 24, 25], 54, 1024)
    p(f"s_lshl_b32 s56, s{S_WAVE}, 13\ns_lshl_b32 s57, s{S_WAVE}, 12")
    p(f"s_lshl_b32 s58, s{S_BLK}, 18\ns_add_u32 s60, s58, {32*1024}\ns_lshl_b32 s59, s{S_HEAD}, 8\ns_mov_b32 s61, s59\ns_mov_b32 s62, s59")
    pre = []
    for st in range(3):
        for g in K.dma(st): pre += g
    p.ext(pre)
    mk_srd(p, SRD3, P_WUV, 512 * 8192)
    p(f"s_lshl_b32 s54, s{S_WAVE}, 13")
    act_read_addrs(p, VA_, 54)
    w_read_addrs(p, VW_, None)
    p(f"v_lshlrev_b32 v{V_L16}, 4, v{V_LANE}")
    p(f"s_lshl_b32 s{S_ST}, s{S_HEAD}, 19\ns_lshl_b32 s52, s{S_BLK}, 16\ns_add_u32 s{S_ST}, s{S_ST}, s52\ns_lshl_b32 s52, s{S_WAVE}, 14\ns_add_u32 s{S_ST}, s{S_ST}, s52")
    p(f"s_mul_i32 s52, s{S_J}, 9363\ns_lshr_b32 s52, s52, 16\ns_mul_i32 s53, s52, 7\ns_sub_u32 s53, s{S_J}, s53")
    p(f"s_lshr_b32 s{S_RB}, s{S_XCD}, 1\ns_lshl_b32 s{S_RB}, s{S_RB}, 2\ns_and_b32 s54, s52, 3\ns_add_u32 s{S_RB}, s{S_RB}, s54")
    p(f"s_and_b32 s{S_CB}, s{S_XCD}, 1\ns_mul_i32 s{S_CB}, s{S_CB}, 7\ns_add_u32 s{S_CB}, s{S_CB}, s53\ns_cmp_ge_u32 s{S_J}, 28\ns_cselect_b32 s{S_CB}, 14, s{S_CB}")
    p(f"s_lshl_b32 s65, s{S_WAVE}, 12\ns_mul_i32 s66, s{S_RB}, {128*1152}\ns_lshl_b32 s67, s{S_CB}, 8\ns_mov_b32 s{QSC}, {f32hex(128 ** -0.5 * LOG2E)}")
    q = Prog()
    q(f"v_lshlrev_b32 v9, 10, v{V_LANE}\ns_lshl_b32 s52, s{S_G}, 2\ns_add_u32 s52, s52, {WS_FLAG}\ns_cmp_eq_u32 s{S_WAVE}, 0")
    q(f"v_mov_b32 v{V_FLAG}, 0")
    q(f"s_cselect_b32 s53, 2, 0\nv_cmp_gt_u32 vcc, s53, v{V_LANE}\nv_mov_b32 v8, {OOB}\ns_nop 0\nv_cndmask_b32 v9, v8, v9, vcc")
    q(f"buffer_store_dword v{V_FLAG}, v9, {sr(SRD_WS,4)}, s52 offen {SC}")
    q(f"v_lshrrev_b32 v8, 4, v{V_LANE}")
    p.ext(q.l); pre.append(q.l[-2])
    stamp(p, 1)

    def build(role):
        K, V, Q, A = segs(role)
        issue = {g: [g + 3] for g in range(22)}
        issue[22] = [25]; issue[23] = [26, 27]
        for a in range(6): issue[25 + a] = [25 + a + 3]
        issue[31] = [ring_groups[0], ring_groups[1]]; issue[32] = [ring_groups[2]]
        lg = {g: True for g in range(24)}
        fill = {}
        vfill = {}
        def add(gk, gs): fill.setdefault(gk, []).extend(gs)
        def vadd(gk, gs): vfill.setdefault(gk, []).extend(gs)
        PFS = ENV("PF", "cvbqawo")
        NL = int(ENV("PFL", "8"))
        if PFS:
            def pieces(setup, nlines, step, fl):
                out = []
                for k in range(-(-nlines // NL)):
                    out.append((groups(setup) if k == 0 else []) + [[f"buffer_load_dword v{V_FLAG}, v9, {sr(SRD_PF,4)}, s64 offen {fl} ; T:pf", f"s_add_u32 s64, s64, {step}"]])
                return out
            def lin(ptr, size, nl, fl):
                q = Prog()
                mk_srd(q, SRD_PF, ptr, size)
                q(f"s_mul_i32 s64, s35, {nl*128}\nv_cmp_gt_u32 vcc, {NL}, v{V_LANE}\nv_lshlrev_b32 v9, 7, v{V_LANE}\ns_nop 0\nv_cndmask_b32 v9, v0, v9, vcc")
                return pieces(q.l, nl, NL * 128, fl)
            def wsl(ptr, rows, fl):
                r = rows // 32
                q = Prog()
                mk_srd(q, SRD_PF, ptr, rows * 8192)
                q(f"s_lshl_b32 s64, s{S_BLK}, 2\ns_add_u32 s64, s64, s{S_WAVE}\ns_mul_i32 s64, s64, {r*8192}\ns_add_u32 s64, s64, s62")
                q(f"v_cmp_gt_u32 vcc, {NL}, v{V_LANE}\nv_lshrrev_b32 v9, 1, v{V_LANE}\nv_lshlrev_b32 v9, 6, v9\nv_and_or_b32 v9, v{V_LANE}, 1, v9\nv_lshlrev_b32 v9, 7, v9\nv_cndmask_b32 v9, v0, v9, vcc")
                return pieces(q.l, 2 * r, NL // 2 * 8192, fl)
            q = Prog(); q(f"s_lshl_b32 s35, s{S_G}, 2\ns_add_u32 s35, s35, s{S_WAVE}\nv_mov_b32 v0, {OOB}")
            early_pf = list(q.l)
            items = {'v': wsl(P_WUV, 512, ""), 'b': lin(P_BX, 2048 * 1152, 18, ""), 'q': wsl(P_WQ, 576, ""),
                     'a': lin(P_AX, 2048 * 1152, 18, ""), 'w': lin(P_AWQKV, 576 * 3456, 16, ""), 'c': lin(P_CKV, 2048 * 1024, 16, ""), 'o': lin(P_AWO, 576 * 1152, 6, "")}
            allp = sum((items[c] for c in PFS), [])
            p0, p1 = float(ENV("PF0", "0")), float(ENV("PF1", "31"))
            if ENV("CPF", "1") == "1":
                q = Prog()
                q(f"s_getpc_b64 s[{SRD_PF}:{SRD_PF+1}]\ns_mov_b32 s{SRD_PF+2}, L_code_end-L_code_pf\ns_mov_b32 s{SRD_PF+3}, 0x20000")
                q(f"s_lshl_b32 s64, s{S_J}, 2\ns_add_u32 s64, s64, s{S_WAVE}\ns_mul_i32 s64, s64, {10*128}\nv_cmp_gt_u32 vcc, 10, v{V_LANE}\nv_lshlrev_b32 v9, 7, v{V_LANE}\ns_nop 0\nv_cndmask_b32 v9, v0, v9, vcc")
                q(f"buffer_load_dword v{V_FLAG}, v9, {sr(SRD_PF,4)}, s64 offen ; T:pf")
                early_pf += ["L_code_pf:"] + q.l
            N0 = int(ENV("PFN0", "10"))
            for it in allp[:N0]: early_pf += sum(it, [])
            allp = allp[N0:]
            for n, it in enumerate(allp): add(int(p0 + n * (p1 - p0) / len(allp)), it)
            late_p = sum((items[c] for c in ENV("PF2", "")), [])
            p2, p3 = float(ENV("PF2A", "34")), float(ENV("PF2B", "44"))
            for n, it in enumerate(late_p): add(int(p2 + n * (p3 - p2) / len(late_p)), it)
        q = Prog()
        mk_srd(q, SRD1, P_BX, 2048 * 1152); mk_srd(q, SRD2, P_WQ, 576 * 8192)
        q("s_mov_b32 s54, 0"); act_dma_addrs(q, [22, 23, 24, 25], 54, 1152)
        q(f"s_lshl_b32 s52, s{S_BLK}, 2\ns_add_u32 s52, s52, s{S_WAVE}\ns_mul_i32 s58, s52, {32*1152}")
        q(f"s_sub_u32 s52, 15, s{S_BLK}\ns_lshl_b32 s52, s52, 2\ns_add_u32 s52, s52, s{S_WAVE}\ns_mul_i32 s60, s52, {32*1152}")
        add(33, groups(q.l))
        q = Prog(); mk_srd(q, SRD_DBG, P_DBG, 256); add(60, groups(q.l))
        SB = int(ENV("SB", "2"))
        def batch(gs): return [sum(gs[i:i+SB], []) for i in range(0, len(gs), SB)]
        for i, g in enumerate(batch(stores(False))): vadd(int(ENV('K0', '33')) + int(i * SB * float(ENV('KS', '1.5'))), [g])
        VS = float(ENV("VS", "1.6"))
        vst = stores(True)
        vst = vst[8:] + vst[:8]
        for i, g in enumerate(batch(vst)): vadd(65 + int(i * SB * VS), [g])
        SIGB = int(ENV('SIGB', '24'))
        q = Prog()
        mk_srd(q, SRD3, P_AX, 2048 * 1152)
        q(f"s_lshl_b32 s54, s{S_WAVE}, 5"); act_dma_addrs(q, A.vDA, 54, 1152)
        q(f"s_lshl_b32 s54, s{S_WAVE}, 4"); w_dma_addrs(q, A.vDW, 54, 3456)
        q(f"s_lshr_b32 s54, s{S_WAVE}, 1\ns_lshl_b32 s54, s54, 13"); act_read_addrs(q, A.vA, 54)
        q(f"s_and_b32 s55, s{S_WAVE}, 1\ns_lshl_b32 s55, s55, 1"); w_read_addrs(q, A.vW, 55)
        aqs = groups(q.l)
        q = Prog()
        q(f"s_lshl_b32 s55, s{S_HEAD}, 2\ns_cmp_eq_u32 s{S_WAVE}, 0\ns_cselect_b32 s55, s55, {OOB}\nv_mov_b32 v0, s55\nv_mov_b32 v{V_FLAG}, 1")
        sig_setup = [q.l[:3], q.l[3:4], q.l[4:5]]
        add(66 + int(8 * VS), aqs + fgroups(aq_addr_qk_valu()))
        add(65, groups(early_setup) + sig_setup)
        early, mid, last = q_epilogue()
        add(100, groups(ring_setup))
        add(101, early[:96])
        add(117, fgroups(aq_addr_qk() if role == 'FT' else aq_addr_v()) + early[96:])
        q = Prog()
        q(f"s_lshl_b32 s64, s{S_HEAD}, 2\nv_mov_b32 v{V_FLAG}, s64")
        add(104, groups(q.l))
        add(118, groups(late_setup)); add(126, mid); add(134, last)
        hooks = {124: ["VMWAIT poll", f"v_readfirstlane_b32 s64, v{V_FLAG}", "s_cmp_lt_u32 s64, 8", f"s_cbranch_scc1 L_kvspin_{role}", f"L_kvok_{role}:"]}
        hooks[{22: 92, 23: 96, 24: 99, 25: 103}[SIGB]] = signal(128, 0, V_FLAG)
        hooks[119] = [f"buffer_load_dword v{V_FLAG}, v{V_FLAG}, {sr(SRD_DBG,4)}, 0 offen offset:128 sc1 ; T:poll"]
        if STAMPS:
            for n, gk in ((2, 32), (3, 64)):
                q = Prog(); stamp(q, n); hooks[gk] = q.l
        lines = pipeline([K, V, Q, A], issue, lg, fillers=fill, hooks=hooks, xwait={SIGB: "vst"}, endbar=ring_groups[3], vfill=vfill, budget=int(ENV('BUD', '22')))
        lines = splice_pack(lines, 256, V.morder())
        lines = splice_pack(lines, 512, Q.morder())
        cvtP = lambda i, x: i.op.startswith("v_cvt") and PP <= i.w[0][1]
        mf = idx(lines, lambda i, x: i.kind == "mfma")
        assert max(idx(lines, lambda i, x: "T:kst" in x)) < mf[510], "K stores late"
        assert max(idx(lines, lambda i, x: i.kind == "valu" and not i.op.startswith("v_cvt") and any(r[0] == 'v' and 236 <= r[1] <= 243 for r in i.w))) < min(idx(lines, lambda i, x: "T:aq0" in x))
        assert max(idx(lines, lambda i, x: i.kind == "valu" and not i.op.startswith("v_cvt") and any(r[0] == 'v' and 244 <= r[1] for r in i.w))) < min(idx(lines, RD(244, 255, ("dsr",))))
        late_ = [k for k in idx(lines, cvtP) if k > mf[800]]
        for k in late_:
            d = I(lines[k]).w[0][1]
            if d >= 236: assert k > max(idx(lines, RD(d, d, ("dsr", "dma")))), f"cvt into v{d} too early"
        assert max(k for k in idx(lines, W(22, 25)) if k < mf[800]) < min(idx(lines, lambda i, x: "T:q0" in x))
        assert min(idx(lines, W(22, 25))) > max(idx(lines, lambda i, x: "T:kk7" in x))
        assert max(idx(lines, lambda i, x: i.op == "v_accvgpr_write_b32")) < mf[800], "address precompute spills into AQ"
        assert max(idx(lines, lambda i, x: "T:poll" in x)) < [k for k, x in enumerate(lines) if x.startswith("VMWAIT poll")][0]
        assert max(idx(lines, lambda i, x: "T:pf" in x) + [0]) < min(idx(lines, lambda i, x: x == f"s_mov_b32 s{SRD_DBG}, s{P_DBG}")), "prefetch after debug SRD"
        vs_ = idx(lines, lambda i, x: "T:vst" in x)
        assert len(vs_) == 16 and vs_[7] < min(k for k in idx(lines, W(224, 255)) if k > mf[520]), "P reused before V stores"
        assert vs_[15] < [k for k, x in enumerate(lines) if x.startswith("VMWAIT") and "vst" in x][0]
        assert vs_[15] < min(k for k in idx(lines, W(192, 223)) if k > mf[520])
        assert max(idx(lines, lambda i, x: x.startswith(f"v_mov_b32 v{V_FLAG}, s64"))) < min(idx(lines, lambda i, x: "T:poll" in x))
        assert min(idx(lines, lambda i, x: x.startswith(f"v_mov_b32 v{V_FLAG}, s64"))) > max(idx(lines, lambda i, x: i.kind == "vat"))
        lab = [k for k, x in enumerate(lines) if x.startswith("L_kvok")][0]
        assert lab < min(idx(lines, lambda i, x: "T:ring" in x))
        assert max(idx(lines, lambda i, x: x in ring_setup[:6])) < min(idx(lines, lambda i, x: "T:ring" in x))
        return finish((early_pf if PFS else []) + lines + post, pre)
    h1, tFT = split_at_mfma(build('FT'), 800)
    h2, tTF = split_at_mfma(build('TF'), 800)
    assert h1 == h2
    p.ext(h1)
    stamp(p, 4)
    p(f"s_cmp_ge_u32 s{S_CB}, 9\ns_cbranch_scc1 L_aq_V")
    p.ext(tFT)
    stamp(p, 5)
    qk_path(p)
    p.label("L_aq_V")
    p.ext(tTF)
    stamp(p, 5)
    v_path(p)

def spin(p, lab, back, load, test, cnt):
    p.label(lab)
    p(f"s_mov_b32 s{cnt}, 0x40000")
    p.label(lab + "_l")
    p("s_sleep 2")
    p.ext(load)
    p("s_waitcnt vmcnt(0)")
    p.ext(test)
    p(f"s_cbranch_scc0 {back}\ns_sub_u32 s{cnt}, s{cnt}, 1\ns_cmp_lg_u32 s{cnt}, 0\ns_cbranch_scc1 {lab}_l\ns_branch {back}")

def front_spins(p):
    for role in ('FT', 'TF'):
        spin(p, f"L_kvspin_{role}", f"L_kvok_{role}",
             [f"s_lshl_b32 s64, s{S_HEAD}, 2", f"v_mov_b32 v{V_FLAG}, s64", f"buffer_load_dword v{V_FLAG}, v{V_FLAG}, {sr(SRD_DBG,4)}, 0 offen offset:128 sc1"],
             [f"v_readfirstlane_b32 s64, v{V_FLAG}", "s_cmp_lt_u32 s64, 8"], 55)
```

```python
import sys, os
import common
common.STAMPS = bool(os.environ.get('STAMPS'))
from attnb import *
HEAD = open("cdna_kernels/" + NAME + ".s.ref").read().split("; Override launch")[0]

def build(kernels, out, single=False):
    s = HEAD
    for (n, lds, p) in kernels:
        s += (f"; @launch grid=(256,1,1) block=(256,1,1) lds={lds}\n" if single else f"; @launch kernel={n} grid=(256,1,1) block=(256,1,1) lds={lds}\n")
    s += '.amdgcn_target "amdgcn-amd-amdhsa--gfx950"\n.text\n'
    for (n, lds, p) in kernels: s += kernel_header(n) + p.text()
    s += '.section .rodata,"a"\n'
    for (n, lds, p) in kernels: s += ".p2align 6\n" + kernel_desc(n)
    open(out, "w").write(s)

def m1(back=None):
    p = Prog()
    entry(p, 256, "L_end")
    stamp_begin(p)
    q = Prog()
    stamp5(q, 1)
    q("VMWAIT ring0\ns_barrier")
    front.front(p, ring_setup(), ring_groups(), q.l, qk_path, v_path, late_setup(), early_setup())
    p.label("L_attn")
    if back: back.run(p)
    else:
        attn_b(p)
        stamp(p, 8)
        p("s_waitcnt vmcnt(0)")
    stamp_end(p, 0)
    p.label("L_end")
    p("s_endpgm")
    attn_b_slow(p)
    front_spins(p)
    if back: back.tail(p)
    p.label("L_code_end")
    return p

if __name__ == "__main__":
    which = sys.argv[1]; out = sys.argv[2] if len(sys.argv) > 2 else "out.s"
    if which == "m1": ks = [("m1_kernel", 163840, m1())]
    else:
        import back
        ks = [(NAME + "_kernel", 163840, m1(back))]
    for n, _, p in ks:
        if not common.STAMPS: check(p.l, n)
    if os.environ.get('ALIGN', '0') == '1':
        import align
        for n, _, p in ks: p.l = align.align(p.l)
    build(ks, out, single=bool(os.environ.get("SINGLE")))
    print("wrote", out)
```

```python
from front import *
import front
RB = 32768
V_LR = 19

V_B = [10, 11]
V_L16 = 14
V_DK, V_DV, V_DKS, V_DVS = 12, 13, 15, 16
V_LA, V_LB = 17, 18
V_NA, V_NB = 20, 21
V_TD, V_T, V_T2, V_NEG = 22, 23, 24, 25
CA, CB = 32, 48
def SBUF(p, x): return 64 + p * 32 + x * 16
def PBUF(p, x): return 128 + p * 16 + x * 8
QA_, QB_ = 192, 224
OA, OB = 0, 64
RING = 128
NR = 16
DIST = int(ENV('DIST', '12'))
S_X = 56
S_Y = [57, 58]
S_SO = 59
S_BIG0, S_BIG7, S_CNT, S_HB = 60, 61, 62, 63
MASKS = [64, 66, 68, 54]
NEGBIG = "0xf149f2ca"

def ring(n): return ar(RING + 4 * (n % NR), 4)

def mask_upd(C, vN, c, sbig=None, vT=V_T):
    out = []
    if sbig is None: out.append([f"v_subrev_u32 v{vT}, {32*c}, v{V_TD}"])
    else: out.append([f"s_sub_u32 s52, s{sbig}, {32*c}", f"v_add_u32 v{vT}, s52, v{V_TD}"])
    cm = []; cn = []
    for r in range(16):
        cr = 8 * (r >> 2) + (r & 3); m = MASKS[r % 4]
        cm.append(f"v_cmp_gt_i32 {sr(m,2)}, {cr}, v{vT}")
        cn.append(f"v_cndmask_b32 v{C+r}, v{vN}, v{V_NEG}, {sr(m,2)}")
    seq = cm[:3]
    for r in range(16):
        if r + 3 < 16: seq.append(cm[r + 3])
        elif r >= 14: pass
        seq.append(cn[r])
    seq = cm[:3]
    for r in range(16):
        if r + 3 < 16: seq.append(cm[r + 3])
        seq.append(cn[r])
    return out + [[x] for x in seq]

TRI = 176
def mask2(C, vN, c, sw=S_WAVE, vT=V_T, sa=64):
    out = [[f"s_cmp_eq_u32 s{sw}, {c}", f"s_cselect_b32 s{sa}, 1.0, 0"], [f"s_cmp_lt_u32 s{sw}, {c}", f"s_cselect_b32 s{sa+1}, {NEGBIG}, 0"],
           [f"v_add_f32 v{vT}, s{sa+1}, v{vN}"]]
    return out + [[f"v_fma_f32 v{C+r}, v{TRI+r}, s{sa}, v{vT}"] for r in range(16)]

def gcost(x):
    k = I(x)
    return DMAC if k.kind in ("dma", "vst", "vld", "vat") else cost(x)
DMAC = int(ENV("DMAC", "12"))
WPER = int(ENV("WPER", "8"))

def frag_list(qk, pv, pvoff=8192, kb=None, vb=None):
    fr = []; use = []
    n = 0
    if qk == 'd':
        for f in range(8):
            fr.append((len(use), kb, f * 1024)); use += [n, n]; n += 1
    elif qk == 's':
        for f in range(8):
            for h in range(2):
                fr.append((len(use), kb, h * 16384 + f * 1024)); use.append(n); n += 1
    if pv == 'd':
        for f in range(8):
            fr.append((len(use), vb, pvoff + f * 1024)); use += [n, n]; n += 1
    elif pv == 's':
        for h in range(2):
            for f in range(8):
                fr.append((len(use), vb, pvoff + h * 16384 + f * 1024)); use.append(n); n += 1
    return fr, use

class Slot:
    def __init__(s, par, qk, sm, pv, kb, vb, pvoff=8192, dma=None, upd=None, vmn=None, first_pv=False, ring0=0, adv=16384, extra=None, at=None):
        s.__dict__.update(locals()); del s.__dict__['s']
        s.fr, s.use = frag_list(qk, pv, pvoff, kb, vb)
        s.dma_scalar_early = any(I(x).kind == 'dma' for g in (dma or []) for x in g)
    def rd(s, k):
        m, b, imm = s.fr[k]
        return f"ds_read_b128 {ring(s.ring0 + k)}, v{b} offset:{imm}"
    def head_reads(s):
        return [s.rd(k) for k in range(len(s.fr)) if s.fr[k][0] < DIST]
    def mfmas(s):
        out = []; i = 0
        p = s.par
        if s.qk:
            for f in range(8):
                for x in range(2):
                    q = (QA_ if x == 0 else QB_) if s.qk == 'd' else QB_
                    d = vr(SBUF(1 - p, x), 16)
                    c = vr(CA if x == 0 else CB, 16) if f == 0 else d
                    out.append(mfma(d, ring(s.ring0 + s.use[i]), vr(q + 4 * f, 4), c)); i += 1
        if s.pv == 'd':
            for f in range(8):
                st, dt = f >> 2, f & 3
                for x in range(2):
                    d = ar((OA if x == 0 else OB) + 16 * dt, 16)
                    c = "0" if (s.first_pv and st == 0) else d
                    out.append(mfma(d, ring(s.ring0 + s.use[i]), vr(PBUF(1 - p, x) + 4 * st, 4), c)); i += 1
        elif s.pv == 's':
            for h in range(2):
                for f in range(8):
                    st, dt = f >> 2, f & 3
                    d = ar(OB + 16 * dt, 16)
                    out.append(mfma(d, ring(s.ring0 + s.use[i]), vr(PBUF(1 - p, h) + 4 * st, 4), d)); i += 1
        return out
    def softmax(s):
        if not s.sm: return []
        p = s.par
        el = [(x, r) for x in range(2) for r in range(16)]
        def S(e): return SBUF(p, el[e][0]) + el[e][1]
        def L(e): return V_LB if (s.sm == 's' or el[e][0] == 1) else V_LA
        g = []
        for e in range(32):
            it = [f"v_exp_f32 v{S(e)}, v{S(e)}"]
            if e >= 1: it.append(f"v_add_f32 v{L(e-1)}, v{L(e-1)}, v{S(e-1)}")
            if e >= 2 and e % 2 == 0:
                k = e - 2
                it.append(f"v_cvt_pk_bf16_f32 v{PBUF(p, el[k][0]) + el[k][1] // 2}, v{S(k)}, v{S(k+1)}")
            g.append(it)
        g[-1] += [f"v_add_f32 v{L(31)}, v{L(31)}, v{S(31)}", f"v_cvt_pk_bf16_f32 v{PBUF(p, 1) + 7}, v{S(30)}, v{S(31)}"]
        return g
    def emit(s, nxt, tail=None):
        mf = s.mfmas(); M = len(mf)
        mem = [[] for _ in range(M)]; val = [[] for _ in range(M)]; end = [[] for _ in range(M)]
        rds = []
        for k, (m, b, imm) in enumerate(s.fr):
            rds.append((m - DIST, m))
            if m >= DIST: mem[m - DIST].append(s.rd(k))
        if nxt is not None:
            bar = M - DIST
            mem[bar] = [f"s_waitcnt vmcnt({s.vmn})", "s_barrier"] + mem[bar]
            for k, (m, b, imm) in enumerate(nxt.fr):
                if m < DIST:
                    mem[bar + m].append(nxt.rd(k)); rds.append((bar + m, M + m))
            mem[bar - 3] += [f"s_add_u32 s{S_X}, s{S_X}, {s.adv}"]
            mem[bar - 1] += [f"s_and_b32 s{S_X}, s{S_X}, 0x1ffff"]
            val[bar - 1].append(f"v_add_u32 v{V_B[1 - s.par]}, s{S_X}, v{V_LR}")
        for m in range(1, M, WPER):
            need = [g for (g, c) in rds if m <= c <= m + WPER - 1]
            if not need: continue
            n = len([g for (g, c) in rds if max(need) < g < m])
            end[m - 1].append(f"s_waitcnt lgkmcnt({n})")
        g = 1; late_d = 0
        for grp in (s.dma or []):
            if not any(I(x).kind == "dma" for x in grp) and s.dma_scalar_early:
                mem[min(g - 1, M - 1)] += grp; continue
            if not any(I(x).kind == "dma" for x in grp):
                mem[g] += grp; g += 2; continue
            isd = any(I(x).kind == "dma" for x in grp)
            if isd and len(grp) > 1:
                mem[g] += grp[:1]; mem[min(g + 1, M - 1)] += grp[1:]
            else: mem[g] += grp
            if not isd:
                continue
            if isd and g >= M - DIST:
                assert M <= 16
                late_d += 1; mem[M - DIST][0] = f"s_waitcnt vmcnt({s.vmn - late_d})"
            g += 2
        for g_, it in (s.at or {}).items(): mem[g_] += it
        if tail: mem[M - 1] += tail
        up = list(s.upd or []) + list(s.extra or [])
        g = 2
        upv = []
        for it in up:
            if all(I(x).kind == "valu" for x in it): upv += it
            else:
                upv.append(("S", it))
        sm = sum(s.softmax(), [])
        stream = []
        ns, nu = len(sm), len(upv); iu = 0
        for k, x in enumerate(sm):
            stream.append(x)
            while iu < nu and k >= 5 and iu < (k - 4) * nu // max(1, ns - 12):
                stream.append(upv[iu]); iu += 1
        stream += upv[iu:]
        cap = [max(0, 24 - sum(gcost(x) for x in mem[k] + val[k] + end[k])) for k in range(M)]
        cst = lambda x: sum(cost(y) for y in x[1]) if isinstance(x, tuple) else cost(x)
        V = sum(cst(x) for x in stream); C = sum(cap)
        if V > C - 8:
            ex = -(-(V - C + 8) // 4); cap = list(cap)
            for j in range(ex): cap[(j * M // ex + 1) % M if ex <= M else j % M] += 4
            C = sum(cap)
        used = 0.0; lim = 0.0
        tight = V > float(ENV("TIGHT", "0.5")) * C
        def indep(x, skipped, prev):
            if isinstance(x, tuple): return not skipped
            i = I(x)
            for y in skipped:
                if isinstance(y, tuple): return False
                j = I(y)
                if (set(j.w) & (set(i.r) | set(i.w))) or (set(j.r) & set(i.w)): return False
            if prev is not None and I(prev).kind == 'valu' and I(prev).trans and set(I(prev).w) & set(i.r) and not i.trans: return False
            return True
        for gi in range(M):
            lim += cap[gi] * (1.0 if tight else V / C)
            room = cap[gi]
            while stream:
                prev = val[gi][-1] if val[gi] else None
                pick = None
                for j in range(min(3, len(stream))):
                    x = stream[j]
                    if (gi == M - 1 or (used + cst(x) / 2 <= lim + 4 * tight and cst(x) <= room + 0.01)) and indep(x, stream[:j], prev):
                        pick = j; break
                if pick is None:
                    if gi == M - 1: val[gi].append("s_nop 0"); continue
                    break
                x = stream.pop(pick)
                if isinstance(x, tuple): mem[gi] += x[1]
                else: val[gi].append(x)
                used += cst(x); room -= cst(x)
        if ENV("SHOWG"): print("slot", s.qk, s.sm, s.pv, [sum(gcost(x) for x in mem[k] + val[k] + end[k]) for k in range(M)])
        return weave(mf, [mem[k] + val[k] + end[k] for k in range(M)])

def dma_dual(tag=""):
    y = S_Y[0]
    L = lambda v, o: f"buffer_load_dwordx4 v{v}, {sr(SRD_WS,4)}, s{S_SO} offen offset:{o} {LC} lds" + tag
    return [[f"s_add_u32 m0, s{y}, {RB}"],
            [L(V_DK, 0)],
            [L(V_DK, 1024), f"s_add_u32 m0, s{y}, {RB + 8192}"],
            [L(V_DV, 0), f"s_add_u32 s{y}, s{y}, 16384"],
            [L(V_DV, 1024), f"s_and_b32 s{y}, s{y}, 0x1ffff"],
            [f"s_add_u32 s{S_SO}, s{S_SO}, 8192"]]
def dma_single(par, k=True, v=True):
    yc, yp = S_Y[par], S_Y[1 - par]
    L = lambda v, o: f"buffer_load_dwordx4 v{v}, {sr(SRD_WS,4)}, s{S_SO} offen offset:{o} {LC} lds"
    out = []
    if v:
        out.append([f"s_add_u32 m0, s{yp}, {RB + 8192}"])
        for j in range(4): out.append([L(V_DVS, j * 1024)])
    if k:
        if v: out[-1].append(f"s_add_u32 m0, s{yc}, {RB}")
        else: out.append([f"s_add_u32 m0, s{yc}, {RB}"])
        for j in range(4): out.append([L(V_DKS, j * 1024)])
    out[-1].append(f"s_add_u32 s{yp}, s{yc}, 32768")
    out.append([f"s_and_b32 s{yp}, s{yp}, 0x1ffff", f"s_add_u32 s{S_SO}, s{S_SO}, 16384"])
    return out

def lg(lines, pend):
    return lines


S_BAD = 70
WT_V = [29, 30, 0, 7, 28]
WT_R, WT_S = 26, 27
WT_A = 192
def ring_setup():
    q = Prog()
    q(f"v_lshlrev_b32 v{V_L16}, 4, v{V_LANE}\ns_lshl_b32 s{S_HB}, s{S_HEAD}, 19\ns_lshl_b32 s{S_Y[0]}, s{S_WAVE}, 11")
    q(f"v_add_u32 v{V_DKS}, s{S_Y[0]}, v{V_L16}\nv_add_u32 v{V_DK}, 16384, v{V_DKS}\nv_add_u32 v{V_DV}, {WS_VB}, v{V_DKS}\ns_mov_b32 s{S_SO}, s{S_HB}")
    q(f"v_lshlrev_b32 v9, 2, v3\nv_add_u32 v9, v9, v4\nv_mul_u32_u24 v9, 320, v9\nv_lshl_add_u32 v9, v5, 5, v9\nv_lshl_add_u32 v9, v6, 3, v9")
    q(f"s_mul_i32 s55, s{S_WAVE}, 5120\nv_add_u32 v{WT_R}, s55, v9\ns_lshr_b32 s55, s{S_WAVE}, 1\ns_and_b32 s55, s55, s{S_WAVE}\ns_lshl_b32 s55, s55, 31\nv_or_b32 v{WT_S}, s55, v{V_L16}")
    return q.l
def wt_addr(q, dst, special, t=160):
    q("s_mov_b32 s55, 3277")
    for n in range(5):
        r = dst[n]
        q(f"v_add_u32 v9, {64*n}, v{V_LANE}\nv_mul_lo_u32 v8, v9, s55\nv_lshrrev_b32 v8, 16, v8\nv_mul_u32_u24 v{r}, 20, v8\nv_sub_u32 v9, v9, v{r}")
        if special:
            q(f"v_bfe_u32 v{t}, v8, 2, 1\nv_lshlrev_b32 v{t}, 2, v{t}\nv_lshrrev_b32 v{t+1}, 3, v8\nv_lshl_add_u32 v{t}, v{t+1}, 1, v{t}\nv_bfe_u32 v{t+1}, v8, 1, 1\nv_add_u32 v{t}, v{t}, v{t+1}")
            q(f"v_mul_u32_u24 v{t}, 18, v{t}\nv_and_b32 v8, 1, v8\nv_add_u32 v8, v8, v{t}")
        q(f"v_mul_u32_u24 v8, 1152, v8\nv_lshl_add_u32 v{r}, v9, 4, v8")
        if n & 3: q(f"v_subrev_u32 v{r}, {1024*(n&3)}, v{r}")
def ring_groups():
    T = " ; T:ring"
    g0 = []
    for h in range(2):
        g0.append([f"s_add_u32 m0, s{S_Y[0]}, {RB + (6+h)*16384}", f"s_add_u32 s64, s{S_HB}, {h*8192}"])
        for o in (0, 1024): g0.append([f"buffer_load_dwordx4 v{V_DKS}, {sr(SRD_WS,4)}, s64 offen offset:{o} {LC} lds ; T:ring0"])
    def two():
        d = dma_dual(T)
        return [d[0] + ["s_nop 0"] + d[1]] + d[2:]
    return [g0, two() + two(), two(), None]

def wt_dma(p, srd, soff, vb=WT_V, fl=NT):
    p(f"s_mul_i32 s52, s{S_WAVE}, 5120\ns_mov_b32 m0, s52\ns_mul_i32 s53, s{S_WAVE}, 320\ns_add_u32 s53, s53, s{soff}")
    for n in range(5):
        if n == 4: p("s_add_u32 m0, s52, 4096\ns_nop 0")
        p(f"buffer_load_dwordx4 v{vb[n]}, {sr(srd,4)}, s53 offen offset:{(n&3)*1024} {fl} lds")
def wt_reads():
    return [f"ds_read_b64_tr_b16 {ar(WT_A + 4*mi + 2*u, 2)}, v{WT_R} offset:{u*2560 + mi*64}" for mi in range(5) for u in range(2)]
def wt_stores(s):
    return [f"buffer_store_dwordx4 {ar(WT_A + 4*mi, 4)}, v{V_L16 if mi < 3 else WT_S}, {sr(SRD_WS,4)}, s{s + (mi >> 2)} offen offset:{(mi&3)*1024} {SC}" for mi in range(5)]

def epi_tile(p, x, t0=160, wv=None):
    O, vl = ((OA, V_LA), (OB, V_LB))[x]
    p(f"v_rcp_f32 v9, v{vl}")
    p(f"s_lshl_b32 s53, s{S_HEAD}, 13\ns_add_u32 s53, s53, {WS_CTXB}")
    if x == 0: p(f"s_lshl_b32 s52, s{S_BLK}, 2")
    else: p(f"s_sub_u32 s52, 15, s{S_BLK}\ns_lshl_b32 s52, s52, 2")
    p(f"s_add_u32 s52, s52, s{S_WAVE}\ns_lshl_b32 s52, s52, 18\ns_add_u32 s52, s52, s53\ns_add_u32 s53, s52, 4096\nv_mov_b32 v8, v9")
    for b in range(8):
        t = t0
        for e in range(8): p(f"v_accvgpr_read_b32 v{t+e}, a{O + b*8 + e}")
        if wv: p.ext(wv[b])
        for e in range(4): p(f"v_pk_mul_f32 {vr(t+2*e,2)}, {vr(t+2*e,2)}, v[8:9]")
        for e in range(4): p(f"v_cvt_pk_bf16_f32 v{t+8+e+4*(b&1)}, v{t+2*e}, v{t+2*e+1}")
        p(f"buffer_store_dwordx4 {vr(t+8+4*(b&1),4)}, v{V_L16}, {sr(SRD_WS,4)}, s{52 + (b>>2)} offen offset:{(b&3)*1024} {SC}")

def lsum(p, vl):
    p(f"v_mov_b32 v8, v{vl}\ns_nop 1\nv_permlane32_swap_b32 v{vl}, v8\ns_nop 1\nv_add_f32 v{vl}, v{vl}, v8\ns_mov_b32 s52, 0x4e800000")

def late_setup():
    p = Prog()
    p(f"v_add_u32 v{V_LR}, {RB}, v{V_L16}\nv_add_u32 v{V_B[1]}, {6*16384}, v{V_LR}\nv_add_u32 v{V_B[0]}, {7*16384}, v{V_LR}")
    p(f"s_lshl_b32 s55, s{S_WAVE}, 5\nv_lshlrev_b32 v9, 2, v3\nv_sub_u32 v9, v2, v9\nv_add_u32 v{V_TD}, s55, v9")
    p(f"v_mov_b32 v{V_NEG}, {NEGBIG}\nv_mov_b32 v{V_NA}, 0\nv_mov_b32 v{V_LA}, 0\nv_mov_b32 v{V_LB}, 0")
    for n in range(5): p(f"v_accvgpr_read_b32 v{WT_V[n]}, a{ST_WT+n}")
    return p.l
ST_WT, ST_TRI = 147, 152
def early_setup():
    p = Prog()
    p(f"v_lshlrev_b32 v8, 2, v3\nv_sub_u32 v8, v2, v8\nv_mov_b32 v31, {NEGBIG}")
    ms = ["vcc", "s[52:53]", "s[54:55]"]
    cm = [f"v_cmp_gt_i32 {ms[r % 3]}, {8 * (r >> 2) + (r & 3)}, v8" for r in range(16)]
    p.ext(cm[:2])
    for r in range(16):
        if r + 2 < 16: p(cm[r + 2])
        else: p("s_nop 0")
        d = (9, 0)[r & 1]
        p(f"v_cndmask_b32 v{d}, 0, v31, {ms[r % 3]}\nv_accvgpr_write_b32 a{ST_TRI+r}, v{d}")
    for n in range(5):
        q = Prog(); wt_addr(q, [0] * 5, False)
        k = [j for j, x in enumerate(q.l) if x.startswith(f"v_add_u32 v9, {64*n}, v{V_LANE}")][0]
        e = [j for j, x in enumerate(q.l) if x.startswith(f"v_add_u32 v9, {64*(n+1)}, v{V_LANE}")]
        if n == 0: p(q.l[0])
        p.ext(q.l[k:(e[0] if e else len(q.l))])
        p(f"v_accvgpr_write_b32 a{ST_WT+n}, v0")
    p(f"v_lshrrev_b32 v8, 4, v{V_LANE}")
    return p.l
def Z0slot(k=8): return Slot(0, 'd', 'd', None, V_B[0], None, dma=dma_dual() + dma_dual(), vmn=8 + k + 8, upd=mask2(CA, V_NA, 2, S_BIG0))
def attn_prologue(p0, pack, stores):
    p0.ext([f"v_accvgpr_read_b32 v{TRI+r}, a{ST_TRI+r}" for r in range(16)])
    p0.ext([f"ds_read_b128 {ring(8 + f)}, v{V_B[1]} offset:{f*1024}" for f in range(8)])
    p0(f"s_lshl_b32 s52, s{S_WAVE}, 12\nv_add_u32 v9, s52, v{V_L16}\nv_add_u32 v{V_DKS}, 32768, v9\nv_add_u32 v{V_DVS}, {WS_VB}, v9")
    npre = max(0, len(pack) - 48)
    p0.ext(pack[:npre])
    p0("s_waitcnt lgkmcnt(0)")
    fl = pack[npre:]
    mfB = [mfma(vr(SBUF(0, 1), 16), ring(8 + f), vr(QB_ + 4 * f, 4), "0" if f == 0 else vr(SBUF(0, 1), 16)) for f in range(8)]
    p0.ext(weave(mfB, [fl[g*6:(g+1)*6] for g in range(8)]))
    stamp5(p0, 5)
    p = Prog()
    p(f"s_cmp_eq_u32 s{S_BLK}, 0\ns_cselect_b32 s{S_BIG0}, s{S_WAVE}, 64\ns_cmp_eq_u32 s{S_BLK}, 7\ns_cselect_b32 s{S_BIG7}, s{S_WAVE}, 64\ns_mov_b32 s{S_X}, {7*16384}")
    p.ext(sum(mask2(CA, V_NA, 0, S_BIG0), []) + ["s_nop 1"])
    def mx(x, vn):
        S = SBUF(0, x)
        o = [f"v_max3_f32 v{vn}, v{S}, v{S+1}, v{S+2}"] + [f"v_max3_f32 v{vn}, v{vn}, v{S+r}, v{S+r+1}" for r in range(3, 15, 2)] + [f"v_max_f32 v{vn}, v{vn}, v{S+15}"]
        o += [f"v_mov_b32 v8, v{vn}", "s_nop 1", f"v_permlane32_swap_b32 v{vn}, v8", "s_nop 1", f"v_max_f32 v{vn}, v{vn}, v8", f"v_sub_f32 v{vn}, 0, v{vn}"]
        o += [f"v_add_f32 v{S+r}, v{S+r}, v{vn}" for r in range(16)]
        return o
    hr = Z0slot().head_reads()
    fl = mx(1, V_NB) + [f"v_mov_b32 v{CB+r}, v{V_NB}" for r in range(16)]
    mfA = [mfma(vr(SBUF(0, 0), 16), ring(8 + f), vr(QA_ + 4 * f, 4), vr(CA, 16) if f == 0 else vr(SBUF(0, 0), 16)) for f in range(8)]
    gaps = [hr[:3], hr[3:]] + [[] for _ in range(6)]
    n = -(-len(fl) // 8)
    for g in range(8): gaps[g] += fl[g*n:(g+1)*n]
    p.ext(weave(mfA, gaps))
    stamp5(p, 7)
    p("s_nop 7")
    p.ext(mx(0, V_NA))
    for g in mask2(CA, V_NA, 1, S_BIG0): p.ext(g)
    p("s_waitcnt lgkmcnt(0)\ns_nop 0")
    L = p.l; k = 0; out = []
    for j, x in enumerate(L):
        out.append(x)
        while k < len(stores) and (k + 0.3) * len(L) / len(stores) <= j and not x.startswith("s_cmp") and not x.startswith("s_cselect"):
            out += stores[k]; k += 1
    assert k == len(stores)
    p0.ext(out)

def wt1_groups():
    q = Prog()
    mk_srd(q, SRD1, P_BWO, 4096 * 1152)
    q(f"s_mul_i32 s54, s{S_G}, {16*1152}")
    wt_dma(q, SRD1, 54)
    L = q.l
    first = [k for k, x in enumerate(L) if I(x).kind == "dma"][0]
    return L[:first], L[first:]
def first_slots(p, k):
    stamp(p, 6); stamp4(p, 1); stamp5(p, 8)
    Z0 = Z0slot(k)
    w0, w1 = wt1_groups()
    at1 = {19: w0[:5], 21: w0[5:]}
    g = 23
    for x in w1:
        if I(x).kind == "dma": at1[g] = at1.get(g, []) + [x]; g += 2
        elif "m0" in x: at1[g - 1] = [x]
    if AQS == "":
        at1[21] = [f"s_cmp_lg_u32 s{S_WAVE}, 0", "s_cbranch_scc1 L_nowb" + str(k) + "", "buffer_wbl2 sc1", "L_nowb" + str(k) + ":"] + at1[21]
    Z1 = Slot(1, 'd', 'd', 'd', V_B[1], V_B[1], dma=dma_dual() + dma_dual(), vmn=(16 if AQS == "" else 4 + k + 8 + 8), upd=mask2(CA, V_NA, 3, S_BIG0), first_pv=True, ring0=8, at=at1)
    E = Slot(0, 'd', 'd', 'd', V_B[0], V_B[0], ring0=8)
    p.ext(Z0.emit(Z1))
    p.ext(Z1.emit(E, tail=[f"s_lshl_b32 s{S_CNT}, s{S_BLK}, 1", f"s_cmp_eq_u32 s{S_BLK}, 0"]))

def qk_path(p):
    q = Prog(); st, mixed = aq_epi_qk(q)
    attn_prologue(p, q.l, [mixed] + st)
    first_slots(p, len(st))
    p("s_branch L_attn")
def v_path(p):
    p(f"s_cmp_eq_u32 s{S_CB}, 14\ns_cbranch_scc1 L_wt2_n\ns_cmp_lg_u32 s{S_CB}, 13\ns_cbranch_scc1 L_wt2_skip\ns_cmp_lg_u32 s{S_J}, 6\ns_cbranch_scc1 L_wt2_skip")
    p(f"s_lshr_b32 s35, s{S_XCD}, 1\ns_mul_i32 s54, s35, {8*18*1152}\ns_add_u32 s54, s54, {16*1152}\ns_add_u32 s35, s35, 32")
    wt_addr(p, list(range(162, 167)), True)
    p("s_branch L_wt2_go")
    p.label("L_wt2_n")
    p(f"s_lshl_b32 s35, s{S_XCD}, 2\ns_add_u32 s35, s35, s{S_J}\ns_sub_u32 s35, s35, 28\ns_mul_i32 s54, s35, {18*1152}")
    wt_addr(p, list(range(162, 167)), False)
    p.label("L_wt2_go")
    mk_srd(p, SRD1, P_AWO, 576 * 1152)
    wt_dma(p, SRD1, 54, list(range(162, 167)), fl="")
    p(f"s_mul_i32 s54, s35, 18432\ns_mul_i32 s55, s{S_WAVE}, 5120\ns_add_u32 s54, s54, s55\ns_add_u32 s54, s54, {WS_WOA}\ns_add_u32 s55, s54, 4096")
    p("s_waitcnt vmcnt(0)")
    p.ext(wt_reads())
    p("s_waitcnt lgkmcnt(0)")
    p.ext(wt_stores(54))
    p.label("L_wt2_skip")
    q = Prog(); st = aq_epi_v(q)
    attn_prologue(p, q.l, st)
    first_slots(p, len(st))

def attn_b(p, mid_epi=None):
    D = lambda par, **kw: Slot(par, 'd', 'd', 'd', V_B[par], V_B[par], dma=dma_dual(), vmn=20, **kw)
    def R8(s): s.ring0 = 8; return s
    E, O_ = R8(D(0)), R8(D(1))
    stamp4(p, 2); stamp5(p, 9)
    p("s_cbranch_scc1 L_b_DL")
    p(f"s_cmp_eq_u32 s{S_BLK}, 1\ns_cbranch_scc1 L_b_DS0")
    p.label("L_b_dloop")
    body = E.emit(O_) + O_.emit(E, tail=[f"s_sub_u32 s{S_CNT}, s{S_CNT}, 1", f"s_cmp_gt_u32 s{S_CNT}, 2"])
    check(body + body, "dloop")
    p.ext(body)
    p("s_cbranch_scc1 L_b_dloop")
    p.label("L_b_DS0"); stamp4(p, 3)
    for c in range(4):
        s = R8(D(c & 1, upd=mask2(CA, V_NA, c)))
        p.ext(s.emit(O_ if c % 2 == 0 else E))
    p.label("L_b_DL"); stamp4(p, 4)
    DL = R8(Slot(0, 'd', 'd', 'd', V_B[0], V_B[0], dma=dma_dual(), vmn=16,
                 upd=mask2(CA, V_NB, 0, S_BIG7) + mask2(CB, V_NB, 1, S_BIG7, V_T2, 66)))
    fix = [[f"s_sub_u32 s{S_SO}, s{S_SO}, 16384"],
           [f"s_lshr_b32 s70, s{S_WAVE}, 1", "s_lshl_b32 s70, s70, 14"], [f"s_and_b32 s71, s{S_WAVE}, 1", "s_lshl_b32 s71, s71, 12"],
           ["s_add_u32 s70, s70, s71", f"s_lshl_b32 s71, s{S_WAVE}, 11"], ["s_sub_u32 s70, s70, s71", f"s_add_u32 s{S_Y[0]}, s{S_Y[0]}, s70"],
           [f"s_cmp_eq_u32 s{S_WAVE}, 0", f"s_cselect_b32 s70, 0, {OOB}"], ["v_mov_b32 v8, s70", "v_mov_b32 v9, 1"],
           [f"s_mul_i32 s70, s{S_G}, 18432", f"s_mul_i32 s71, s{S_WAVE}, 5120"], ["s_add_u32 s70, s70, s71", f"s_add_u32 s70, s70, {WS_WOB}"], ["s_add_u32 s71, s70, 4096"]]
    T1 = R8(Slot(1, 's', 'd', 'd', V_B[1], V_B[1], dma=fix, vmn=8, adv=32768, at={27: signal(0)},
                 upd=mask2(CA, V_NB, 2, S_BIG7) + mask2(CB, V_NB, 3, S_BIG7, V_T2, 66)))
    wr, ws_ = wt_reads(), wt_stores(70)
    at = {}
    for k in range(5): at[8 + k] = wr[2*k:2*k+2]
    at[8] = ["s_waitcnt vmcnt(9)"] + at[8]
    for k in range(5): at[23 + 2*k] = at.get(23 + 2*k, []) + [ws_[k]]
    T2 = Slot(0, 's', 's', 'd', V_B[0], V_B[1], pvoff=16384 + 8192, dma=dma_single(0, v=False), vmn=4, adv=32768, ring0=0, at=at)
    Sg = lambda par, **kw: R8(Slot(par, kw.pop('qk', 's'), 's', 's', V_B[par], V_B[1 - par], adv=32768, **kw))
    SO, SE = Sg(1, dma=dma_single(1), vmn=8), Sg(0, dma=dma_single(0), vmn=8)
    p.ext(DL.emit(T1)); p.ext(T1.emit(T2)); p.ext(T2.emit(SO))
    stamp4(p, 5)
    lsum(p, V_LA)
    p(f"v_cmp_nge_f32 s[{S_BAD}:{S_BAD+1}], s52, v{V_LA}")
    epi_tile(p, 0)
    stamp4(p, 6)
    p(f"s_cmp_eq_u32 s{S_BLK}, 7\ns_cbranch_scc1 L_b_S0e")
    SO1 = Sg(1, dma=dma_single(1), vmn=8 + 8 + 5)
    p.ext(SO1.emit(SE, tail=[f"s_sub_u32 s{S_CNT}, 6, s{S_BLK}", f"s_lshl_b32 s{S_CNT}, s{S_CNT}, 1"]))
    stamp4(p, 7)
    p("s_cbranch_scc0 L_b_S3")
    p.label("L_b_sloop")
    body = SE.emit(SO) + SO.emit(SE, tail=[f"s_sub_u32 s{S_CNT}, s{S_CNT}, 1", f"s_cmp_lg_u32 s{S_CNT}, 0"])
    check(body + body, "sloop")
    p.ext(body)
    p("s_cbranch_scc1 L_b_sloop")
    p.label("L_b_S3"); stamp4(p, 8)
    S3 = Sg(0, dma=dma_single(0), vmn=8, upd=mask2(CA, V_NB, 0) + mask2(CB, V_NB, 1, S_WAVE, V_T2, 66))
    S2 = Sg(1, dma=dma_single(1, k=False), vmn=4, upd=mask2(CA, V_NB, 2) + mask2(CB, V_NB, 3, S_WAVE, V_T2, 66))
    cp = code_pf("L_cpf2", "L_b_F", "L_code_end", 5, SRD2, 31, 52, 31) if ENV("CPF2", "0") == "1" else []
    S1 = Sg(0, dma=dma_single(0, k=False), vmn=4, at={22 + k: g for k, g in enumerate(cp)})
    s2at = {10: ["v_mov_b32 v28, 0"], 12: [f"buffer_load_dword v28, v28, {sr(SRD_DBG,4)}, 0 offen sc1"]}
    S0 = Sg(1, qk=None, vmn=0, at=s2at)
    F = Slot(0, None, None, 's', None, V_B[1], ring0=8)
    p.ext(S3.emit(S2)); p.ext(S2.emit(S1)); p.ext(S1.emit(S0)); p.ext(S0.emit(F))
    p("s_branch L_b_F")
    p.label("L_b_S0e")
    p("s_waitcnt lgkmcnt(0)")
    p.ext(S0.head_reads())
    p("s_waitcnt lgkmcnt(0)")
    p.ext(Sg(1, qk=None, vmn=63, at=s2at).emit(F))
    p.label("L_b_F")
    p.ext(F.emit(None))
    stamp(p, 7); stamp4(p, 9)
    lsum(p, V_LB)
    p(f"v_cmp_nge_f32 vcc, s52, v{V_LB}\ns_nop 1\ns_or_b64 vcc, vcc, s[{S_BAD}:{S_BAD+1}]\ns_cbranch_vccnz L_b_slow")
    p.label("L_b_epi")
    epi_tile(p, 1, wv=mid_epi(p) if mid_epi else None)

def attn_b_slow(p):
    p.label("L_b_slow")
    p("s_nop 15")
    for x, (Q, O, vl) in enumerate(((QA_, OA, V_LA), (QB_, OB, V_LB))):
        if x == 0: p(f"s_mov_b32 s70, s{S_BLK}")
        else: p(f"s_sub_u32 s70, 15, s{S_BLK}")
        p(f"s_lshl_b32 s70, s70, 2\ns_add_u32 s71, s70, s{S_WAVE}\ns_add_u32 s71, s71, 1\ns_lshl_b32 s70, s70, 5")
        S = SBUF(0, 0); Pp = PBUF(0, 0)
        for ps in range(2):
            if ps == 0: p(f"v_mov_b32 v{V_NA}, 0\nv_mov_b32 v{V_NB}, {NEGBIG}")
            else:
                p(f"v_mov_b32 v8, v{V_NB}\ns_nop 1\nv_permlane32_swap_b32 v{V_NB}, v8\ns_nop 1\nv_max_f32 v{V_NB}, v{V_NB}, v8\nv_sub_f32 v{V_NA}, 0, v{V_NB}\nv_mov_b32 v{vl}, 0")
                for r in range(64): p(f"v_accvgpr_write_b32 a{O+r}, 0")
            p(f"s_mov_b32 s61, s{S_HB}\ns_mov_b32 s60, s70\ns_mov_b32 s{S_CNT}, s71")
            p.label(f"L_b_sl{x}{ps}")
            for f in range(8):
                p(f"s_add_u32 s53, s61, {f*1024}\nbuffer_load_dwordx4 {ring(f)}, v{V_L16}, {sr(SRD_WS,4)}, s53 offen {LC}")
            if ps:
                for f in range(8):
                    p(f"s_add_u32 s53, s61, {WS_VB + f*1024}\nbuffer_load_dwordx4 {ring(8+f)}, v{V_L16}, {sr(SRD_WS,4)}, s53 offen {LC}")
            for g in mask_upd(CA, V_NA, 0, 60): p.ext(g)
            p("s_waitcnt vmcnt(0)\ns_nop 0")
            for f in range(8): p(mfma(vr(S, 16), ring(f), vr(Q + 4 * f, 4), vr(CA, 16) if f == 0 else vr(S, 16)))
            p("s_nop 15")
            if ps == 0:
                for r in range(16): p(f"v_max_f32 v{V_NB}, v{V_NB}, v{S+r}")
            else:
                for r in range(16): p(f"v_exp_f32 v{S+r}, v{S+r}")
                p("s_nop 0")
                for r in range(16): p(f"v_add_f32 v{vl}, v{vl}, v{S+r}")
                for k in range(8): p(f"v_cvt_pk_bf16_f32 v{Pp+k}, v{S+2*k}, v{S+2*k+1}")
                p("s_nop 1")
                for f in range(8): p(mfma(ar(O + 16 * (f & 3), 16), ring(8 + f), vr(Pp + 4 * (f >> 2), 4), ar(O + 16 * (f & 3), 16)))
                p("s_nop 15")
            p(f"s_add_u32 s61, s61, 8192\ns_sub_u32 s60, s60, 32\ns_sub_u32 s{S_CNT}, s{S_CNT}, 1\ns_cmp_lg_u32 s{S_CNT}, 0\ns_cbranch_scc1 L_b_sl{x}{ps}")
        p(f"v_mov_b32 v8, v{vl}\ns_nop 1\nv_permlane32_swap_b32 v{vl}, v8\ns_nop 1\nv_add_f32 v{vl}, v{vl}, v8")
    epi_tile(p, 0)
    p("s_branch L_b_epi")
```

```python
from attnb import *

A_KM, A_K2, A_V, A_DM = 10, 11, 12, 13
A_N = [16, 17]
A_TK4, A_VL = 20, 21
A_FL = 240
def A_Q(x, ks): return 96 + x * 8 + ks * 4
def A_C(x): return 32 + 16 * x
def A_O(x): return 64 + 16 * x
def A_S(p, x): return 112 + p * 32 + x * 16
def A_P(p, x): return 176 + p * 16 + x * 8
def A_K(p, ks): return 208 + p * 8 + ks * 4
def A_VF(p, s): return 224 + p * 8 + s * 4
S_AG, S_AC, S_AW, S_TT = 56, 57, 58, 59
S_AD = 35
S_OT, S_OM, S_O0, S_O1, S_OW, S_IT = 61, 62, 63, 64, 65, 66
DEPTH = 8
FB0 = 96

def chunk_dma(tag):
    out = [[f"s_add_u32 m0, s{S_AD}, s{S_AW}"]]
    for j in range(5):
        g = [f"buffer_load_dwordx4 v{A_DM}, {sr(SRD_WS,4)}, s{S_AG} offen offset:{(j&3)*1024} {LC} lds ; T:{tag}"]
        if j == 3: g += ["s_add_u32 m0, m0, 4096", f"s_add_u32 s{S_AG}, s{S_AG}, 4096"]
        out.append(g)
    out.append([f"s_add_u32 s{S_AG}, s{S_AG}, {AH_CS - 4096}", f"s_add_u32 s{S_AD}, s{S_AD}, {AH_CS}"])
    out.append([f"s_cmp_eq_u32 s{S_AD}, {3*AH_CS}", f"s_cselect_b32 s{S_AD}, 0, s{S_AD}"])
    return out

class Out:
    def __init__(s, nm): s.nm = nm; s.nl = 2 + nm
    def F(s, slot, i): return ar(FB0 + (slot * s.nl + i) * 4, 4)
    def acc(s, xi, mi): return ar((mi * 2 + xi) * 16, 16)
    def mf(s, slot, first):
        return [mfma(s.acc(xi, mi), s.F(slot, 2 + mi), s.F(slot, xi), "0" if first else s.acc(xi, mi)) for mi in range(s.nm) for xi in range(2)]
    def ldc(s, slot, tag, imm):
        return [[f"buffer_load_dwordx4 {s.F(slot,x)}, v{V_L16}, {sr(SRD_WS,4)}, s{(S_O0, S_O1)[x]} offen offset:{imm} {LC} ; T:{tag}"] for x in range(2)]
    def ldw(s, slot, tag):
        o = [[f"buffer_load_dwordx4 {s.F(slot,2+mi)}, v{V_L16}, {sr(SRD_WS,4)}, s{S_OW} offen offset:{mi*1024} {LC} ; T:{tag}"] for mi in range(s.nm)]
        o[-1].append(f"s_add_u32 s{S_OW}, s{S_OW}, 18432")
        return o
    def loads(s, k, tag):
        slot = k % DEPTH
        o = s.ldc(slot, tag, (k % 4) * 1024)
        if k % 4 == 3:
            o[0].append(f"s_add_u32 s{S_O0}, s{S_O0}, 4096"); o[1].append(f"s_add_u32 s{S_O1}, s{S_O1}, 4096")
        return o + s.ldw(slot, tag)

def a_rd(par, rel, k=True, v=True):
    out = []
    if k:
        r = (rel + 2) % 8
        out += [f"ds_read_b128 {vr(A_K(par,0),4)}, v{A_KM} offset:{r*1024}", f"ds_read_b32 v{A_K(par,1)}, v{A_K2} offset:{r*128}"]
    if v: out += [f"ds_read_b128 {vr(A_VF(par,s),4)}, v{A_V} offset:{rel*1280 + s*640}" for s in range(2)]
    return out

NEXTV = [0]
X8 = ENV('X8', '0') == '1'
def a_slot(rel, qk=True, sm=True, pv=True, first_pv=False, rdk=True, rdv=True, pre=None, bmf=None, vm=None, post=None, carry=None):
    par = rel & 1
    mf = []
    if qk:
        for ks in range(2):
            for x in range(2):
                d = vr(A_S(1 - par, x), 16)
                if ks == 1 and X8: mf.append(f"v_mfma_f32_32x32x8_bf16 {d}, {vr(A_K(1 - par, 1), 2)}, {vr(A_Q(x, 1), 2)}, {d}")
                else: mf.append(mfma(d, vr(A_K(1 - par, ks), 4), vr(A_Q(x, ks), 4), vr(A_C(x), 16) if ks == 0 else d))
    if pv:
        for s in range(2):
            for x in range(2):
                d = vr(A_O(x), 16)
                mf.append(mfma(d, vr(A_VF(1 - par, s), 4), vr(A_P(1 - par, x) + 4 * s, 4), "0" if (first_pv and s == 0) else d))
    waits = {}; after = {}
    if bmf:
        seq = []
        for (w, ms, ld) in bmf:
            for j, m in enumerate(ms): seq.append((m, w if j == 0 else None, ld if j == len(ms) - 1 else None))
        m2 = []; na = len(mf); nb = len(seq); ib = 0
        for k, m in enumerate(mf):
            m2.append(m)
            while ib < nb and ib < (k + 1) * nb // na:
                if seq[ib][1]: waits[len(m2)] = seq[ib][1]
                if seq[ib][2] is not None: after[len(m2)] = seq[ib][2]
                m2.append(seq[ib][0]); ib += 1
        mf = m2
    va = []
    if sm:
        el = [A_S(par, x) + r for x in range(2) for r in range(16)]
        for e in range(32):
            va.append(f"v_exp_f32 v{el[e]}, v{el[e]}")
            if e >= 3 and e % 2 == 1:
                k = e - 3
                va.append(f"v_cvt_pk_bf16_f32 v{A_P(par, k // 16) + (k % 16) // 2}, v{el[k]}, v{el[k+1]}")
    M = len(mf)
    mem = [[] for _ in range(M)]; val = [[] for _ in range(M)]; end = [[] for _ in range(M)]
    if pre: mem[0] += pre
    rd = a_rd(par, rel, rdk, rdv)
    for j, r in enumerate(rd): mem[min(j // 2, M - 1)].append(r)
    q = [(1 if pre else 0, grp) for grp in (vm or [])]
    for pos in sorted(after): q += [(pos, grp) for grp in after[pos]]
    g = NEXTV[0]; spill = []
    step = 2 if M > 8 else 1
    for (lo, grp) in q:
        g = max(g, lo)
        if g >= M or spill: spill.append(grp); continue
        mem[g] += grp
        if any(I(x).kind in ("dma", "vld", "vst", "vat") for x in grp): g += step
        elif "m0" in grp[-1].split(",")[0]: g += 1
    NEXTV[0] = max(0, g - M)
    if carry is not None: carry[:] = spill
    else: assert not spill
    tot = sum(cost(x) for x in va); acc_ = 0
    for x in va:
        val[min(M - 1, acc_ * M // tot)].append(x); acc_ += cost(x)
    for pos, w in waits.items(): end[pos - 1].append(w)
    if post: val[M - 1] += post
    if rd: end[M - 1].append("s_waitcnt lgkmcnt(0)")
    if sm:
        if not end[M - 1] and not post: end[M - 1].append("s_nop 0")
        end[M - 1].append(f"v_cvt_pk_bf16_f32 v{A_P(par, 1) + 7}, v{el[30]}, v{el[31]}")
    return weave(mf, [mem[k] + val[k] + end[k] for k in range(M)])

KBUMP = [f"s_add_u32 s{S_AC}, s{S_AC}, {AH_CS}", f"s_cmp_eq_u32 s{S_AC}, {3*AH_CS}", f"s_cselect_b32 s{S_AC}, 0, s{S_AC}"]
A_CN, A_FX, A_FT = 248, 252, 253
FIX = f"ds_write_b128 v{A_FT}, {vr(A_CN,4)}"
KADDR = [f"v_add_u32 v{A_KM}, s{S_AC}, v{V_L16}", f"v_add_u32 v{A_K2}, s{S_AC}, v{A_TK4}", f"v_add_u32 v{A_FT}, s{S_AC}, v{A_FX}"]
VADDR = [f"v_add_u32 v{A_V}, s{S_AC}, v{A_VL}"]

def iteration(it, o, ks, carry, last=False, first=False, extra=None, kmax=64, rels=range(8)):
    lines = []
    for rel in rels:
        kw = {}
        vm = list(carry)
        bm = []
        for k in ks[rel]:
            bm.append((f"VMWAIT b{k}", o.mf(k % DEPTH, k == 0), o.loads(k + DEPTH, f"b{k+DEPTH}") if k + DEPTH < kmax else []))
        if first and rel == 0: kw.update(pv=False)
        if first and rel == 1: kw.update(first_pv=True)
        if rel == 5 and not last: kw.update(post=KADDR); vm = [KBUMP[:1], KBUMP[1:]] + vm
        if rel == 6 and not last: kw.update(pre=[f"VMWAIT c{it+1}", FIX, "s_waitcnt lgkmcnt(0)", "s_barrier"])
        if rel == 7 and not last: kw.update(post=VADDR)
        if rel == 6 and not last and (it + 2 <= 7): vm = vm + chunk_dma(f"c{it+2}")[:3]
        if rel == 7 and not last and (it + 2 <= 7): vm = vm + chunk_dma(f"c{it+2}")[3:]
        if last and rel >= 6: kw.update(rdk=False)
        if last and rel == 7: kw.update(qk=False)
        if extra and rel in extra:
            e = extra[rel]
            if 'pre' in e: kw['pre'] = kw.get('pre', []) + e['pre']
            vm = vm + e.get('vm', [])
        lines += a_slot(rel, vm=vm, bmf=bm, carry=carry, **kw)
    return lines

def flag_test(p):
    p(f"v_and_b32 v{A_FL}, v{A_FL}, v{A_FL+1}\nv_and_b32 v{A_FL+2}, v{A_FL+2}, v{A_FL+3}\nv_and_b32 v{A_FL}, v{A_FL}, v{A_FL+2}")
    p(f"v_cmp_ne_u32 vcc, 1, v{A_FL}\ns_cmp_lg_u64 vcc, 0")
def flag_load(which): return f"buffer_load_dwordx4 {vr(A_FL,4)}, v{V_L16}, {sr(SRD_WS,4)}, s67 offen offset:{which*1024} sc1"
def flag_set(which):
    return ["s_mov_b64 exec, 1", f"buffer_store_dword v9, v8, {sr(SRD_WS,4)}, s67 offen offset:{which*1024} sc1", "s_mov_b64 exec, -1"]

def mid_epi(p):
    p(f"s_waitcnt vmcnt(0)\nv_readfirstlane_b32 s52, v28\ns_cmp_lt_u32 s52, 256\ns_cbranch_scc1 L_s2spin")
    p.label("L_s2ok")
    p(f"s_mul_i32 s{S_AG}, s{S_HEAD}, {AH_STRIDE}\ns_add_u32 s{S_AG}, s{S_AG}, {WS_AH}\ns_mul_i32 s{S_AW}, s{S_WAVE}, 5120\ns_mov_b32 s{S_AD}, 0")
    p(f"v_add_u32 v{A_DM}, s{S_AW}, v{V_L16}")
    p(f"s_lshl_b32 s{S_TT}, s{S_BLK}, 3\ns_lshl_b32 s52, s{S_WAVE}, 1\ns_add_u32 s{S_TT}, s{S_TT}, s52")
    p(f"s_mul_i32 s53, s{S_HEAD}, {QA_STRIDE}\ns_mul_i32 s54, s{S_BLK}, {QA_CS}\ns_add_u32 s53, s53, s54\ns_add_u32 s53, s53, {WS_QA}")
    p(f"s_lshl_b32 s54, s52, 7\ns_add_u32 s54, s54, s53\ns_add_u32 s54, s54, {AH_K2}\ns_lshl_b32 s52, s52, 10\ns_add_u32 s53, s53, s52")
    p("v_lshlrev_b32 v4, 2, v2\nv_lshlrev_b32 v5, 31, v3\nv_or_b32 v5, v5, v4")
    p(f"s_mov_b32 s35, 0\ns_mov_b32 s60, s53\ns_mov_b32 s61, s54")
    d0 = chunk_dma("c0"); d1 = chunk_dma("c1")
    ql = []
    for x in range(2):
        ql.append(f"buffer_load_dwordx4 {vr(A_Q(x,0),4)}, v{V_L16}, {sr(SRD_WS,4)}, s60 offen offset:{x*1024} {LC}")
        ql.append(f"buffer_load_dword v{A_Q(x,1)}, v5, {sr(SRD_WS,4)}, s61 offen offset:{x*128} {LC}")
    n0 = ["s_nop 0"]
    wv = [d0[0] + n0 + d0[1] + d0[2], d0[3] + d0[4], d0[5] + d0[6] + d0[7] + ql[:2], ql[2:] + ["s_barrier"],
          d1[0] + n0 + d1[1] + d1[2], d1[3] + d1[4], d1[5] + d1[6] + d1[7], []]
    return wv

def reduce_out(p, o, coloff, before_bar=None, between=None, weave_in=()):
    nt = 2 * o.nm
    RL = 61440; T = 200
    p(f"s_lshl_b32 s52, s{S_WAVE}, 12\ns_add_u32 s52, s52, {RL}\nv_add_u32 v6, s52, v{V_L16}\nv_add_u32 v7, 65536, v6")
    wv = list(weave_in)
    for t in range(nt):
        for j in range(4):
            p(f"ds_write_b128 v{6 if t < 4 else 7}, {ar(t*16 + 4*j, 4)} offset:{(t%4)*16384 + j*1024}")
            if wv: p.ext(wv.pop(0))
    for g in wv: p.ext(g)
    p(f"s_and_b32 s52, s{S_WAVE}, 1\ns_lshr_b32 s53, s{S_WAVE}, 1\ns_lshl_b32 s54, s52, 14\ns_lshl_b32 s55, s53, 11\ns_add_u32 s54, s54, s55\ns_add_u32 s54, s54, {RL}")
    p(f"v_add_u32 v6, s54, v{V_L16}\nv_add_u32 v7, 65536, v6")
    p(f"s_add_u32 s52, s52, s{S_OT}\ns_mul_i32 s52, s52, {32*2304}\ns_lshl_b32 s53, s53, 5\ns_add_u32 s52, s52, s53\ns_lshl_b32 s53, s{S_OM}, 6\ns_add_u32 s54, s52, s53")
    p("v_mul_u32_u24 v4, 2304, v2\nv_lshl_add_u32 v4, v3, 4, v4")
    if before_bar: before_bar(p)
    p("s_waitcnt lgkmcnt(0)\ns_barrier")
    if between: between(p)
    def rd(mi):
        for w in range(4):
            for j in range(2): p(f"ds_read_b128 {vr(T + (w*8 + 4*j if mi % 2 == 0 else -88 + w*8 + 4*j), 4)}, v{6 if mi < 2 else 7} offset:{(mi%2)*32768 + w*4096 + j*1024}")
    rd(0)
    for mi in range(o.nm):
        if mi + 1 < o.nm: rd(mi + 1)
        A = T if mi % 2 == 0 else T - 88
        p(f"s_waitcnt lgkmcnt({8 if mi + 1 < o.nm else 0})")
        for r in range(0, 8, 2): p(f"v_pk_add_f32 {vr(A+r,2)}, {vr(A+r,2)}, {vr(A+8+r,2)}\nv_pk_add_f32 {vr(A+16+r,2)}, {vr(A+16+r,2)}, {vr(A+24+r,2)}")
        for r in range(0, 8, 2): p(f"v_pk_add_f32 {vr(A+r,2)}, {vr(A+r,2)}, {vr(A+16+r,2)}")
        D = 232 + 4 * (mi % 2)
        for k in range(4): p(f"v_cvt_pk_bf16_f32 v{D+k}, v{A+2*k}, v{A+2*k+1}")
        p(f"s_nop 1\nv_permlane32_swap_b32 v{D}, v{D+2}\nv_permlane32_swap_b32 v{D+1}, v{D+3}")
        p(f"buffer_store_dwordx4 {vr(D,4)}, v4, {sr(SRD1,4)}, s54 offen offset:{coloff*2 + mi*64} {ENV('OB', '')}")

def a_epilogue(p):
    p(f"v_rcp_f32 v{A_N[0]}, v{A_N[0]}\nv_rcp_f32 v{A_N[1]}, v{A_N[1]}")
    p(f"s_mul_i32 s52, s{S_TT}, {36*1024}\ns_add_u32 s52, s52, {WS_CTXA}\ns_lshl_b32 s53, s{S_HEAD}, 10\ns_add_u32 s54, s52, s53")
    p(f"s_lshr_b32 s53, s{S_HEAD}, 3\ns_add_u32 s53, s53, 32\ns_lshl_b32 s53, s53, 10\ns_add_u32 s55, s52, s53")
    p(f"s_bfe_u32 s53, s{S_HEAD}, {2 | (1 << 16)}\ns_lshl_b32 s53, s53, 9\ns_add_u32 s55, s55, s53\ns_and_b32 s53, s{S_HEAD}, 3\ns_lshl_b32 s53, s53, 2\ns_add_u32 s55, s55, s53")
    p("v_lshlrev_b32 v4, 4, v2\nv_lshlrev_b32 v5, 31, v3\nv_or_b32 v5, v5, v4")
    for x in range(2):
        O = A_O(x)
        for r in range(10): p(f"v_mul_f32 v{O+r}, v{O+r}, v{A_N[x]}")
        for k in range(5): p(f"v_cvt_pk_bf16_f32 v{O+k}, v{O+2*k}, v{O+2*k+1}")
        p(f"buffer_store_dwordx4 {vr(O,4)}, v{V_L16}, {sr(SRD_WS,4)}, s54 offen {SC} ; T:ca")
        p(f"buffer_store_dword v{O+4}, v5, {sr(SRD_WS,4)}, s55 offen {SC} ; T:ca")
        if x == 0: p(f"s_add_u32 s54, s54, {36*1024}\ns_add_u32 s55, s55, {36*1024}")
def a_lget(p):
    for x in range(2): p(f"v_mov_b32 v{A_N[x]}, v{A_O(x)+10}\nv_mov_b32 v{8+x}, v{A_O(x)+10}")
    p(f"s_nop 1\nv_permlane32_swap_b32 v{A_N[0]}, v8\nv_permlane32_swap_b32 v{A_N[1]}, v9\ns_nop 1")

def tail_variant(p, o, na, lab, base, S0, final):
    nm = o.nm
    q = Prog()
    regs = [vr(32 + 4 * j, 4) for j in range(20)] + [ar(FB0 + 4 * j, 4) for j in range(40)]
    def free_at(j):
        if j < 20: return 0
        bj = (j - 20) // o.nl
        return 0 if bj >= DEPTH else max(k for k in range(56, 64) if k % DEPTH == bj) + 1
    order = sorted(range(60), key=free_at)[:18 * na]
    WA = lambda k, mi: regs[order[k * na + mi]]
    wl = []
    for k in range(18):
        for mi in range(na):
            g = [f"buffer_load_dwordx4 {WA(k,mi)}, v{V_L16}, {sr(SRD_WS,4)}, s60 offen offset:{mi*1024} {LC}"]
            if mi == na - 1: g.append("s_add_u32 s60, s60, 18432")
            wl.append((free_at(order[k * na + mi]), g))
    if na == 2: q("s_lshl_b32 s34, s68, 1")
    else: q("s_mul_i32 s34, s68, 3\ns_sub_u32 s34, s34, 6")
    q(f"s_lshr_b32 s52, s{S_WAVE}, 1\ns_mul_i32 s60, s52, {18*18432}\ns_lshl_b32 s53, s34, 10\ns_add_u32 s60, s60, s53\ns_add_u32 s60, s60, {WS_WOA}")
    pend = []; g_ = 0
    for k in range(56 - S0, 64):
        q(f"VMWAIT b{k}")
        if k == 58: q("VMWAIT ca\ns_barrier"); q.ext(flag_set(1))
        mf = o.mf(k % DEPTH, False)
        gaps = []
        for j in range(len(mf)):
            g_ += 1
            if pend: gaps.append(pend.pop(0))
            elif wl and wl[0][0] <= k and k >= 56 and g_ % 2 == 0: gaps.append(wl.pop(0)[1])
            else: gaps.append([])
        q.ext(weave(mf, gaps))
        if k + DEPTH < 64: pend += o.loads(k + DEPTH, f"b{k+DEPTH}")
    assert not pend
    p.ext(resolve_vm(base + q.l)[len(base):])
    stamp2(p, 6)
    p("s_nop 3")
    def rest_w(p):
        p(flag_load(1))
    reduce_out(p, o, 576, rest_w, None, [g for _, g in wl])
    CXA = lambda k: vr(112 + 4 * k, 4)
    p(f"s_and_b32 s52, s{S_WAVE}, 1\ns_add_u32 s52, s52, s{S_OT}\ns_mul_i32 s{S_O0}, s52, {36*1024}\ns_lshr_b32 s53, s{S_WAVE}, 1\ns_mul_i32 s53, s53, {18*1024}")
    p(f"s_add_u32 s{S_O0}, s{S_O0}, s53\ns_add_u32 s{S_O0}, s{S_O0}, {WS_CTXA}")
    p(f"s_waitcnt vmcnt({nm})")
    flag_test(p)
    p(f"s_cbranch_scc1 L_faspin_{lab}")
    p.label(f"L_faok_{lab}"); stamp2(p, 7)
    for k in range(18):
        p(f"buffer_load_dwordx4 {CXA(k)}, v{V_L16}, {sr(SRD_WS,4)}, s{S_O0} offen offset:{(k%4)*1024} {LC}")
        if k % 4 == 3: p(f"s_add_u32 s{S_O0}, s{S_O0}, 4096")
    AC = lambda mi: vr(184 + 16 * mi, 16)
    p(f"s_lshl_b32 s54, s{S_WAVE}, 13\nv_add_u32 v6, s54, v{V_L16}\ns_xor_b32 s54, s54, 16384\nv_add_u32 v7, s54, v{V_L16}")
    p(f"s_mul_i32 s52, s52, {32*2304}\ns_lshr_b32 s53, s{S_WAVE}, 1\ns_lshl_b32 s53, s53, 5\ns_add_u32 s52, s52, s53\ns_lshl_b32 s53, s34, 6\ns_add_u32 s54, s52, s53")
    for k in range(18):
        if k % 2 == 0: p(f"s_waitcnt vmcnt({16 - k})")
        for mi in range(na): p(mfma(AC(mi), WA(k, mi), CXA(k), "0" if k == 0 else AC(mi)))
    stamp2(p, 8)
    p(f"s_cmp_ge_u32 s{S_WAVE}, 2\ns_nop 9\ns_cbranch_scc1 L_x1_{lab}")
    for kh in range(2):
        if kh: p.label(f"L_x1_{lab}")
        for mi in range(na):
            for j in range(2): p(f"ds_write_b128 v6, {vr(184 + 16*mi + 8*(1-kh) + 4*j, 4)} offset:{mi*2048 + j*1024}")
        p("s_waitcnt lgkmcnt(0)\ns_barrier")
        for mi in range(na):
            for j in range(2): p(f"ds_read_b128 {vr(112 + 8*mi + 4*j, 4)}, v7 offset:{mi*2048 + j*1024}")
        for mi in range(na):
            A = 184 + 16 * mi + 8 * kh; D = 144 + 4 * mi
            p(f"s_waitcnt lgkmcnt({2*(na-1-mi)})")
            for r in range(0, 8, 2): p(f"v_pk_add_f32 {vr(A+r,2)}, {vr(A+r,2)}, {vr(112+8*mi+r,2)}")
            for k in range(4): p(f"v_cvt_pk_bf16_f32 v{D+k}, v{A+2*k}, v{A+2*k+1}")
            p(f"s_nop 1\nv_permlane32_swap_b32 v{D}, v{D+2}\nv_permlane32_swap_b32 v{D+1}, v{D+3}")
            p(f"buffer_store_dwordx4 {vr(D,4)}, v4, {sr(SRD1,4)}, s54 offen offset:{mi*64} {ENV('OA', '')}")
        if not (kh == 1 and final): p("s_branch L_fin")

def run(p):
    attn_b(p, mid_epi=mid_epi)
    stamp(p, 8)
    for x in range(2):
        for r in range(1, 4): p(f"v_mov_b32 v{A_Q(x,1)+r}, 0\nv_mov_b32 v{A_K(x,1)+r}, 0")
    p(f"v_lshlrev_b32 v{A_TK4}, 2, v2\nv_add_u32 v{A_TK4}, {AH_K2}, v{A_TK4}")
    p(f"v_min_u32 v6, 19, v2\nv_lshlrev_b32 v6, 4, v6\nv_mul_u32_u24 v7, 320, v3\nv_add_u32 v6, v6, v7\nv_add_u32 v{A_VL}, {AH_V}, v6")
    p(f"v_mov_b32 v{A_KM}, v{V_L16}\nv_mov_b32 v{A_K2}, v{A_TK4}\nv_mov_b32 v{A_V}, v{A_VL}\ns_mov_b32 s{S_AC}, 0")
    mk_srd(p, SRD1, P_OUT, 2048 * 1152 * 2)
    p(f"s_lshr_b32 s52, s{S_J}, 3\ns_lshl_b32 s{S_OT}, s{S_XCD}, 2\ns_add_u32 s{S_OT}, s{S_OT}, s52\ns_lshl_b32 s{S_OT}, s{S_OT}, 1")
    p(f"s_and_b32 s68, s{S_J}, 7\ns_lshl_b32 s{S_OM}, s68, 1\ns_add_u32 s{S_OM}, s{S_OM}, 2\ns_mul_i32 s52, s68, 3\ns_cmp_lt_u32 s68, 2\ns_cselect_b32 s{S_OM}, s52, s{S_OM}")
    p(f"s_lshl_b32 s52, s{S_WAVE}, 16\ns_lshl_b32 s{S_O0}, s{S_OT}, 18\ns_add_u32 s{S_O0}, s{S_O0}, s52\ns_add_u32 s{S_O0}, s{S_O0}, {WS_CTXB}\ns_add_u32 s{S_O1}, s{S_O0}, 262144")
    p(f"s_mul_i32 s{S_OW}, s{S_WAVE}, {64*18432}\ns_lshl_b32 s53, s{S_OM}, 10\ns_add_u32 s{S_OW}, s{S_OW}, s53\ns_add_u32 s{S_OW}, s{S_OW}, {WS_WOB}")
    p(f"s_mov_b32 s67, {WS_FLAG}\ns_lshl_b32 s52, s{S_G}, 2\ns_cmp_eq_u32 s{S_WAVE}, 0\ns_cselect_b32 s69, s52, {OOB}")
    p(f"v_and_b32 v4, 1, v{V_LANE}\nv_bfe_u32 v5, v{V_LANE}, 1, 1\nv_lshrrev_b32 v6, 2, v{V_LANE}\nv_mul_u32_u24 v5, 320, v5\nv_mul_u32_u24 v6, 640, v6\nv_lshlrev_b32 v7, 4, v4")
    p(f"v_add3_u32 v5, v5, v6, v7\nv_add_u32 v5, {AH_V + 288}, v5\nv_subrev_u32 v6, s{S_AW}, v5\nv_cmp_gt_u32 vcc, 5120, v6\nv_mov_b32 v7, 0x100000\nv_mov_b32 v6, 0x3f803f80\nv_cndmask_b32 v{A_FX}, v7, v5, vcc")
    p(f"v_cmp_eq_u32 vcc, 0, v4\nv_mov_b32 v{A_FT}, v{A_FX}\ns_nop 0\nv_cndmask_b32 v{A_CN}, 0, v6, vcc\nv_mov_b32 v{A_CN+1}, v{A_CN}\nv_mov_b32 v{A_CN+2}, v{A_CN}\nv_mov_b32 v{A_CN+3}, v{A_CN}")
    p(f"s_waitcnt vmcnt(10)\n{FIX}\ns_waitcnt lgkmcnt(0)\ns_barrier")
    p.ext([f"ds_read_b128 {vr(A_K(0,0),4)}, v{A_KM}", f"ds_read_b32 v{A_K(0,1)}, v{A_K2}",
           f"ds_read_b128 {vr(A_K(1,0),4)}, v{A_KM} offset:1024", f"ds_read_b32 v{A_K(1,1)}, v{A_K2} offset:128", "s_waitcnt lgkmcnt(0)"])
    for x in range(2):
        for ks in range(2):
            d = vr(A_S(0, x), 16)
            p(mfma(d, vr(A_K(0, ks), 4), vr(A_Q(x, ks), 4), "0" if ks == 0 else d))
    p("s_nop 9")
    for x in range(2):
        S = A_S(0, x); vn = A_N[x]
        p(f"v_max3_f32 v{vn}, v{S}, v{S+1}, v{S+2}")
        for r in range(3, 15, 2): p(f"v_max3_f32 v{vn}, v{vn}, v{S+r}, v{S+r+1}")
        p(f"v_max_f32 v{vn}, v{vn}, v{S+15}")
    p(f"v_mov_b32 v8, v{A_N[0]}\nv_mov_b32 v9, v{A_N[1]}\ns_nop 1\nv_permlane32_swap_b32 v{A_N[0]}, v8\nv_permlane32_swap_b32 v{A_N[1]}, v9\ns_nop 1")
    p(f"v_max_f32 v{A_N[0]}, v{A_N[0]}, v8\nv_max_f32 v{A_N[1]}, v{A_N[1]}, v9")
    for x in range(2):
        for r in range(16): p(f"v_sub_f32 v{A_S(0,x)+r}, v{A_S(0,x)+r}, v{A_N[x]}\nv_sub_f32 v{A_C(x)+r}, 0, v{A_N[x]}")
    p("v_mov_b32 v8, s69\nv_mov_b32 v9, 1")
    E8 = [[] for _ in range(8)]
    CK = int(ENV("FBCK", "5"))
    it0 = iteration(0, None, E8, [], first=True, rels=range(CK),
                    extra={1: dict(pre=["s_waitcnt vmcnt(0)", "s_barrier"], vm=[flag_set(0)]), CK - 1: dict(vm=[[flag_load(0) + " ; T:fb"]])})
    p.ext(resolve_vm(it0 + ["VMWAIT fb"]))
    flag_test(p)
    p("s_cbranch_scc1 L_fbspin")
    p.label("L_fbok")
    stamp(p, 9); stamp2(p, 1)
    p("s_cmp_lt_u32 s68, 2\ns_cbranch_scc0 L_o_two")
    for nm, lab in ((3, "t"), (2, "d")):
        if nm == 2: p.label("L_o_two")
        o = Out(nm)
        carry = []; NEXTV[0] = 0
        first = sum((o.loads(k, f"b{k}") for k in range(DEPTH)), [])
        S0 = int(ENV("BST", "3"))
        nsl = 8 - CK + S0
        per = -(-len(first) // nsl)
        ex0 = {r: dict(vm=first[(r-CK)*per:(r-CK+1)*per]) for r in range(CK, 8)}
        ex1 = {r: dict(vm=first[(r+8-CK)*per:(r+9-CK)*per]) for r in range(S0)}
        its = [[x for x in iteration(0, o, E8, carry, extra=ex0, rels=range(CK, 8)) if x != "VMWAIT c1"]]
        its.append(iteration(1, o, [[] if r < S0 else [r - S0] for r in range(8)], carry, extra=ex1))
        cnt = {7: dict(vm=[[f"s_sub_u32 s{S_IT}, s{S_IT}, 1"]])}
        for it in range(2, 6): its.append(iteration(it, o, [[8 * (it - 1) - S0 + r] for r in range(8)], carry, extra=cnt))
        pf = [[f"s_lshl_b32 s52, s{S_J}, 2", f"s_add_u32 s52, s52, s{S_WAVE}"], [f"s_mul_i32 s52, s52, {41*128}", f"s_add_u32 s52, s52, {WS_WOA}"],
              [f"v_lshlrev_b32 v245, 7, v{V_LANE}", f"buffer_load_dword v244, v245, {sr(SRD_WS,4)}, s52 offen"]]
        its.append(iteration(6, o, [[40 - S0 + r] for r in range(8)], carry, extra={2: dict(vm=pf)}))
        its.append(iteration(7, o, [[48 - S0 + r] for r in range(8)], carry, last=True))
        fin = a_slot(0, qk=False, sm=False, rdk=False, rdv=False, vm=list(carry), carry=carry)
        q = Prog()
        q.ext(sum(carry, []))
        q("s_nop 10")
        a_lget(q)
        q(f"s_mov_b32 s52, 0x4e800000\nv_cmp_nge_f32 vcc, s52, v{A_N[0]}\nv_cmp_nge_f32 s[70:71], s52, v{A_N[1]}\ns_mov_b32 s{S_IT}, {nm}\ns_or_b64 vcc, vcc, s[70:71]")
        q("s_cbranch_vccnz L_a_slow")
        q.label(f"L_a_epi_{lab}")
        a_epilogue(q)
        q("v_mov_b32 v8, s69\nv_mov_b32 v9, 1")
        stamp2(q, 5)
        head = q
        base = sum(its, []) + fin + head.l
        allr = resolve_vm(base)
        cut = [0]
        for x in its: cut.append(cut[-1] + len(x))
        strip = lambda l: [x.split(" ; T:")[0] for x in l]
        seg = [strip(allr[cut[k]:cut[k+1]]) for k in range(len(its))]
        assert seg[3] == seg[4] == seg[5], "loop not in steady state"
        loop_from = 2 if seg[2] == seg[3] else 3
        check(seg[3] * 2, "mloop")
        for k in range(loop_from): p.ext(seg[k])
        stamp2(p, 2)
        p(f"s_mov_b32 s{S_IT}, {6 - loop_from}")
        p.label(f"L_m_{lab}")
        p.ext(seg[3])
        p(f"s_cmp_lg_u32 s{S_IT}, 0\ns_cbranch_scc1 L_m_{lab}")
        stamp2(p, 3)
        p.ext(allr[cut[6]:])
        if nm == 2: p(f"s_cmp_ge_u32 s68, 6\ns_cbranch_scc1 L_tail_d3")
        for na in ((2,) if nm == 3 else (2, 3)):
            lb = f"{lab}{na}"
            if na == 3: p.label("L_tail_d3")
            tail_variant(p, o, na, lb, base, S0, final=(nm == 2 and na == 3))
    p.label("L_fin")

def tail(p):
    spin(p, "L_s2spin", "L_s2ok", ["v_mov_b32 v28, 0", f"buffer_load_dword v28, v28, {sr(SRD_DBG,4)}, 0 offen sc1"],
         ["v_readfirstlane_b32 s52, v28", "s_cmp_lt_u32 s52, 256"], 53)
    q = Prog(); flag_test(q)
    spin(p, "L_fbspin", "L_fbok", [flag_load(0)], q.l, 53)
    for lab in ("t2", "d2", "d3"): spin(p, f"L_faspin_{lab}", f"L_faok_{lab}", [flag_load(1)], q.l, 53)
    p.label("L_a_slow")
    p("s_waitcnt vmcnt(0)")
    for ps in range(2):
        if ps == 0:
            for x in range(2):
                p(f"v_mov_b32 v{A_N[x]}, {NEGBIG}")
                for r in range(16): p(f"v_mov_b32 v{A_C(x)+r}, 0")
        else:
            p(f"v_mov_b32 v8, v{A_N[0]}\nv_mov_b32 v9, v{A_N[1]}\ns_nop 1\nv_permlane32_swap_b32 v{A_N[0]}, v8\nv_permlane32_swap_b32 v{A_N[1]}, v9\ns_nop 1")
            p(f"v_max_f32 v{A_N[0]}, v{A_N[0]}, v8\nv_max_f32 v{A_N[1]}, v{A_N[1]}, v9")
            for x in range(2):
                for r in range(16): p(f"v_sub_f32 v{A_C(x)+r}, 0, v{A_N[x]}\nv_mov_b32 v{A_O(x)+r}, 0")
        p("s_mov_b32 s52, 0")
        p.label(f"L_a_sl{ps}")
        p(f"s_lshr_b32 s53, s52, 3\ns_mul_i32 s53, s53, {AH_CS}\ns_mul_i32 s54, s{S_HEAD}, {AH_STRIDE}\ns_add_u32 s53, s53, s54\ns_add_u32 s53, s53, {WS_AH}\ns_and_b32 s54, s52, 7")
        p(f"s_lshl_b32 s55, s54, 10\ns_add_u32 s55, s55, s53\nbuffer_load_dwordx4 {vr(A_K(0,0),4)}, v{V_L16}, {sr(SRD_WS,4)}, s55 offen {LC}")
        p(f"s_lshl_b32 s55, s54, 7\ns_add_u32 s55, s55, s53\nbuffer_load_dword v{A_K(0,1)}, v{A_TK4}, {sr(SRD_WS,4)}, s55 offen {LC}")
        p(f"s_mul_i32 s55, s54, 1280\ns_add_u32 s55, s55, s53")
        for s in range(2): p(f"buffer_load_dwordx4 {vr(A_VF(0,s),4)}, v{A_VL}, {sr(SRD_WS,4)}, s55 offen offset:{s*640} {LC}")
        p("v_cmp_eq_u32 vcc, 18, v2\nv_mov_b32 v6, 0x3f803f80\ns_waitcnt vmcnt(0)\nv_cndmask_b32 v6, 0, v6, vcc\nv_cmp_gt_u32 vcc, 18, v2\ns_nop 1")
        for r in range(8): p(f"v_cndmask_b32 v{A_VF(0,0)+r}, v6, v{A_VF(0,0)+r}, vcc")
        for ks in range(2):
            for x in range(2):
                d = vr(A_S(0, x), 16)
                p(mfma(d, vr(A_K(0, ks), 4), vr(A_Q(x, ks), 4), vr(A_C(x), 16) if ks == 0 else d))
        p("s_nop 15")
        for x in range(2):
            S = A_S(0, x)
            if ps == 0:
                for r in range(16): p(f"v_max_f32 v{A_N[x]}, v{A_N[x]}, v{S+r}")
            else:
                for r in range(16): p(f"v_exp_f32 v{S+r}, v{S+r}")
                p("s_nop 0")
                for k in range(8): p(f"v_cvt_pk_bf16_f32 v{A_P(0,x)+k}, v{S+2*k}, v{S+2*k+1}")
        if ps:
            p("s_nop 1")
            for s in range(2):
                for x in range(2): p(mfma(vr(A_O(x), 16), vr(A_VF(0, s), 4), vr(A_P(0, x) + 4 * s, 4), vr(A_O(x), 16)))
            p("s_nop 15")
        p(f"s_add_u32 s52, s52, 1\ns_cmp_lt_u32 s52, 64\ns_cbranch_scc1 L_a_sl{ps}")
    a_lget(p)
    p(f"s_cmp_eq_u32 s{S_IT}, 3\ns_cbranch_scc1 L_a_epi_t\ns_branch L_a_epi_d")
```

```python
from phase1 import lane_parts, act_read_addrs, w_read_addrs, act_dma_addrs, w_dma_addrs, finish, split_at_mfma, groups, f32hex, LOG2E
from gemm import *
import os
ENV = os.environ.get
SC = "sc1"
LC = ENV("LC", "sc1")
NT = ENV("NT", "nt")
AQS = ENV("AQS", "sc1")
OOB = "0x80000000"

VA_ = {0: [10, 11, 12, 13], 131072: [14, 15, 16, 17]}
VW_ = {65536: [18, 19, 20, 21]}
ACC, PP = 64, 192
def abase(st): return (0, 32768, 131072)[st % 3]
def wbase(g): return (98304, 65536, 81920)[g % 3]
S_ST, S_STT = 63, 64
S_RB, S_CB = 68, 69
V_L16 = 30
V_FLAG = 31
SRD_PF = 72

def segs(role):
    cm = dict(mt=2, nt=4, acc=lambda ti, fi: vr(ACC + (ti * 4 + fi) * 16, 16), vA=VA_, vW=VW_,
              fw=lambda k, fi: vr(32 + (k % 2) * 16 + 4 * fi, 4), sM0A=56, sM0W=57, stepW=64 * 8192, vDW=[26, 27, 28, 29], abase=abase)
    vda = [(22, 58), (23, 58), (24, 58), (25, 58), (22, 60), (23, 60), (24, 60), (25, 60)]
    K = Seg("kk", nst=8, wbase=wbase, orient=lambda ti, fi: 'FT', fa=lambda k, ti: ar((k * 2 + ti) * 4, 4), vDA=vda, srdA=SRD1, srdW=SRD2, sOffW=59, flW=NT, **cm)
    V = Seg("kv", nst=8, wbase=lambda st: wbase(st + 8), orient=lambda ti, fi: 'TF', fa=lambda k, ti: ar((k * 2 + ti) * 4, 4), read_act=False, srdW=SRD3, sOffW=61, flW=ENV('NTV', ''), **cm)
    Q = Seg("q", nst=9, wbase=lambda st: wbase(st + 16), orient=lambda ti, fi: 'FT', fa=lambda k, ti: ar(((k % 2) * 2 + ti) * 4, 4), vDA=vda, srdA=SRD1, srdW=SRD2, sOffW=62, flW=ENV('NTV', ''), **cm)
    q = Prog(); mk_srd(q, SRD2, P_AWQKV, 576 * 3456)
    A = Seg("aq", mt=2, nt=2, nst=9, abase=lambda st: (st % 4) * 32768, wbase=lambda st: (st % 4) * 32768 + 16384,
            acc=lambda ti, fi: ar(64 + (ti * 2 + fi) * 16, 16), orient=lambda ti, fi: role,
            vA={0: [244, 245, 246, 247], 65536: [248, 249, 250, 251]}, vW={0: [252, 253], 65536: [254, 255]},
            fa=lambda k, ti: ar(16 + (k % 3) * 16 + 4 * ti, 4), fw=lambda k, fi: ar(16 + (k % 3) * 16 + 8 + 4 * fi, 4),
            vDA=[236, 237, 238, 239], vDW=[240, 241, 242, 243], sM0A=65, sM0W=65, sOffA=66, sOffW=67, stepW=64 * 3456,
            srdA=SRD3, srdW=SRD2, dist=2, pre_dma=q.l)
    return K, V, Q, A

def pack():
    return {(ti, fi): [f"v_cvt_pk_bf16_f32 v{PP + (ti*4+fi)*8 + e}, v{ACC + (ti*4+fi)*16 + 2*e}, v{ACC + (ti*4+fi)*16 + 2*e + 1}" for e in range(8)]
            for ti in range(2) for fi in range(4)}
def stores(isV):
    out = []
    S_STT = 64 if isV else 71
    for ti in range(2):
        for half in range(2):
            for q in range(4):
                blk = half * 4 + q
                fi, s = (blk & 3, blk >> 2) if isV else (blk >> 1, blk & 1)
                pre = [f"s_add_u32 s{S_STT}, s{S_ST}, {(WS_VB if isV else 0) + ti*8192 + half*4096}"] if q == 0 else []
                out.append(pre + [f"buffer_store_dwordx4 {vr(PP + (ti*4+fi)*8 + 4*s, 4)}, v{V_L16}, {sr(SRD_WS,4)}, s{S_STT} offen offset:{q*1024} {SC} ; T:{'vst' if isV else 'kst'}"])
    return out

def splice_pack(lines, first_mfma, order):
    pk = pack(); res = []; nm = 0
    for x in lines:
        if not x.startswith("VMWAIT") and I(x).kind == "mfma":
            j = nm - first_mfma
            if 0 <= j < 8: res += (["s_nop 3"] if j == 0 else []) + pk[order[j]] + ["s_nop 0"]
            nm += 1
        res.append(x)
    return res

def signal(imm, vtmp=8, vone=9):
    return [f"s_mov_b64 exec, 1", f"buffer_atomic_add v{vone}, v{vtmp}, {sr(SRD_DBG,4)}, 0 offen offset:{imm} sc1", "s_mov_b64 exec, -1"]

QSC = 70
def q_epilogue():
    early = []; late = []
    for t in range(8):
        a0 = ACC + t * 16
        for e in range(16): early.append([f"v_mul_f32 v{a0+e}, s{QSC}, v{a0+e}"])
        for e in range(8):
            d = PP + t * 8 + e
            it = [f"v_cvt_pk_bf16_f32 v{d}, v{a0+2*e}, v{a0+2*e+1}"]
            (early if d < 236 else late).append((d, it) if d >= 236 else it)
    mid = [it for d, it in late if d < 244]; last = [it for d, it in late if d >= 244]
    return early, mid, last

E_A4, E_A2A, E_A2B, E_AP, E_AP2, E_REM = 32, 39, 40, 41, 42, 43
E_T = 52
E_OFF = 160
S_EB, S_EHS, S_ECS, S_ESC, S_ETT, S_EF = 56, 34, 60, 61, 62, 71
def aq_addr_qk_valu():
    q = Prog()
    T = 224; AP = 231; R = 232; X = 233
    st = lambda e, r: q(f"v_accvgpr_write_b32 a{128 + e - 32}, v{r}")
    q(f"s_and_b32 s52, s{S_WAVE}, 1\ns_lshl_b32 s52, s52, 6\ns_lshl_b32 s{S_EF}, s{S_CB}, 7\ns_add_u32 s{S_EF}, s{S_EF}, s52")
    q(f"s_mov_b32 s{S_EHS}, {AH_STRIDE}\ns_cmp_lt_u32 s{S_EF}, 576\ns_cmov_b32 s{S_EHS}, {QA_STRIDE}\ns_cselect_b32 s52, 0, 576")
    q(f"s_sub_u32 s52, s{S_EF}, s52\ns_mov_b32 s53, 3641")
    q(f"v_lshlrev_b32 v{T}, 4, v2\nv_lshlrev_b32 v{T+1}, 2, v2\nv_lshlrev_b32 v{T+2}, 2, v3\nv_add_u32 v{T+2}, s52, v{T+2}\nv_mov_b32 v{T+3}, {OOB}\nv_mov_b32 v{AP}, {OOB}")
    for n in range(8):
        q(f"v_add_u32 v{T+4}, {8*n}, v{T+2}\nv_mul_lo_u32 v{T+5}, v{T+4}, s53\nv_lshrrev_b32 v{T+5}, 16, v{T+5}")
        q(f"v_mul_u32_u24 v{R}, 18, v{T+5}\nv_sub_u32 v{R}, v{T+4}, v{R}\nv_mul_lo_u32 v{T+5}, v{T+5}, s{S_EHS}")
        q(f"v_cmp_eq_u32 vcc, 16, v{R}\nv_add_u32 v{T+4}, v{T+5}, v{T+1}\nv_bfe_u32 v{T+6}, v{R}, 2, 1\nv_cndmask_b32 v{AP}, v{AP}, v{T+4}, vcc")
        q(f"v_cmp_gt_u32 vcc, 8, v{R}\nv_lshlrev_b32 v{T+6}, 9, v{T+6}\nv_add3_u32 v{T+6}, v{T+6}, v{T+5}, v{T}")
        q(f"v_cndmask_b32 v{X}, v{T+3}, v{T+6}, vcc")
        st(E_REM + n, R); st(E_A4 + n if n < 7 else E_A2B, X)
        if n == 0:
            q(f"v_add_u32 v{T+4}, -8, v{R}\nv_cmp_gt_u32 vcc, 8, v{T+4}\nv_add_u32 v{T+6}, 8, v{T+6}\ns_nop 0\nv_cndmask_b32 v{X}, v{T+3}, v{T+6}, vcc")
            st(E_A2A, X)
    q(f"v_add_u32 v{X}, s{S_EHS}, v{AP}")
    st(E_AP, AP); st(E_AP2, X)
    return q.l
def aq_addr_qk():
    q = Prog()
    q(f"s_mov_b32 s{S_EB}, {WS_AH}\ns_mov_b32 s{S_ECS}, {AH_CS}\ns_cmp_lt_u32 s{S_EF}, 576")
    q(f"s_cmov_b32 s{S_EB}, {WS_QA}\ns_cmov_b32 s{S_ECS}, {QA_CS}\ns_cselect_b32 s{S_ESC}, 1, 0")
    q(f"s_lshl_b32 s{S_ETT}, s{S_RB}, 2\ns_and_b32 s52, s{S_WAVE}, 2\ns_add_u32 s{S_ETT}, s{S_ETT}, s52\ns_lshr_b32 s52, s{S_ETT}, 3\ns_mul_i32 s52, s52, s{S_ECS}")
    q(f"s_add_u32 s{S_EB}, s{S_EB}, s52\ns_and_b32 s{S_ETT}, s{S_ETT}, 7")
    return q.l
def aq_addr_v():
    q = Prog(); T = E_T
    q(f"s_sub_u32 s{S_EF}, s{S_EF}, 1152")
    q(f"s_lshl_b32 s{S_ETT}, s{S_RB}, 2\ns_and_b32 s52, s{S_WAVE}, 2\ns_add_u32 s{S_ETT}, s{S_ETT}, s52\ns_lshr_b32 s52, s{S_ETT}, 3\ns_mul_i32 s{S_EB}, s52, {AH_CS}")
    q(f"s_and_b32 s{S_ETT}, s{S_ETT}, 7\ns_mul_i32 s52, s{S_ETT}, 1280\ns_add_u32 s{S_EB}, s{S_EB}, s52\ns_add_u32 s{S_EB}, s{S_EB}, {WS_AH + AH_V}")
    q(f"s_mov_b32 s53, 3641\ns_mov_b32 s{S_EHS}, {AH_STRIDE}\nv_mul_u32_u24 v{T}, 320, v3\nv_mov_b32 v{T+3}, {OOB}")
    for fi in range(2):
        q(f"s_add_u32 s52, s{S_EF}, {32*fi}\nv_add_u32 v{T+4}, s52, v2\nv_mul_lo_u32 v{T+5}, v{T+4}, s53\nv_lshrrev_b32 v{T+5}, 16, v{T+5}")
        q(f"v_mul_u32_u24 v{T+6}, 18, v{T+5}\nv_sub_u32 v{T+6}, v{T+4}, v{T+6}\nv_mul_lo_u32 v{T+5}, v{T+5}, s{S_EHS}\nv_lshlrev_b32 v{T+6}, 4, v{T+6}")
        q(f"v_cmp_gt_u32 vcc, 576, v{T+4}\nv_add3_u32 v{T+6}, v{T+6}, v{T+5}, v{T}\ns_nop 0\nv_cndmask_b32 v{E_A4+fi}, v{T+3}, v{T+6}, vcc")
    return q.l

def fgroups(lines):
    out = []; cmp_ = None; open_ = False
    for x in lines:
        op = x.split()[0]
        if op.startswith("s_cmp"):
            cmp_ = x; open_ = False; continue
        if op.startswith("s_cselect") or op.startswith("s_cmov"):
            if open_ and len(out[-1]) < 3: out[-1].append(x)
            else: out.append([cmp_, x]); open_ = True
            continue
        open_ = False
        out.append([x])
    return out

def idx(lines, pred):
    return [i for i, x in enumerate(lines) if not x.startswith("VMWAIT") and not x.endswith(":") and pred(I(x), x)]
def before(lines, a, b, msg):
    A = idx(lines, a); B = idx(lines, b)
    assert A and B, msg + " (empty)"
    assert max(A) < min(B), f"{msg}: {max(A)} !< {min(B)}"
def W(lo, hi): return lambda i, x: i.kind == "valu" and any(r[0] == 'v' and lo <= r[1] <= hi for r in i.w)
def RD(lo, hi, kinds): return lambda i, x: i.kind in kinds and any(r[0] == 'v' and lo <= r[1] <= hi for r in i.r)

EV = 96 - 32
def aq_epi_qk(p):
    for r in range(19): p(f"v_accvgpr_read_b32 v{96+r}, a{128+r}")
    p(f"s_cmp_eq_u32 s{S_ESC}, 0\ns_cselect_b32 s52, 1.0, {f32hex(18 ** -0.5 * LOG2E)}\ns_mov_b32 s53, s52")
    p(f"s_lshl_b32 s34, s{S_ETT}, 10\ns_add_u32 s34, s34, s{S_EB}\ns_add_u32 s35, s34, 1024")
    p(f"s_lshl_b32 s71, s{S_ETT}, 7\ns_add_u32 s71, s71, s{S_EB}\ns_add_u32 s71, s71, {AH_K2}")
    st = []
    for ti in range(2):
        b = 128 + ti * 16
        for fi in range(2):
            for e in range(16): p(f"v_accvgpr_read_b32 v{64+e}, a{64 + ti*32 + fi*16 + e}")
            last = ti == 1 and fi == 1
            if last:
                for e in range(16): p(f"v_mul_f32 v{64+e}, s52, v{64+e}")
            else:
                for e in range(0, 16, 2): p(f"v_pk_mul_f32 {vr(64+e,2)}, {vr(64+e,2)}, s[52:53]")
            for e in range(8): p(f"v_cvt_pk_bf16_f32 v{b+fi*8+e}, v{64+2*e}, v{64+2*e+1}")
        so = 34 + ti
        for n in range(7): st.append([f"buffer_store_dwordx4 {vr(b+2*n,4)}, v{E_A4+EV+n}, {sr(SRD_WS,4)}, s{so} offen {AQS}"])
        st.append([f"buffer_store_dwordx2 {vr(b,2)}, v{E_A2A+EV}, {sr(SRD_WS,4)}, s{so} offen {AQS}"])
        st.append([f"buffer_store_dwordx2 {vr(b+14,2)}, v{E_A2B+EV}, {sr(SRD_WS,4)}, s{so} offen {AQS}"])
    m = Prog()
    for n in range(8): m(f"v_cmp_eq_u32 s[{(42, 44, 46, 48, 50, 40, 66, 68)[n]}:{(42, 44, 46, 48, 50, 40, 66, 68)[n]+1}], 16, v{E_REM+EV+n}")
    for n in range(8):
        r = (42, 44, 46, 48, 50, 40, 66, 68)[n]
        m(f"s_cmp_eq_u64 s[{r}:{r+1}], 0\ns_cbranch_scc1 L_aq_np{n}\ns_mov_b64 exec, s[{r}:{r+1}]")
        for ti in range(2):
            b = 128 + ti * 16
            m(f"buffer_store_dword v{b+2*n}, v{E_AP+EV}, {sr(SRD_WS,4)}, s71 offen offset:{ti*128} {AQS}\nbuffer_store_dword v{b+2*n+1}, v{E_AP2+EV}, {sr(SRD_WS,4)}, s71 offen offset:{ti*128} {AQS}")
        m("s_mov_b64 exec, -1")
        m.label(f"L_aq_np{n}")
    return st, m.l
def aq_epi_v(p):
    st = []
    p(f"v_mov_b32 v96, v{E_A4}\nv_mov_b32 v97, v{E_A4+1}\ns_mov_b32 s34, s{S_EB}")
    for ti in range(2):
        for fi in range(2):
            b = 128 + (ti * 2 + fi) * 8
            for e in range(16): p(f"v_accvgpr_read_b32 v{64 + e}, a{64 + (ti*2+fi)*16 + e}")
            for e in range(8): p(f"v_cvt_pk_bf16_f32 v{b+e}, v{64+2*e}, v{64+2*e+1}")
            for s in range(2): st.append([f"buffer_store_dwordx4 {vr(b+4*s,4)}, v{96+fi}, {sr(SRD_WS,4)}, s34 offen offset:{ti*1280 + s*640} {AQS}"])
    return st

def code_pf(lab, start, end, nl, srd, vt, so, dst):
    return [[f"{lab}:", f"s_getpc_b64 s[{srd}:{srd+1}]", f"s_add_u32 s{srd}, s{srd}, {start}-{lab}-4", f"s_addc_u32 s{srd+1}, s{srd+1}, 0"],
            [f"s_mov_b32 s{srd+2}, {end}-{start}", f"s_mov_b32 s{srd+3}, 0x20000"],
            [f"s_lshl_b32 s{so}, s{S_J}, 2", f"s_add_u32 s{so}, s{so}, s{S_WAVE}"], [f"s_mul_i32 s{so}, s{so}, {nl*128}", f"v_min_u32 v{vt}, {nl-1}, v{V_LANE}"],
            [f"v_lshlrev_b32 v{vt}, 7, v{vt}"], [f"buffer_load_dword v{dst}, v{vt}, {sr(srd,4)}, s{so} offen ; T:pf"]]

def front(p, ring_setup, ring_groups, post, qk_path, v_path, late_setup, early_setup):
    lane_parts(p)
    mk_srd(p, SRD1, P_CKV, 2048 * 1024)
    mk_srd(p, SRD2, P_WUK, 512 * 8192)
    K, V, Q, A = segs('FT')
    p(f"s_lshl_b32 s54, s{S_WAVE}, 4")
    w_dma_addrs(p, [26, 27, 28, 29], 54, 8192)
    p(f"s_lshl_b32 s54, s{S_WAVE}, 6")
    act_dma_addrs(p, [22, 23, 24, 25], 54, 1024)
    p(f"s_lshl_b32 s56, s{S_WAVE}, 13\ns_lshl_b32 s57, s{S_WAVE}, 12")
    p(f"s_lshl_b32 s58, s{S_BLK}, 18\ns_add_u32 s60, s58, {32*1024}\ns_lshl_b32 s59, s{S_HEAD}, 8\ns_mov_b32 s61, s59\ns_mov_b32 s62, s59")
    pre = []
    NPRE = int(ENV("NPRE", "3"))
    for st in range(NPRE):
        d = K.dma(st)
        if st == 0: d = d[8:] + d[:8]
        for g in d: pre += g
    p.ext(pre)
    mk_srd(p, SRD3, P_WUV, 512 * 8192)
    p(f"s_lshl_b32 s54, s{S_WAVE}, 13")
    act_read_addrs(p, VA_, 54)
    w_read_addrs(p, VW_, None)
    p(f"v_lshlrev_b32 v{V_L16}, 4, v{V_LANE}")
    p(f"s_lshl_b32 s{S_ST}, s{S_HEAD}, 19\ns_lshl_b32 s52, s{S_BLK}, 16\ns_add_u32 s{S_ST}, s{S_ST}, s52\ns_lshl_b32 s52, s{S_WAVE}, 14\ns_add_u32 s{S_ST}, s{S_ST}, s52")
    p(f"s_mul_i32 s52, s{S_J}, 9363\ns_lshr_b32 s52, s52, 16\ns_mul_i32 s53, s52, 7\ns_sub_u32 s53, s{S_J}, s53")
    p(f"s_lshr_b32 s{S_RB}, s{S_XCD}, 1\ns_lshl_b32 s{S_RB}, s{S_RB}, 2\ns_and_b32 s54, s52, 3\ns_add_u32 s{S_RB}, s{S_RB}, s54")
    p(f"s_and_b32 s{S_CB}, s{S_XCD}, 1\ns_mul_i32 s{S_CB}, s{S_CB}, 7\ns_add_u32 s{S_CB}, s{S_CB}, s53\ns_cmp_ge_u32 s{S_J}, 28\ns_cselect_b32 s{S_CB}, 14, s{S_CB}")
    p(f"s_lshl_b32 s65, s{S_WAVE}, 12\ns_mul_i32 s66, s{S_RB}, {128*1152}\ns_lshl_b32 s67, s{S_CB}, 8\ns_mov_b32 s{QSC}, {f32hex(128 ** -0.5 * LOG2E)}")
    q = Prog()
    q(f"v_lshlrev_b32 v9, 10, v{V_LANE}\ns_lshl_b32 s52, s{S_G}, 2\ns_add_u32 s52, s52, {WS_FLAG}\ns_cmp_eq_u32 s{S_WAVE}, 0")
    q(f"v_mov_b32 v{V_FLAG}, 0")
    q(f"s_cselect_b32 s53, 2, 0\nv_cmp_gt_u32 vcc, s53, v{V_LANE}\nv_mov_b32 v8, {OOB}\ns_nop 0\nv_cndmask_b32 v9, v8, v9, vcc")
    q(f"buffer_store_dword v{V_FLAG}, v9, {sr(SRD_WS,4)}, s52 offen {SC}")
    q(f"v_lshrrev_b32 v8, 4, v{V_LANE}")
    p.ext(q.l); pre.append(q.l[-2])
    stamp(p, 1)

    def build(role):
        K, V, Q, A = segs(role)
        issue = {g: [g + 3] for g in range(22)}
        issue[22] = [25]; issue[23] = [26, 27]
        for a in range(6): issue[25 + a] = [25 + a + 3]
        issue[31] = [ring_groups[0], ring_groups[1]]; issue[32] = [ring_groups[2]]
        lg = {g: True for g in range(24)}
        fill = {}
        vfill = {}
        def add(gk, gs): fill.setdefault(gk, []).extend(gs)
        def vadd(gk, gs): vfill.setdefault(gk, []).extend(gs)
        PFS = ENV("PF", "cvbqawo")
        NL = int(ENV("PFL", "8"))
        if PFS:
            def pieces(setup, nlines, step, fl):
                out = []
                for k in range(-(-nlines // NL)):
                    out.append((groups(setup) if k == 0 else []) + [[f"buffer_load_dword v{V_FLAG}, v9, {sr(SRD_PF,4)}, s64 offen {fl} ; T:pf", f"s_add_u32 s64, s64, {step}"]])
                return out
            def lin(ptr, size, nl, fl):
                q = Prog()
                mk_srd(q, SRD_PF, ptr, size)
                q(f"s_mul_i32 s64, s35, {nl*128}\nv_cmp_gt_u32 vcc, {NL}, v{V_LANE}\nv_lshlrev_b32 v9, 7, v{V_LANE}\ns_nop 0\nv_cndmask_b32 v9, v0, v9, vcc")
                return pieces(q.l, nl, NL * 128, fl)
            def wsl(ptr, rows, fl):
                r = rows // 32
                q = Prog()
                mk_srd(q, SRD_PF, ptr, rows * 8192)
                q(f"s_lshl_b32 s64, s{S_BLK}, 2\ns_add_u32 s64, s64, s{S_WAVE}\ns_mul_i32 s64, s64, {r*8192}\ns_add_u32 s64, s64, s62")
                q(f"v_cmp_gt_u32 vcc, {NL}, v{V_LANE}\nv_lshrrev_b32 v9, 1, v{V_LANE}\nv_lshlrev_b32 v9, 6, v9\nv_and_or_b32 v9, v{V_LANE}, 1, v9\nv_lshlrev_b32 v9, 7, v9\nv_cndmask_b32 v9, v0, v9, vcc")
                return pieces(q.l, 2 * r, NL // 2 * 8192, fl)
            q = Prog(); q(f"s_lshl_b32 s35, s{S_G}, 2\ns_add_u32 s35, s35, s{S_WAVE}\nv_mov_b32 v0, {OOB}")
            early_pf = list(q.l)
            def twice(ptr, rows):
                a_, b_ = wsl(ptr, rows, "nt"), wsl(ptr, rows, "")
                return a_ + b_
            items = {'V': twice(P_WUV, 512), 'Q': twice(P_WQ, 576), 'v': wsl(P_WUV, 512, ""), 'b': lin(P_BX, 2048 * 1152, 18, ""), 'q': wsl(P_WQ, 576, ""),
                     'a': lin(P_AX, 2048 * 1152, 18, ""), 'w': lin(P_AWQKV, 576 * 3456, 16, ""), 'c': lin(P_CKV, 2048 * 1024, 16, ""), 'o': lin(P_AWO, 576 * 1152, 6, "")}
            allp = sum((items[c] for c in PFS), [])
            p0, p1 = float(ENV("PF0", "0")), float(ENV("PF1", "31"))
            if ENV("CPF", "1") == "1":
                q = Prog()
                q(f"s_getpc_b64 s[{SRD_PF}:{SRD_PF+1}]\ns_mov_b32 s{SRD_PF+2}, L_code_end-L_code_pf\ns_mov_b32 s{SRD_PF+3}, 0x20000")
                q(f"s_lshl_b32 s64, s{S_J}, 2\ns_add_u32 s64, s64, s{S_WAVE}\ns_mul_i32 s64, s64, {10*128}\nv_cmp_gt_u32 vcc, 10, v{V_LANE}\nv_lshlrev_b32 v9, 7, v{V_LANE}\ns_nop 0\nv_cndmask_b32 v9, v0, v9, vcc")
                q(f"buffer_load_dword v{V_FLAG}, v9, {sr(SRD_PF,4)}, s64 offen ; T:pf")
                early_pf += ["L_code_pf:"] + q.l
            N0 = int(ENV("PFN0", "10"))
            for it in allp[:N0]: early_pf += sum(it, [])
            allp = allp[N0:]
            for n, it in enumerate(allp): add(int(p0 + n * (p1 - p0) / len(allp)), it)
            late_p = sum((items[c] for c in ENV("PF2", "")), [])
            p2, p3 = float(ENV("PF2A", "34")), float(ENV("PF2B", "44"))
            for n, it in enumerate(late_p): add(int(p2 + n * (p3 - p2) / len(late_p)), it)
        q = Prog()
        mk_srd(q, SRD1, P_BX, 2048 * 1152); mk_srd(q, SRD2, P_WQ, 576 * 8192)
        q("s_mov_b32 s54, 0"); act_dma_addrs(q, [22, 23, 24, 25], 54, 1152)
        q(f"s_lshl_b32 s52, s{S_BLK}, 2\ns_add_u32 s52, s52, s{S_WAVE}\ns_mul_i32 s58, s52, {32*1152}")
        q(f"s_sub_u32 s52, 15, s{S_BLK}\ns_lshl_b32 s52, s52, 2\ns_add_u32 s52, s52, s{S_WAVE}\ns_mul_i32 s60, s52, {32*1152}")
        add(33, groups(q.l))
        q = Prog(); mk_srd(q, SRD_DBG, P_DBG, 256); add(60, groups(q.l))
        SB = int(ENV("SB", "2"))
        def batch(gs): return [sum(gs[i:i+SB], []) for i in range(0, len(gs), SB)]
        for i, g in enumerate(batch(stores(False))): vadd(int(ENV('K0', '33')) + int(i * SB * float(ENV('KS', '1.5'))), [g])
        VS = float(ENV("VS", "1.6"))
        vst = stores(True)
        vst = vst[8:] + vst[:8]
        for i, g in enumerate(batch(vst)): vadd(65 + int(i * SB * VS), [g])
        SIGB = int(ENV('SIGB', '24'))
        q = Prog()
        mk_srd(q, SRD3, P_AX, 2048 * 1152)
        q(f"s_lshl_b32 s54, s{S_WAVE}, 5"); act_dma_addrs(q, A.vDA, 54, 1152)
        q(f"s_lshl_b32 s54, s{S_WAVE}, 4"); w_dma_addrs(q, A.vDW, 54, 3456)
        q(f"s_lshr_b32 s54, s{S_WAVE}, 1\ns_lshl_b32 s54, s54, 13"); act_read_addrs(q, A.vA, 54)
        q(f"s_and_b32 s55, s{S_WAVE}, 1\ns_lshl_b32 s55, s55, 1"); w_read_addrs(q, A.vW, 55)
        aqs = groups(q.l)
        q = Prog()
        q(f"s_lshl_b32 s55, s{S_HEAD}, 2\ns_cmp_eq_u32 s{S_WAVE}, 0\ns_cselect_b32 s55, s55, {OOB}\nv_mov_b32 v0, s55\nv_mov_b32 v{V_FLAG}, 1")
        sig_setup = [q.l[:3], q.l[3:4], q.l[4:5]]
        add(66 + int(8 * VS), aqs + fgroups(aq_addr_qk_valu()))
        add(65, groups(early_setup) + sig_setup)
        early, mid, last = q_epilogue()
        add(100, groups(ring_setup))
        add(101, early[:96])
        add(117, fgroups(aq_addr_qk() if role == 'FT' else aq_addr_v()) + early[96:])
        q = Prog()
        q(f"s_lshl_b32 s64, s{S_HEAD}, 2\nv_mov_b32 v{V_FLAG}, s64")
        add(104, groups(q.l))
        add(118, groups(late_setup)); add(126, mid); add(134, last)
        hooks = {124: ["VMWAIT poll", f"v_readfirstlane_b32 s64, v{V_FLAG}", "s_cmp_lt_u32 s64, 8", f"s_cbranch_scc1 L_kvspin_{role}", f"L_kvok_{role}:"]}
        hooks[{22: 92, 23: 96, 24: 99, 25: 103}[SIGB]] = signal(128, 0, V_FLAG)
        hooks[119] = [f"buffer_load_dword v{V_FLAG}, v{V_FLAG}, {sr(SRD_DBG,4)}, 0 offen offset:128 sc1 ; T:poll"]
        if STAMPS:
            for n, gk in ((2, 32), (3, 64)):
                q = Prog(); stamp(q, n); hooks[gk] = q.l
        lines = pipeline([K, V, Q, A], issue, lg, fillers=fill, hooks=hooks, xwait={SIGB: "vst"}, endbar=ring_groups[3], vfill=vfill, budget=int(ENV('BUD', '22')), dq0=sum((K.dma(st) for st in range(NPRE, 3)), []))
        lines = splice_pack(lines, 256, V.morder())
        lines = splice_pack(lines, 512, Q.morder())
        cvtP = lambda i, x: i.op.startswith("v_cvt") and PP <= i.w[0][1]
        mf = idx(lines, lambda i, x: i.kind == "mfma")
        assert max(idx(lines, lambda i, x: "T:kst" in x)) < mf[510], "K stores late"
        assert max(idx(lines, lambda i, x: i.kind == "valu" and not i.op.startswith("v_cvt") and any(r[0] == 'v' and 236 <= r[1] <= 243 for r in i.w))) < min(idx(lines, lambda i, x: "T:aq0" in x))
        assert max(idx(lines, lambda i, x: i.kind == "valu" and not i.op.startswith("v_cvt") and any(r[0] == 'v' and 244 <= r[1] for r in i.w))) < min(idx(lines, RD(244, 255, ("dsr",))))
        late_ = [k for k in idx(lines, cvtP) if k > mf[800]]
        for k in late_:
            d = I(lines[k]).w[0][1]
            if d >= 236: assert k > max(idx(lines, RD(d, d, ("dsr", "dma")))), f"cvt into v{d} too early"
        assert max(k for k in idx(lines, W(22, 25)) if k < mf[800]) < min(idx(lines, lambda i, x: "T:q0" in x))
        assert min(idx(lines, W(22, 25))) > max(idx(lines, lambda i, x: "T:kk7" in x))
        assert max(idx(lines, lambda i, x: i.op == "v_accvgpr_write_b32")) < mf[800], "address precompute spills into AQ"
        assert max(idx(lines, lambda i, x: "T:poll" in x)) < [k for k, x in enumerate(lines) if x.startswith("VMWAIT poll")][0]
        assert max(idx(lines, lambda i, x: "T:pf" in x) + [0]) < min(idx(lines, lambda i, x: x == f"s_mov_b32 s{SRD_DBG}, s{P_DBG}")), "prefetch after debug SRD"
        vs_ = idx(lines, lambda i, x: "T:vst" in x)
        assert len(vs_) == 16 and vs_[7] < min(k for k in idx(lines, W(224, 255)) if k > mf[520]), "P reused before V stores"
        assert vs_[15] < [k for k, x in enumerate(lines) if x.startswith("VMWAIT") and "vst" in x][0]
        assert vs_[15] < min(k for k in idx(lines, W(192, 223)) if k > mf[520])
        assert max(idx(lines, lambda i, x: x.startswith(f"v_mov_b32 v{V_FLAG}, s64"))) < min(idx(lines, lambda i, x: "T:poll" in x))
        assert min(idx(lines, lambda i, x: x.startswith(f"v_mov_b32 v{V_FLAG}, s64"))) > max(idx(lines, lambda i, x: i.kind == "vat"))
        lab = [k for k, x in enumerate(lines) if x.startswith("L_kvok")][0]
        assert lab < min(idx(lines, lambda i, x: "T:ring" in x))
        assert max(idx(lines, lambda i, x: x in ring_setup[:6])) < min(idx(lines, lambda i, x: "T:ring" in x))
        return finish((early_pf if PFS else []) + lines + post, pre)
    h1, tFT = split_at_mfma(build('FT'), 800)
    h2, tTF = split_at_mfma(build('TF'), 800)
    assert h1 == h2
    p.ext(h1)
    stamp(p, 4)
    p(f"s_cmp_ge_u32 s{S_CB}, 9\ns_cbranch_scc1 L_aq_V")
    p.ext(tFT)
    stamp(p, 5)
    qk_path(p)
    p.label("L_aq_V")
    p.ext(tTF)
    stamp(p, 5)
    v_path(p)

def spin(p, lab, back, load, test, cnt):
    p.label(lab)
    p(f"s_mov_b32 s{cnt}, 0x40000")
    p.label(lab + "_l")
    p("s_sleep 2")
    p.ext(load)
    p("s_waitcnt vmcnt(0)")
    p.ext(test)
    p(f"s_cbranch_scc0 {back}\ns_sub_u32 s{cnt}, s{cnt}, 1\ns_cmp_lg_u32 s{cnt}, 0\ns_cbranch_scc1 {lab}_l\ns_branch {back}")

def front_spins(p):
    for role in ('FT', 'TF'):
        spin(p, f"L_kvspin_{role}", f"L_kvok_{role}",
             [f"s_lshl_b32 s64, s{S_HEAD}, 2", f"v_mov_b32 v{V_FLAG}, s64", f"buffer_load_dword v{V_FLAG}, v{V_FLAG}, {sr(SRD_DBG,4)}, 0 offen offset:128 sc1"],
             [f"v_readfirstlane_b32 s64, v{V_FLAG}", "s_cmp_lt_u32 s64, 8"], 55)
```
